```python
import torch

def _softmax(x, axis=-1):
    return torch.softmax(x, dim=axis)

def _gelu(x):
    return torch.nn.functional.gelu(x, approximate='tanh')

def _silu(x):
    return torch.nn.functional.silu(x)

def _sigmoid(x):
    return torch.sigmoid(x)

def _layernorm(x, axis=-1, eps=1e-05):
    m = x.mean(dim=axis, keepdim=True)
    v = x.var(dim=axis, keepdim=True, unbiased=False)
    return (x - m) / torch.sqrt(v + eps)

def _scatter_add(tgt, idx, src, axis=0):
    return tgt.clone().index_add_(axis, idx, src)

def _segment_sum(src, seg, n):
    out = torch.zeros((n,) + src.shape[1:], dtype=src.dtype)
    return out.index_add_(0, seg, src)

def _pad(x, pw):
    flat = tuple((v for pair in reversed(pw) for v in pair))
    return torch.nn.functional.pad(x, flat)
kernel_name = 'adaLN_cond__compressed_kv_cla__swiglu_ffn__decode'

def setup_inputs():

    _w = lambda a: (lambda t: t.to(torch.bfloat16) if t.is_floating_point() else t)(torch.as_tensor(a))

    def _A_setup():
        B, H, Sq, Sk, D, M = (2, 32, 1, 8192, 128, 640)
        Dc = 4 * D
        return {'x': _w((lambda *s: torch.randn(*s, dtype=torch.bfloat16) * 0.05)(B, Sq, M)), 'c_kv': _w((lambda *s: torch.randn(*s, dtype=torch.bfloat16) * 1.6)(B, Sk, Dc)), 'w_q': _w((lambda *s: torch.randn(*s, dtype=torch.bfloat16) * 1.6)(M, H, D) * M ** (-0.5)), 'w_uk': _w((lambda *s: torch.randn(*s, dtype=torch.bfloat16) * 1.6)(Dc, H, D) * Dc ** (-0.5)), 'w_uv': _w((lambda *s: torch.randn(*s, dtype=torch.bfloat16) * 1.6)(Dc, H, D) * Dc ** (-0.5)), 'w_o': _w((lambda *s: torch.randn(*s, dtype=torch.bfloat16) * 1.6)(H, D, M) * (H * D) ** (-0.5))}
    _A_in = _A_setup()

    def _B_setup():
        B, S, D, F = (2, 1, 640, 1728)
        return {'x': _w((lambda *s: torch.randn(*s, dtype=torch.bfloat16) * 0.05)(B, S, D)), 'w_gate': _w((lambda *s: torch.randn(*s, dtype=torch.bfloat16) * 0.05)(D, F)), 'w_up': _w((lambda *s: torch.randn(*s, dtype=torch.bfloat16) * 0.05)(D, F)), 'w_down': _w((lambda *s: torch.randn(*s, dtype=torch.bfloat16) * 0.05)(F, D))}
    _B_in = _B_setup()
    return {'A_x': _A_in['x'], 'A_c_kv': _A_in['c_kv'], 'A_w_q': _A_in['w_q'], 'A_w_uk': _A_in['w_uk'], 'A_w_uv': _A_in['w_uv'], 'A_w_o': _A_in['w_o'], 'B_x': _B_in['x'], 'B_w_gate': _B_in['w_gate'], 'B_w_up': _B_in['w_up'], 'B_w_down': _B_in['w_down'], 'c': _w((lambda *s: torch.randn(*s, dtype=torch.bfloat16) * 0.2)(2, 640) * 8.0), 'w_mod': _w((lambda *s: torch.randn(*s, dtype=torch.bfloat16) * 0.2)(640, 6 * 640) * 640 ** (-0.5) * 8.0)}

def reference(A_x, A_c_kv, A_w_q, A_w_uk, A_w_uv, A_w_o, B_x, B_w_gate, B_w_up, B_w_down, c, w_mod):

    def _A_ref(x, c_kv, w_q, w_uk, w_uv, w_o):
        B, Sq, M = (x.shape[0], x.shape[1], x.shape[2])
        Sk = c_kv.shape[1]
        H, D = (w_q.shape[1], w_q.shape[2])
        q = torch.einsum('bqm,mhd->bhqd', x, w_q)
        k = torch.einsum('bkc,chd->bhkd', c_kv, w_uk)
        v = torch.einsum('bkc,chd->bhkd', c_kv, w_uv)
        scores = torch.einsum('bhqd,bhkd->bhqk', q, k) * D ** (-0.5)
        off = Sk - Sq
        qi = torch.arange(Sq)[:, None]
        kj = torch.arange(Sk)[None, :]
        cmask = kj <= qi + off
        scores = torch.where(cmask[None, None], scores, -1000000000.0)
        p = _softmax(scores, axis=-1)
        ctx = torch.einsum('bhqk,bhkd->bhqd', p, v)
        return torch.einsum('bhqd,hdm->bqm', ctx, w_o)

    def _B_ref(x, w_gate, w_up, w_down):
        g = _silu(x @ w_gate)
        u = x @ w_up
        return g * u @ w_down
    x = A_x
    mod = (_silu(c) @ w_mod).reshape(c.shape[0], 6, 1, -1)
    sa, ca, ga, sb, cb, gb = (mod[:, 0].clone(), mod[:, 1].clone(), mod[:, 2].clone(), mod[:, 3].clone(), mod[:, 4].clone(), mod[:, 5].clone())
    h = _layernorm(x, axis=-1) * (1 + ca) + sa
    x = x + ga * _A_ref(h, A_c_kv, A_w_q, A_w_uk, A_w_uv, A_w_o)
    h = _layernorm(x, axis=-1) * (1 + cb) + sb
    x = x + gb * _B_ref(h, B_w_gate, B_w_up, B_w_down)
    return x
```

```python
NAME = "adaLN_cond__compressed_kv_cla__swiglu_ffn__decode_kernel"
class Asm:
    def __init__(self):
        self.L = []
        self.lab = 0
    def __call__(self, s):
        for line in s.strip("\n").split("\n"):
            self.L.append("    " + line.strip())
    def label(self, name):
        self.L.append(name + ":")
    def newlabel(self, p="L"):
        self.lab += 1
        return "%s_%d" % (p, self.lab)
    def text(self):
        return "\n".join(self.L)

def wrap(body, grid, block, lds, vgpr=256, sgpr=102, accum=256, name=NAME, header=""):
    return f"""{header}; @launch grid=({grid},1,1) block=({block},1,1) lds={lds}
.amdgcn_target "amdgcn-amd-amdhsa--gfx950"
.text
.globl {name}
.p2align 8
.type {name},@function
{name}:
{body}
    s_endpgm
.section .rodata,"a"
.p2align 6
.amdhsa_kernel {name}
  .amdhsa_next_free_vgpr {vgpr}
  .amdhsa_next_free_sgpr {sgpr}
  .amdhsa_accum_offset {accum}
  .amdhsa_group_segment_fixed_size 0
  .amdhsa_kernarg_size 120
  .amdhsa_user_sgpr_count 2
  .amdhsa_user_sgpr_kernarg_segment_ptr 1
  .amdhsa_system_sgpr_workgroup_id_x 1
.end_amdhsa_kernel
"""
```

```python
import sys, math
from asmgen import Asm, wrap

STAMPS = "--stamps" in sys.argv
OUT = [a for a in sys.argv[1:] if not a.startswith("--")]
OUT = OUT[0] if OUT else "k.s"

FL   = 0x0000
R1   = 0x1000
R2   = 0x10000
R3   = 0x20000
R4S  = 0x30000
R5   = 0x38000
R6   = 0x48000
R8   = 0x52000
R7   = 0x58000
R4   = 0x100000
R4ST = 32768 + 256
STMP = 0x800000
WS_SIZE = 268435456
P1 = 10
NFFN = 27
LOG2E = 1.4426950408889634
import struct
def f2u(x): return struct.unpack("<I", struct.pack("<f", x))[0]

a = Asm()
sID, sW, sN = "s2", "s3", "s4"
pX, pCKV, pWQ, pWUK, pWUV, pWO, pWG, pWU, pWD, pC, pWM, pOUT, pDBG, pWS = 16, 18, 20, 22, 24, 26, 30, 32, 34, 36, 38, 40, 42, 44
WS, SA, SB, SC, SD = 48, 52, 56, 60, 64
def srd(n): return "s[%d:%d]" % (n, n + 3)
vLane, vN, vKg = "v1", "v2", "v3"
MK = [4, 5, 6, 7]
ASET = [8, 12]
vST = "v255"

def mksrd(n, p, size):
    a(f"s_mov_b32 s{n}, s{p}\ns_mov_b32 s{n+1}, s{p+1}\ns_mov_b32 s{n+2}, {size}\ns_mov_b32 s{n+3}, 0x00020000")

def stamp(k):
    if STAMPS:
        a(f"s_memrealtime s[90:91]\ns_waitcnt lgkmcnt(0)\nv_writelane_b32 {vST}, s90, {k}")

EPOCH = 0x800
def get_nonce():
    a(f"""s_waitcnt lgkmcnt(0)
    s_mul_i32 {sN}, s46, 1664525
    s_add_u32 {sN}, {sN}, 1013904223""")

def check_flags_vec(name, vaddr, soff, imm, vtmp):
    L = name
    a("s_mov_b32 s5, 0")
    a.label(L)
    a(f"buffer_load_dword {vtmp}, {vaddr}, {srd(WS)}, {soff} offen offset:{imm} sc1\ns_waitcnt vmcnt(0)")
    timeout(L)
    a(f"v_cmp_ne_u32 vcc, {sN}, {vtmp}\ns_cbranch_vccnz {L}")
    a.label(L + "_x")

def allreduce(op, v, t):
    for r in (8, 4, 2, 1):
        a(f"s_nop 1\n{op}_dpp {v}, {v}, {v} row_ror:{r} row_mask:0xf bank_mask:0xf")
    for sw in ("v_permlane16_swap_b32", "v_permlane32_swap_b32"):
        a(f"v_mov_b32 {t}, {v}\ns_nop 1\n{sw} {v}, {t}\ns_nop 1\n{op} {v}, {v}, {t}")

def diag_mfma(items, acc, first=True):
    def ands(k):
        s = ASET[k % 2]
        for t in range(4):
            a(f"v_and_b32 v{s+t}, v{items[k][0]}, v{MK[t]}")
    ands(0)
    for k in range(len(items)):
        if k + 1 < len(items):
            ands(k + 1)
        else:
            a("s_nop 1")
        s = ASET[k % 2]; wv = items[k][1]
        c = "0" if (first and k == 0) else f"v[{acc}:{acc+3}]"
        a(f"v_mfma_f32_16x16x32_bf16 v[{acc}:{acc+3}], v[{s}:{s+3}], v[{wv}:{wv+3}], {c}")

def silu(v, t):
    a(f"""v_mul_f32 {t}, 0x{f2u(-LOG2E):08x}, {v}
    v_exp_f32 {t}, {t}
    s_nop 0
    v_add_f32 {t}, 1.0, {t}
    v_rcp_f32 {t}, {t}
    s_nop 0
    v_mul_f32 {v}, {v}, {t}""")

def silu_c4(src, dst, t):
    a(f"""v_lshlrev_b32 v{dst}, 16, v{src}
    v_and_b32 v{dst+1}, 0xffff0000, v{src}
    v_lshlrev_b32 v{dst+2}, 16, v{src+1}
    v_and_b32 v{dst+3}, 0xffff0000, v{src+1}""")
    for i in range(4):
        silu(f"v{dst+i}", t)
    for i in range(4):
        a(f"v_cvt_pk_bf16_f32 v{dst+i}, v{dst+i}, v{dst+i}")

def timeout(L):
    a(f"s_add_u32 s5, s5, 1\ns_cmp_gt_u32 s5, 200000\ns_cbranch_scc1 {L}_x")

a.label("L_code_start")
a(f"""
s_getpc_b64 s[6:7]
s_cmp_ge_u32 {sID}, 256
s_cbranch_scc1 L_end
s_load_dwordx16 s[16:31], s[0:1], 0
s_load_dwordx8 s[32:39], s[0:1], 64
s_load_dwordx4 s[40:43], s[0:1], 96
s_load_dwordx2 s[44:45], s[0:1], 112
s_memrealtime s[8:9]
v_and_b32 {vLane}, 63, v0
v_lshrrev_b32 v24, 6, v0
v_and_b32 {vN}, 15, v0
v_readfirstlane_b32 {sW}, v24
v_bfe_u32 {vKg}, v0, 4, 2
""")
a(f"""
s_lshr_b32 s5, {sID}, 3
s_lshl_b32 s5, s5, 3
s_add_u32 s5, s5, {sW}
s_and_b32 s5, s5, 63
s_lshl_b32 s5, s5, 10
v_lshlrev_b32 v25, 4, {vLane}
v_add_u32 v25, s5, v25
v_min_u32 v25, L_code_end-L_code_start-32, v25
global_load_dwordx4 v[248:251], v25, s[6:7]
""")
if STAMPS:
    a(f"v_mov_b32 {vST}, 0")
a(f"""
v_and_b32 v24, 1, {vN}
v_lshlrev_b32 v24, 4, v24
v_lshlrev_b32 v24, v24, v25
""".replace("v_lshlrev_b32 v24, v24, v25", "v_mov_b32 v25, 0xffff\nv_lshlrev_b32 v24, v24, v25"))
a(f"v_bfe_u32 v25, {vN}, 1, 2")
for t in range(4):
    a(f"v_cmp_eq_u32 vcc, {t}, v25\ns_nop 1\nv_cndmask_b32 v{MK[t]}, 0, v24, vcc")
a("s_waitcnt lgkmcnt(0)")
if STAMPS:
    a(f"v_writelane_b32 {vST}, s8, 0")
a(f"s_load_dword s46, s[{pWS}:{pWS+1}], {EPOCH}")
mksrd(WS, pWS, WS_SIZE)
a(f"s_cmp_ge_u32 {sID}, 128\ns_cbranch_scc1 L_F")

QB = 131072
a(f"s_cmp_ge_u32 {sID}, {10*P1}\ns_cbranch_scc1 L_A_main")
mksrd(SA, pWM, 640 * 7680)
mksrd(SB, pC, 2560)
mksrd(SC, pX, 2560)
a(f"""
s_mul_i32 s10, {sID}, 205
s_lshr_b32 s10, s10, 11            ; p
s_mul_i32 s11, s10, 10
s_sub_u32 s11, {sID}, s11          ; j
s_cmp_ge_u32 {sW}, 4
s_cbranch_scc1 L_S1_other
s_lshl_b32 s12, s10, 6
s_lshl_b32 s13, {sW}, 4
s_add_u32 s12, s12, s13            ; rbase
v_lshl_add_u32 v24, {vKg}, 2, s12  ; row
v_lshrrev_b32 v25, 3, {vN}         ; bsel
v_mul_u32_u24 v26, 1280, v25
v_lshl_add_u32 v26, v24, 1, v26    ; c offset
buffer_load_dwordx2 v[28:29], v26, {srd(SB)}, 0 offen
v_mul_u32_u24 v27, 7680, v24
v_mul_u32_u24 v25, 1152, v25
v_lshl_add_u32 v25, {vN}, 4, v25
s_lshl_b32 s13, s11, 7
v_add3_u32 v27, v27, v25, s13
buffer_load_dwordx4 v[64:67], v27, {srd(SA)}, 0 offen nt
s_movk_i32 s13, 7680
buffer_load_dwordx4 v[68:71], v27, {srd(SA)}, s13 offen nt
s_movk_i32 s13, 15360
buffer_load_dwordx4 v[72:75], v27, {srd(SA)}, s13 offen nt
s_movk_i32 s13, 23040
buffer_load_dwordx4 v[76:79], v27, {srd(SA)}, s13 offen nt
v_lshlrev_b32 v30, 4, v0
v_add_u32 v30, {QB}, v30
s_waitcnt vmcnt(4)
""")
silu_c4(28, 16, "v24")
a("s_waitcnt vmcnt(0)")
stamp(1)
diag_mfma([(16 + u, 64 + 4 * u) for u in range(4)], 32)
a("s_nop 7\nds_write_b128 v30, v[32:35]")
a("s_branch L_S1_bar")
a.label("L_S1_other")
a(f"s_cmp_ge_u32 {sW}, 6\ns_cbranch_scc1 L_S1_bar")
a(f"""
s_sub_u32 s12, {sW}, 4
s_mul_i32 s13, s12, 1280
v_lshlrev_b32 v24, 2, {vLane}
buffer_load_dword v32, v24, {srd(SC)}, s13 offen
buffer_load_dword v33, v24, {srd(SC)}, s13 offen offset:256
buffer_load_dword v34, v24, {srd(SC)}, s13 offen offset:512
buffer_load_dword v35, v24, {srd(SC)}, s13 offen offset:768
buffer_load_dword v36, v24, {srd(SC)}, s13 offen offset:1024
s_lshl_b32 s14, s11, 7
s_add_u32 s13, s13, s14
v_lshlrev_b32 v25, 1, {vLane}
buffer_load_ushort v37, v25, {srd(SC)}, s13 offen
s_waitcnt vmcnt(0)
""")
for i in range(5):
    a(f"v_lshlrev_b32 v{40+2*i}, 16, v{32+i}\nv_and_b32 v{41+2*i}, 0xffff0000, v{32+i}")
a("v_add_f32 v26, v40, v41")
for i in range(2, 10):
    a(f"v_add_f32 v26, v26, v{40+i}")
allreduce("v_add_f32", "v26", "v27")
a(f"v_mul_f32 v26, 0x{f2u(1.0/640):08x}, v26       ; mean")
a("v_sub_f32 v40, v40, v26\nv_mul_f32 v28, v40, v40")
for i in range(1, 10):
    a(f"v_sub_f32 v{40+i}, v{40+i}, v26\nv_fmac_f32 v28, v{40+i}, v{40+i}")
allreduce("v_add_f32", "v28", "v27")
a(f"""
v_mov_b32 v27, 0x{f2u(1e-5):08x}
v_fmac_f32 v27, 0x{f2u(1.0/640):08x}, v28
v_rsq_f32 v27, v27
v_lshlrev_b32 v37, 16, v37
v_sub_f32 v37, v37, v26
v_mul_f32 v37, v37, v27
s_lshl_b32 s12, s12, 8
s_add_u32 s12, s12, {QB+4096}
v_add_u32 v24, s12, v24
ds_write_b32 v24, v37
s_waitcnt lgkmcnt(0)
""")
a.label("L_S1_bar")
get_nonce()
a(f"s_barrier\ns_cmp_lg_u32 {sW}, 0\ns_cbranch_scc1 L_A_main")
a(f"""
v_lshrrev_b32 v24, 3, {vLane}        ; n'
v_bfe_u32 v25, {vLane}, 2, 1         ; jj>>2
v_and_b32 v26, 3, {vLane}
v_lshlrev_b32 v24, 4, v24
v_lshl_add_u32 v24, v25, 8, v24
v_lshl_add_u32 v24, v26, 2, v24
v_add_u32 v24, {QB}, v24
v_lshlrev_b32 v25, 2, {vLane}
v_add_u32 v25, {QB+4096}, v25
""")
for w in range(4):
    for b in range(2):
        r = 32 + (w * 2 + b) * 2
        if w * 1024 + b * 512 + 128 < 1024:
            a(f"ds_read2_b32 v[{r}:{r+1}], v24 offset0:{(w*1024+b*512)//4} offset1:{(w*1024+b*512+128)//4}")
        else:
            a(f"ds_read_b32 v{r}, v24 offset:{w*1024+b*512}\nds_read_b32 v{r+1}, v24 offset:{w*1024+b*512+128}")
a("ds_read_b32 v48, v25\nds_read_b32 v49, v25 offset:256")
a(f"""
s_mul_i32 s12, s10, 640
s_lshl_b32 s13, s11, 6
s_add_u32 s12, s12, s13
s_lshl_b32 s12, s12, 3
s_add_u32 s12, s12, {R1}
v_lshlrev_b32 v26, 3, {vLane}
s_cmp_eq_u32 s10, 0
s_cselect_b32 s13, 1.0, 0
s_waitcnt lgkmcnt(0)
""")
for b in range(2):
    for x in range(2):
        r0 = 32 + b * 2 + x
        a(f"v_add_f32 v{r0}, v{r0}, v{r0+4}\nv_add_f32 v{r0+8}, v{r0+8}, v{r0+12}\nv_add_f32 v{r0}, v{r0}, v{r0+8}")
a(f"""
v_add_f32 v33, s13, v33
v_add_f32 v35, s13, v35
v_fmac_f32 v32, v48, v33
v_fmac_f32 v34, v49, v35
v_cvt_pk_bf16_f32 v32, v32, v34
v_mov_b32 v33, {sN}
buffer_store_dwordx2 v[32:33], v26, {srd(WS)}, s12 offen sc1
""")
stamp(2)

a.label("L_A_main")
mksrd(SA, pCKV, 16777216)
mksrd(SB, pWUV, 512 * 8192)
a(f"""
s_lshr_b32 s10, {sID}, 6            ; b
s_and_b32 s11, {sID}, 63            ; chunk
v_and_b32 v24, 31, {vLane}          ; head / l31
v_lshrrev_b32 v25, 5, {vLane}       ; hf
; O store address v56: lane -> head = l/8 (+8i), piece = l%8
s_lshr_b32 s12, {sW}, 1             ; cq
s_mul_i32 s12, s12, {R4ST}
s_lshl_b32 s13, {sID}, 8            ; (b*64+chunk)*256
s_add_u32 s12, s12, s13
s_and_b32 s13, {sW}, 1
s_lshl_b32 s13, s13, 7
s_add_u32 s12, s12, s13
s_add_u32 s68, s12, {R4}
s_add_u32 s69, s68, {32*R4ST}
s_add_u32 s70, s68, {64*R4ST}
s_add_u32 s71, s68, {96*R4ST}
v_lshrrev_b32 v56, 3, {vLane}
v_mul_u32_u24 v56, {4*R4ST}, v56
v_and_b32 v27, 7, {vLane}
v_lshl_add_u32 v56, v27, 4, v56
v_mov_b32 v32, -1
v_mov_b32 v33, -1
v_mov_b32 v34, -1
v_mov_b32 v35, -1
buffer_store_dwordx4 v[32:35], v56, {srd(WS)}, s68 offen sc1
buffer_store_dwordx4 v[32:35], v56, {srd(WS)}, s69 offen sc1
buffer_store_dwordx4 v[32:35], v56, {srd(WS)}, s70 offen sc1
buffer_store_dwordx4 v[32:35], v56, {srd(WS)}, s71 offen sc1
s_lshl_b32 s12, {sID}, 8
s_add_u32 s12, s12, {R4S}
v_lshlrev_b32 v57, 3, v24
v_add_u32 v57, s12, v57
s_lshl_b32 s12, {sID}, 9
s_add_u32 s12, s12, {R5}
v_lshlrev_b32 v58, 3, {vLane}
v_add_u32 v58, s12, v58
s_cmp_lg_u32 {sW}, 0
s_cbranch_scc1 L_A_noclr
buffer_store_dwordx2 v[32:33], v57, {srd(WS)}, 0 offen sc1
buffer_store_dwordx2 v[32:33], v58, {srd(WS)}, 0 offen sc1
""")
a.label("L_A_noclr")
a(f"""
s_lshl_b32 s12, {sID}, 7            ; (b*64+chunk)*128
s_lshl_b32 s13, {sW}, 4
s_add_u32 s12, s12, s13
s_lshl_b32 s12, s12, 10
s_lshl_b32 s13, {sW}, 14
v_lshlrev_b32 v26, 4, {vLane}
""")
def fsw(k): return ((k & 3) << 2) | ((k >> 2) & 3)
a(f"""v_and_b32 v29, 7, {vLane}
v_lshlrev_b32 v29, 2, v29
s_lshl_b32 s9, {sW}, 5""")
for r in range(16):
    if r % 4 == 0:
        a(f"s_add_u32 s14, s13, {r*1024}\ns_mov_b32 m0, s14\ns_add_u32 s15, s12, {r*1024}")
    t = 27 + (r % 2)
    a(f"v_xor_b32 v{t}, {fsw(r)*16}, v26")
    a(f"buffer_load_dwordx4 v{t}, {srd(SA)}, s15 offen offset:{(r%4)*1024} nt lds")
    if r == 11:
        a(f"buffer_load_dword v61, v29, {srd(WS)}, s9 offen offset:{FL+192*4} sc1")
        a("v_mov_b32 v62, v29")
stamp(3)
get_nonce()
a(f"""
v_and_b32 v27, 3, {vLane}
v_lshlrev_b32 v27, 2, v27
v_bfe_u32 v28, {vLane}, 2, 2
v_or_b32 v27, v27, v28              ; f(l%16)
v_xor_b32 v27, v27, v25             ; ^ kg2
v_lshlrev_b32 v27, 4, v27
v_lshl_or_b32 v27, v24, 10, v27     ; l31*1024 | x0
s_lshl_b32 s12, {sW}, 15
""")
for t8 in range(8):
    a(f"v_xor_b32 v{72+t8}, {t8<<5}, v27\nv_add_u32 v{64+t8}, s12, v{72+t8}\nv_add_u32 v{72+t8}, {QB}, v{72+t8}")
a(f"""
v_lshrrev_b32 v27, 2, {vN}          ; r
v_lshrrev_b32 v28, 1, {vKg}         ; kg
v_and_b32 v29, 1, {vKg}             ; G&1
v_lshl_add_u32 v30, v28, 3, v27
v_lshlrev_b32 v30, 10, v30
v_bfe_u32 v31, {vN}, 1, 1           ; q>>1
v_lshl_add_u32 v31, v29, 1, v31     ; 2(G&1) + (q>>1)
s_and_b32 s12, {sW}, 1
s_lshl_b32 s12, s12, 3
v_add_u32 v31, s12, v31
v_lshlrev_b32 v27, 2, v27
v_lshl_or_b32 v27, v28, 1, v27      ; f(e=0) = r<<2 | 2kg
v_xor_b32 v31, v31, v27
v_lshlrev_b32 v31, 4, v31
v_and_b32 v27, 1, {vN}
v_lshlrev_b32 v27, 3, v27
v_add3_u32 v30, v30, v31, v27
s_lshr_b32 s12, {sW}, 1
s_lshl_b32 s12, s12, 8
v_add_u32 v30, s12, v30
""")
for mt in range(2):
    for e in range(2):
        r = 80 + mt * 2 + e
        a(f"v_xor_b32 v{r}, {(mt*64) ^ (e*16) ^ (e*4096)}, v30\nv_add_u32 v{r+4}, 0x10000, v{r}")
a(f"""
s_lshl_b32 s12, s10, 5
s_lshl_b32 s13, {sW}, 2
s_add_u32 s12, s12, s13
s_lshl_b32 s12, s12, 10
s_add_u32 s12, s12, {R3}
s_and_b32 s14, {sW}, 3
v_xor_b32 v27, s14, {vLane}
v_lshlrev_b32 v27, 4, v27
s_lshl_b32 s13, s13, 10
s_add_u32 s13, s13, {QB}
v_add_u32 v27, s13, v27
s_mov_b32 s5, 0
""")
a(f"s_waitcnt vmcnt(4)\nv_cmp_ne_u32 vcc, {sN}, v61\ns_cbranch_vccz L_Qflag_x")
check_flags_vec("L_Qflag", "v62", "s9", FL + 192 * 4, "v61")
a("s_mov_b32 s5, 0")
L = "L_Qpoll"
a.label(L)
for u in range(4):
    a(f"buffer_load_dwordx4 v[{32+4*u}:{35+4*u}], v26, {srd(WS)}, s12 offen offset:{u*1024} sc1")
a("s_waitcnt vmcnt(0)")
a("v_max3_u32 v28, v32, v33, v34")
for i in range(35, 47, 2):
    a(f"v_max3_u32 v28, v28, v{i}, v{i+1}")
a("v_max_u32 v28, v28, v47")
timeout(L)
a(f"v_cmp_eq_u32 vcc, -1, v28\ns_cbranch_vccnz {L}")
a.label(L + "_x")
stamp(4)
for u in range(4):
    a(f"v_xor_b32 v28, {u<<6}, v27\nds_write_b128 v28, v[{32+4*u}:{35+4*u}] offset:{u*1024}")
a("s_waitcnt lgkmcnt(0)\ns_barrier")
a(f"""
s_cmp_lg_u32 {sW}, 7
s_cbranch_scc1 L_A_nofl
s_lshl_b32 s12, {sID}, 2
v_mov_b32 v27, {sN}
v_mov_b32 v28, s12
s_mov_b64 exec, 1
buffer_store_dword v27, v28, {srd(WS)}, 0 offen sc1
s_mov_b64 exec, -1
""")
a.label("L_A_nofl")
a(f"""
s_and_b32 s12, {sID}, 3             ; cq
s_lshl_b32 s12, s12, 7
s_lshl_b32 s13, {sW}, 4
s_add_u32 s12, s12, s13
v_lshl_add_u32 v27, {vKg}, 2, s12
v_lshlrev_b32 v27, 13, v27
v_lshl_add_u32 v27, {vN}, 4, v27
s_lshr_b32 s12, {sID}, 2
s_lshl_b32 s12, s12, 8
""")
for u in range(4):
    a(f"buffer_load_dwordx4 v[{224+4*u}:{227+4*u}], v27, {srd(SB)}, s12 offen nt")
    if u < 3: a("s_add_u32 s12, s12, 8192")
TR0 = 128
def tr_reads():
    for t in range(8):
        for mt in range(2):
            for e in range(2):
                ar = 80 + mt * 2 + e + (4 if t >= 4 else 0)
                d = TR0 + (t * 2 + mt) * 4 + e * 2
                a(f"ds_read_b64_tr_b16 v[{d}:{d+1}], v{ar} offset:{(t%4)*16384}")
a(f"s_cmp_ge_u32 {sW}, 4\ns_cbranch_scc1 L_A_noqk")
AF, BF, SACC = 96, 112, 192
def qk_read(t):
    s = t % 4
    a(f"ds_read_b128 v[{AF+4*s}:{AF+4*s+3}], v{64+t%8} offset:{(t//8)*256}")
    a(f"ds_read_b128 v[{BF+4*s}:{BF+4*s+3}], v{72+t%8} offset:{(t//8)*256}")
for t in range(4): qk_read(t)
for t in range(32):
    out = min(3, 31 - t) * 2
    a(f"s_waitcnt lgkmcnt({out})")
    s = t % 4
    c = "0" if t == 0 else f"v[{SACC}:{SACC+15}]"
    a(f"v_mfma_f32_32x32x16_bf16 v[{SACC}:{SACC+15}], v[{AF+4*s}:{AF+4*s+3}], v[{BF+4*s}:{BF+4*s+3}], {c}")
    if t + 4 < 32: qk_read(t + 4)
tr_reads()
a(f"v_max3_f32 v27, v{SACC}, v{SACC+1}, v{SACC+2}")
for i in range(3, 15, 2):
    a(f"v_max3_f32 v27, v27, v{SACC+i}, v{SACC+i+1}")
a(f"""v_max_f32 v27, v27, v{SACC+15}
v_mov_b32 v28, v27
s_nop 1
v_permlane32_swap_b32 v27, v28
s_nop 1
v_max_f32 v27, v27, v28
s_lshl_b32 s12, {sW}, 2
v_lshlrev_b32 v29, 4, v24
v_add_u32 v29, {QB+9216}, v29       ; MX[head][4]
v_add_u32 v30, s12, v29
""")
stamp(5)
a("s_barrier\nds_write_b32 v30, v27\ns_waitcnt lgkmcnt(0)\ns_barrier")
a(f"""ds_read_b128 v[32:35], v29
v_mul_u32_u24 v31, 272, v24
v_lshl_add_u32 v31, v25, 3, v31
s_lshl_b32 s12, {sW}, 6
s_add_u32 s12, s12, {QB}
v_add_u32 v31, s12, v31
s_waitcnt lgkmcnt(0)
v_max3_f32 v27, v32, v33, v34
v_max_f32 v27, v27, v35
""")
for i in range(16):
    a(f"v_sub_f32 v{SACC+i}, v{SACC+i}, v27")
for i in range(16):
    a(f"v_exp_f32 v{SACC+i}, v{SACC+i}")
a("s_nop 0")
for g in range(4):
    a(f"v_cvt_pk_bf16_f32 v{32+2*g}, v{SACC+4*g}, v{SACC+4*g+1}\nv_cvt_pk_bf16_f32 v{33+2*g}, v{SACC+4*g+2}, v{SACC+4*g+3}")
    a(f"ds_write_b64 v31, v[{32+2*g}:{33+2*g}] offset:{g*16}")
a(f"v_add_f32 v28, v{SACC}, v{SACC+1}")
for i in range(2, 16):
    a(f"v_add_f32 v28, v28, v{SACC+i}")
a(f"""v_mov_b32 v40, v28
s_nop 1
v_permlane32_swap_b32 v28, v40
s_nop 1
v_add_f32 v28, v28, v40
ds_write_b32 v30, v28 offset:512
s_waitcnt lgkmcnt(0)
s_barrier
s_cmp_lg_u32 {sW}, 0
s_cbranch_scc1 L_A_pv
ds_read_b128 v[32:35], v29 offset:512
s_waitcnt lgkmcnt(0)
v_add_f32 v32, v32, v33
v_add_f32 v34, v34, v35
v_add_f32 v28, v32, v34
v_mov_b32 v32, v27
v_mov_b32 v33, v28
buffer_store_dwordx2 v[32:33], v57, {srd(WS)}, 0 offen sc1
s_branch L_A_pv
""")
a.label("L_A_noqk")
tr_reads()
a("s_barrier\ns_barrier\ns_waitcnt lgkmcnt(0)\ns_barrier")
a.label("L_A_pv")
stamp(6)
PF, OACC = 96, 192
a(f"""v_mul_u32_u24 v31, 272, v24
v_lshl_add_u32 v31, v25, 4, v31
v_add_u32 v31, {QB}, v31
""")
for t in range(8):
    a(f"ds_read_b128 v[{PF+4*t}:{PF+4*t+3}], v31 offset:{t*32}")
a(f"""s_lshr_b32 s12, {sW}, 2
s_lshl_b32 s12, s12, 8
v_lshlrev_b32 v59, 2, {vLane}
buffer_load_dword v60, v59, {srd(WS)}, s12 offen sc1
""")
for t in range(8):
    a(f"s_waitcnt lgkmcnt({7-t})")
    for mt in range(2):
        d = TR0 + (t * 2 + mt) * 4; o = OACC + 16 * mt
        c = "0" if t == 0 else f"v[{o}:{o+15}]"
        a(f"v_mfma_f32_32x32x16_bf16 v[{o}:{o+15}], v[{d}:{d+3}], v[{PF+4*t}:{PF+4*t+3}], {c}")
a(f"""v_mul_u32_u24 v27, 144, v24
v_lshl_add_u32 v27, v25, 3, v27
s_mul_i32 s13, {sW}, 4608
v_add_u32 v27, s13, v27
v_lshrrev_b32 v28, 3, {vLane}
v_mul_u32_u24 v28, 144, v28
v_and_b32 v29, 7, {vLane}
v_lshl_add_u32 v28, v29, 4, v28
v_add_u32 v28, s13, v28
s_nop 1
""")
for mt in range(2):
    o = OACC + 16 * mt
    for g in range(4):
        r = 32 + (mt * 4 + g) * 2
        a(f"v_cvt_pk_bf16_f32 v{r}, v{o+4*g}, v{o+4*g+1}\nv_cvt_pk_bf16_f32 v{r+1}, v{o+4*g+2}, v{o+4*g+3}")
        a(f"ds_write_b64 v27, v[{r}:{r+1}] offset:{mt*64+g*16}")
a("s_waitcnt lgkmcnt(0)")
for i in range(4):
    a(f"ds_read_b128 v[{32+4*i}:{35+4*i}], v28 offset:{i*1152}")
for i in range(4):
    a(f"s_waitcnt lgkmcnt({3-i})\nbuffer_store_dwordx4 v[{32+4*i}:{35+4*i}], v56, {srd(WS)}, s{68+i} offen sc1")
stamp(7)
L = "L_S5flag"
a(f"s_mov_b32 s5, 0\ns_waitcnt vmcnt(4)\nv_cmp_ne_u32 vcc, {sN}, v60\ns_cbranch_vccz {L}_x")
a.label(L)
a(f"buffer_load_dword v60, v59, {srd(WS)}, s12 offen sc1\ns_waitcnt vmcnt(0)")
timeout(L)
a(f"v_cmp_ne_u32 vcc, {sN}, v60\ns_cbranch_vccnz {L}")
a.label(L + "_x")
a(f"""
s_lshr_b32 s10, {sW}, 2             ; b'
s_lshr_b32 s11, {sID}, 2            ; h
s_lshl_b32 s12, s10, 14
s_lshl_b32 s13, s11, 3
s_add_u32 s12, s12, s13
s_add_u32 s12, s12, {R4S}
v_lshlrev_b32 v27, 8, {vLane}
s_mul_i32 s13, {sID}, {R4ST}
s_lshl_b32 s14, {sW}, 12
s_add_u32 s13, s13, s14
s_add_u32 s13, s13, {R4}
s_mov_b32 s5, 0
""")
L = "L_S5stat"
a.label(L)
a(f"buffer_load_dwordx2 v[32:33], v27, {srd(WS)}, s12 offen sc1\ns_waitcnt vmcnt(0)\nv_max_u32 v28, v32, v33")
timeout(L)
a(f"v_cmp_eq_u32 vcc, -1, v28\ns_cbranch_vccnz {L}")
a.label(L + "_x")
for u in range(4):
    a(f"buffer_load_dwordx4 v[{64+4*u}:{67+4*u}], v26, {srd(WS)}, s13 offen offset:{u*1024} sc1")
a("v_mov_b32 v34, v32")
allreduce("v_max_f32", "v34", "v35")
a("v_sub_f32 v32, v32, v34\nv_exp_f32 v32, v32\ns_nop 0\nv_mul_f32 v33, v33, v32")
allreduce("v_add_f32", "v33", "v35")
a(f"""v_rcp_f32 v33, v33
s_nop 0
v_mul_f32 v32, v32, v33
v_cvt_pk_bf16_f32 v33, v32, v32
v_and_b32 v34, 0xffff0000, v33
v_sub_f32 v34, v32, v34
v_cvt_pk_bf16_f32 v33, v32, v34
s_and_b32 s14, {sW}, 3
s_lshl_b32 s14, s14, 4
v_add_u32 v35, s14, {vKg}
v_lshlrev_b32 v35, 2, v35
v_cmp_gt_u32 vcc, 8, {vN}
v_mov_b32 v36, 0x03020302
v_mov_b32 v37, 0x01000100
v_cndmask_b32 v36, v36, v37, vcc    ; selector
""")
for u in range(4):
    a(f"ds_bpermute_b32 v{16+u}, v35, v33 offset:{u*16}")
a("s_waitcnt lgkmcnt(0)")
for u in range(4):
    a(f"v_perm_b32 v{16+u}, v{16+u}, v{16+u}, v36")
L = "L_S5data"
a(f"s_mov_b32 s5, 0\ns_branch {L}_c")
a.label(L)
for u in range(4):
    a(f"buffer_load_dwordx4 v[{64+4*u}:{67+4*u}], v26, {srd(WS)}, s13 offen offset:{u*1024} sc1")
a.label(L + "_c")
a("s_waitcnt vmcnt(0)")
a("v_max3_u32 v28, v64, v65, v66")
for i in range(67, 79, 2):
    a(f"v_max3_u32 v28, v28, v{i}, v{i+1}")
a("v_max_u32 v28, v28, v79")
timeout(L)
a(f"v_cmp_eq_u32 vcc, -1, v28\ns_cbranch_vccnz {L}")
a.label(L + "_x")
stamp(8)
RED5 = QB + 12288; ACT5 = QB + 21504; RED5b = QB + 23552
diag_mfma([(16 + u, 64 + 4 * u) for u in range(4)], 32)
a(f"""v_lshlrev_b32 v30, 4, v0
v_add_u32 v30, {RED5}, v30
v_bfe_u32 v27, v0, 3, 4
v_lshlrev_b32 v27, 4, v27
v_bfe_u32 v28, v0, 2, 1
v_lshl_add_u32 v27, v28, 8, v27
v_and_b32 v28, 3, v0
v_lshl_add_u32 v27, v28, 2, v27
v_bfe_u32 v28, v0, 7, 1
v_lshl_add_u32 v27, v28, 12, v27
v_add_u32 v27, {RED5}, v27
ds_write_b128 v30, v[32:35]
s_waitcnt lgkmcnt(0)
s_barrier
s_cmp_ge_u32 {sW}, 4
s_cbranch_scc1 L_S5_skip
""")
for w in range(4):
    a(f"ds_read2st64_b32 v[{32+2*w}:{33+2*w}], v27 offset0:{w*4} offset1:{w*4+2}")
a(f"""v_and_b32 v28, 127, v0
v_lshlrev_b32 v28, 2, v28
v_bfe_u32 v29, v0, 7, 1
v_mul_u32_u24 v29, 576, v29
v_add3_u32 v28, v28, v29, s14
""".replace("v_add3_u32 v28, v28, v29, s14", f"v_add_u32 v28, v28, v29\nv_add_u32 v28, {ACT5}, v28"))
a("""s_waitcnt lgkmcnt(0)
v_add_f32 v32, v32, v33
v_add_f32 v34, v34, v35
v_add_f32 v36, v36, v37
v_add_f32 v38, v38, v39
v_add_f32 v32, v32, v34
v_add_f32 v36, v36, v38
v_add_f32 v32, v32, v36
v_cvt_pk_bf16_f32 v32, v32, v32
ds_write_b32 v28, v32
s_waitcnt lgkmcnt(0)
""")
a.label("L_S5_skip")
a(f"""v_lshrrev_b32 v27, 3, {vN}
v_mul_u32_u24 v27, 576, v27
v_lshl_add_u32 v27, {vKg}, 4, v27
s_lshl_b32 s12, {sW}, 6
s_add_u32 s12, s12, {ACT5}
v_add_u32 v27, s12, v27
s_barrier
ds_read_b128 v[16:19], v27
s_waitcnt lgkmcnt(0)
""")
diag_mfma([(16 + u, 224 + 4 * u) for u in range(4)], 32)
a(f"""v_add_u32 v30, {RED5b-RED5}, v30
s_nop 6
ds_write_b128 v30, v[32:35]
s_waitcnt lgkmcnt(0)
s_barrier
s_cmp_lg_u32 {sW}, 0
s_cbranch_scc1 L_S9
""")
def final_reduce8(addr, dst):
    for w in range(8):
        a(f"ds_read_b128 v[{64+4*w}:{67+4*w}], {addr} offset:{w*1024}")
    for w in range(0, 8, 2):
        a(f"s_waitcnt lgkmcnt({6-w})")
        a(f"v_pk_add_f32 v[{64+4*w}:{65+4*w}], v[{64+4*w}:{65+4*w}], v[{68+4*w}:{69+4*w}]")
        a(f"v_pk_add_f32 v[{66+4*w}:{67+4*w}], v[{66+4*w}:{67+4*w}], v[{70+4*w}:{71+4*w}]")
    a("""v_pk_add_f32 v[64:65], v[64:65], v[72:73]
    v_pk_add_f32 v[66:67], v[66:67], v[74:75]
    v_pk_add_f32 v[80:81], v[80:81], v[88:89]
    v_pk_add_f32 v[82:83], v[82:83], v[90:91]""")
    a(f"v_pk_add_f32 v[{dst}:{dst+1}], v[64:65], v[80:81]\nv_pk_add_f32 v[{dst+2}:{dst+3}], v[66:67], v[82:83]")
final_reduce8("v30", 32)
a(f"""v_cvt_pk_bf16_f32 v32, v32, v33
v_cvt_pk_bf16_f32 v33, v34, v35
v_lshrrev_b32 v27, 1, {vKg}
v_lshlrev_b32 v27, 8, v27
v_lshl_add_u32 v27, {vN}, 4, v27
v_and_b32 v28, 1, {vKg}
v_lshl_add_u32 v27, v28, 3, v27
s_lshl_b32 s12, {sID}, 9
s_add_u32 s12, s12, {R5}
buffer_store_dwordx2 v[32:33], v27, {srd(WS)}, s12 offen sc1
""")
stamp(9)
a.label("L_S9")
a(f"s_cmp_ge_u32 {sID}, 10\ns_cbranch_scc1 L_fin")
mksrd(SC, pOUT, 2560)
a(f"""v_min_u32 v27, {NFFN-1}, {vLane}
v_lshlrev_b32 v27, 2, v27
s_mov_b32 s5, 0
""")
L = "L_S9flag"
a.label(L)
a(f"buffer_load_dword v28, v27, {srd(WS)}, 0 offen offset:{FL+192*4} sc1\ns_waitcnt vmcnt(0)")
timeout(L)
a(f"v_cmp_ne_u32 vcc, {sN}, v28\ns_cbranch_vccnz {L}")
a.label(L + "_x")
a(f"""
s_lshl_b32 s12, {sID}, 3
s_add_u32 s12, s12, {sW}
s_lshl_b32 s13, s12, 6
s_add_u32 s13, s13, {R7}
v_lshrrev_b32 v27, 2, {vLane}       ; pg
v_and_b32 v28, 3, {vLane}
v_mul_u32_u24 v29, 5120, v27
v_lshl_add_u32 v29, v28, 4, v29
v_add_u32 v30, {16*5120}, v29
v_cmp_gt_u32 vcc, {NFFN-16}, v27
v_mov_b32 v31, 0x7fffff00
v_cndmask_b32 v30, v31, v30, vcc
s_mov_b32 s5, 0
""")
L = "L_S9data"
a.label(L)
a(f"""buffer_load_dwordx4 v[32:35], v29, {srd(WS)}, s13 offen sc1
buffer_load_dwordx4 v[36:39], v30, {srd(WS)}, s13 offen sc1
s_waitcnt vmcnt(0)
v_max3_u32 v31, v32, v33, v34
v_max3_u32 v31, v31, v35, v36
v_max3_u32 v31, v31, v37, v38
v_max_u32 v31, v31, v39""")
timeout(L)
a(f"v_cmp_eq_u32 vcc, -1, v31\ns_cbranch_vccnz {L}")
a.label(L + "_x")
stamp(10)
for i in range(4):
    a(f"v_add_f32 v{32+i}, v{32+i}, v{36+i}")
for r in (4, 8):
    a("s_nop 0")
    for i in range(4):
        a(f"v_add_f32_dpp v{32+i}, v{32+i}, v{32+i} row_ror:{r} row_mask:0xf bank_mask:0xf")
for sw in ("v_permlane16_swap_b32", "v_permlane32_swap_b32"):
    for i in range(4):
        a(f"v_mov_b32 v{36+i}, v{32+i}")
    a("s_nop 0")
    for i in range(4):
        a(f"{sw} v{32+i}, v{36+i}")
    a("s_nop 0")
    for i in range(4):
        a(f"v_add_f32 v{32+i}, v{32+i}, v{36+i}")
a(f"""v_cvt_pk_bf16_f32 v32, v32, v33
v_cvt_pk_bf16_f32 v33, v34, v35
s_lshl_b32 s13, s12, 5
v_lshlrev_b32 v28, 3, v28
s_mov_b64 exec, 15
buffer_store_dwordx2 v[32:33], v28, {srd(SC)}, s13 offen
s_cmp_lg_u32 s12, 0
s_cbranch_scc1 L_noep
s_mov_b64 exec, 1
v_mov_b32 v32, {sN}
v_mov_b32 v33, {EPOCH}
buffer_store_dword v32, v33, {srd(WS)}, 0 offen
""")
a.label("L_noep")
a(f"""s_mov_b64 exec, -1
s_branch L_fin
""")

a.label("L_F")
ACT = 0; RED = 8192; MISC = 16384
a(f"s_sub_u32 s10, {sID}, 128\ns_cmp_ge_u32 s10, 64\ns_cbranch_scc1 L_S3")
mksrd(SA, pWQ, 640 * 8192)
a(f"""
s_lshr_b32 s11, s10, 1              ; h
s_and_b32 s12, s10, 1               ; kh
s_mul_i32 s13, s12, 320
s_mul_i32 s14, {sW}, 40
s_add_u32 s13, s13, s14             ; rbase
v_lshl_add_u32 v24, {vKg}, 2, s13
v_lshlrev_b32 v24, 13, v24
v_lshl_add_u32 v24, {vN}, 4, v24
v_lshl_add_u32 v25, {vKg}, 1, s13
v_lshlrev_b32 v25, 13, v25
v_lshl_add_u32 v25, {vN}, 4, v25
s_lshl_b32 s14, s11, 8
""")
a(f"""
v_mov_b32 v32, -1
v_mov_b32 v33, -1
v_mov_b32 v34, -1
v_mov_b32 v35, -1
s_cmp_lg_u32 {sW}, 7
s_cbranch_scc1 L_S2_noclr
s_cmp_ge_u32 s10, 60
s_cbranch_scc1 L_S2_noclr
; S6 (f<40): R6 + (g*2+b)*2560 + nb*512 ; S1b (40<=f<60): R8 + b*10240 + q*512
s_mul_i32 s15, s10, 205
s_lshr_b32 s15, s15, 10             ; g = f/5
s_mul_i32 s8, s15, 5
s_sub_u32 s8, s10, s8               ; nb
s_mul_i32 s15, s15, 5120
s_lshl_b32 s8, s8, 9
s_add_u32 s15, s15, s8
s_add_u32 s15, s15, {R6}
s_movk_i32 s9, 2560
s_sub_u32 s8, s10, 40
s_lshl_b32 s8, s8, 9
s_add_u32 s8, s8, {R8}
s_cmp_ge_u32 s10, 40
s_cselect_b32 s15, s8, s15
s_cselect_b32 s9, 10240, s9
v_lshrrev_b32 v26, 5, {vLane}
v_mul_lo_u32 v26, v26, s9
v_and_b32 v27, 31, {vLane}
v_lshl_add_u32 v26, v27, 4, v26
buffer_store_dwordx4 v[32:35], v26, {srd(WS)}, s15 offen sc1
""")
a.label("L_S2_noclr")
k = 0
for g in range(2):
    for u in range(4):
        a(f"s_add_u32 s15, s14, {(g*16+u)*8192}\nbuffer_load_dwordx4 v[{64+4*k}:{67+4*k}], v24, {srd(SA)}, s15 offen nt"); k += 1
for u in range(2):
    a(f"s_add_u32 s15, s14, {(32+u)*8192}\nbuffer_load_dwordx4 v[{64+4*k}:{67+4*k}], v25, {srd(SA)}, s15 offen nt"); k += 1
get_nonce()
def flag_store(lbl, cnt):
    a(f"""s_cmp_lg_u32 {sW}, 7
    s_cbranch_scc1 {lbl}
    s_waitcnt vmcnt({cnt})
    s_lshl_b32 s15, {sID}, 2
    v_mov_b32 v27, {sN}
    v_mov_b32 v28, s15
    s_mov_b64 exec, 1
    buffer_store_dword v27, v28, {srd(WS)}, 0 offen sc1
    s_mov_b64 exec, -1""")
    a.label(lbl)
flag_store("L_S2_nofl", 10)
a(f"""s_cmp_ge_u32 {sW}, 3
s_cbranch_scc1 L_S2_bar
v_min_u32 v26, 159, v0
v_lshlrev_b32 v27, 4, v26
s_mul_i32 s15, s12, 2560
s_add_u32 s15, s15, {R1}
s_mov_b32 s5, 0
""")
L = "L_H1poll"
a.label(L)
a("s_mov_b32 s8, s15")
for p in range(P1):
    a(f"buffer_load_dwordx4 v[{128+4*p}:{131+4*p}], v27, {srd(WS)}, s8 offen sc1")
    if p < P1 - 1: a("s_add_u32 s8, s8, 5120")
a("s_waitcnt vmcnt(0)\nv_min_u32 v28, v129, v131\nv_max_u32 v29, v129, v131")
for p in range(1, P1):
    a(f"v_min3_u32 v28, v28, v{129+4*p}, v{131+4*p}\nv_max3_u32 v29, v29, v{129+4*p}, v{131+4*p}")
timeout(L)
a(f"v_xor_b32 v28, {sN}, v28\nv_xor_b32 v29, {sN}, v29\nv_or_b32 v28, v28, v29\nv_cmp_ne_u32 vcc, 0, v28\ns_cbranch_vccnz {L}")
a.label(L + "_x")
stamp(1)
a("v_lshlrev_b32 v32, 16, v128\nv_lshlrev_b32 v33, 16, v130\nv_and_b32 v34, 0xffff0000, v128\nv_and_b32 v35, 0xffff0000, v130")
for p in range(1, P1):
    a(f"""v_lshlrev_b32 v36, 16, v{128+4*p}
    v_lshlrev_b32 v37, 16, v{130+4*p}
    v_and_b32 v38, 0xffff0000, v{128+4*p}
    v_and_b32 v39, 0xffff0000, v{130+4*p}
    v_pk_add_f32 v[32:33], v[32:33], v[36:37]
    v_pk_add_f32 v[34:35], v[34:35], v[38:39]""")
for i in range(4):
    a(f"v_cvt_pk_bf16_f32 v{32+i}, v{32+i}, v{32+i}")
a(f"""v_lshlrev_b32 v26, 3, v26
ds_write_b64 v26, v[32:33] offset:{ACT}
ds_write_b64 v26, v[34:35] offset:{ACT+1344}
s_waitcnt lgkmcnt(0)
""")
a.label("L_S2_bar")
a(f"""v_lshrrev_b32 v26, 3, {vN}
v_mul_u32_u24 v26, 1344, v26
s_mul_i32 s15, {sW}, 160
v_add_u32 v26, s15, v26
v_lshl_add_u32 v27, {vKg}, 4, v26
v_lshl_add_u32 v28, {vKg}, 3, v26
v_lshlrev_b32 v30, 4, v0
s_waitcnt vmcnt(0)
s_barrier
ds_read_b128 v[16:19], v27 offset:{ACT}
ds_read_b128 v[20:23], v27 offset:{ACT+64}
ds_read_b64 v[36:37], v28 offset:{ACT+128}
s_waitcnt lgkmcnt(0)
""")
diag_mfma([(16 + u, 64 + 4 * u) for u in range(8)] + [(36, 96), (37, 100)], 32)
a(f"""; reader: t<128: d=t
v_bfe_u32 v27, v0, 3, 4
v_lshlrev_b32 v27, 4, v27
v_bfe_u32 v28, v0, 2, 1
v_lshl_add_u32 v27, v28, 8, v27
v_and_b32 v28, 3, v0
v_lshl_add_u32 v27, v28, 2, v27
s_nop 1
ds_write_b128 v30, v[32:35] offset:{RED}
s_waitcnt lgkmcnt(0)
s_barrier
s_cmp_ge_u32 {sW}, 2
s_cbranch_scc1 L_S2_done
""")
for w in range(8):
    a(f"ds_read2st64_b32 v[{32+2*w}:{33+2*w}], v27 offset0:{RED//256+w*4} offset1:{RED//256+w*4+2}")
a(f"""s_lshl_b32 s15, s10, 10
s_add_u32 s15, s15, {R2}
v_lshlrev_b32 v28, 3, v0
s_waitcnt lgkmcnt(0)
v_pk_add_f32 v[32:33], v[32:33], v[34:35]
v_pk_add_f32 v[36:37], v[36:37], v[38:39]
v_pk_add_f32 v[40:41], v[40:41], v[42:43]
v_pk_add_f32 v[44:45], v[44:45], v[46:47]
v_pk_add_f32 v[32:33], v[32:33], v[36:37]
v_pk_add_f32 v[40:41], v[40:41], v[44:45]
v_pk_add_f32 v[32:33], v[32:33], v[40:41]
v_cvt_pk_bf16_f32 v32, v32, v33
v_mov_b32 v33, {sN}
buffer_store_dwordx2 v[32:33], v28, {srd(WS)}, s15 offen sc1
""")
a.label("L_S2_done")
stamp(2)
a("s_cmp_ge_u32 s10, 60\ns_cbranch_scc1 L_fin\ns_cmp_ge_u32 s10, 40\ns_cbranch_scc1 L_S1b")
mksrd(SA, pWO, 4096 * 1280)
a(f"""
s_mul_i32 s11, s10, 205
s_lshr_b32 s11, s11, 10             ; g
s_mul_i32 s12, s11, 5
s_sub_u32 s12, s10, s12             ; nb
s_lshl_b32 s13, s11, 9
s_lshl_b32 s14, {sW}, 6
s_add_u32 s13, s13, s14
v_lshl_add_u32 v24, {vKg}, 2, s13
v_mul_u32_u24 v24, 1280, v24
v_lshl_add_u32 v24, {vN}, 4, v24
s_lshl_b32 s14, s12, 8
""")
for g in range(4):
    for u in range(4):
        k = g * 4 + u
        a(f"buffer_load_dwordx4 v[{128+4*k}:{131+4*k}], v24, {srd(SA)}, s14 offen offset:{u*1280} nt")
    if g < 3: a("s_add_u32 s14, s14, 20480")
a(f"s_cmp_ge_u32 {sW}, 2\ns_cbranch_scc1 L_S6_bar\ns_lshl_b32 s14, s11, 6\nv_lshlrev_b32 v26, 2, {vN}")
check_flags_vec("L_S6flag", "v26", "s14", FL, "v27")
a(f"""v_lshrrev_b32 v26, 5, v0
v_lshlrev_b32 v27, 11, v26
v_and_b32 v28, 31, v0
v_lshl_add_u32 v27, v28, 4, v27
s_lshl_b32 s14, s11, 13
s_add_u32 s14, s14, {R5}
v_bfe_u32 v28, v0, 4, 1
v_mul_u32_u24 v28, 2112, v28
v_lshl_add_u32 v28, v26, 9, v28
v_lshl_add_u32 v28, {vN}, 5, v28
s_mov_b32 s5, 0
""")
L = "L_H5poll"
a.label(L)
for c in range(4):
    a(f"buffer_load_dwordx4 v[{64+4*c}:{67+4*c}], v27, {srd(WS)}, s14 offen offset:{c*512} sc1")
a("s_waitcnt vmcnt(0)")
a("v_max3_u32 v29, v64, v65, v66")
for i in range(67, 79, 2):
    a(f"v_max3_u32 v29, v29, v{i}, v{i+1}")
a("v_max_u32 v29, v29, v79")
timeout(L)
a(f"v_cmp_eq_u32 vcc, -1, v29\ns_cbranch_vccnz {L}")
a.label(L + "_x")
stamp(3)
for i in range(4):
    a(f"v_lshlrev_b32 v{32+2*i}, 16, v{64+i}\nv_and_b32 v{33+2*i}, 0xffff0000, v{64+i}")
for c in range(1, 4):
    for i in range(4):
        a(f"v_lshlrev_b32 v40, 16, v{64+4*c+i}\nv_and_b32 v41, 0xffff0000, v{64+4*c+i}\nv_pk_add_f32 v[{32+2*i}:{33+2*i}], v[{32+2*i}:{33+2*i}], v[40:41]")
for i in range(8):
    a(f"v_cvt_pk_bf16_f32 v{32+i}, v{32+i}, v{32+i}")
a(f"ds_write_b128 v28, v[32:35] offset:{ACT}\nds_write_b128 v28, v[36:39] offset:{ACT+16}\ns_waitcnt lgkmcnt(0)")
a.label("L_S6_bar")
a(f"""v_lshrrev_b32 v26, 3, {vN}
v_mul_u32_u24 v26, 2112, v26
s_lshl_b32 s15, {sW}, 8
v_add_u32 v26, s15, v26
v_lshl_add_u32 v27, {vKg}, 4, v26
v_lshlrev_b32 v30, 4, v0
v_add_u32 v30, {RED}, v30
s_waitcnt vmcnt(0)
s_barrier
""")
for g in range(4):
    a(f"ds_read_b128 v[{40+4*g}:{43+4*g}], v27 offset:{ACT+64*g}")
a("s_waitcnt lgkmcnt(0)")
diag_mfma([(40 + k, 128 + 4 * k) for k in range(16)], 32)
a(f"""s_nop 7
ds_write_b128 v30, v[32:35]
s_waitcnt lgkmcnt(0)
s_barrier
s_cmp_lg_u32 {sW}, 0
s_cbranch_scc1 L_fin
""")
final_reduce8("v30", 32)
a(f"""v_lshrrev_b32 v27, 1, {vKg}
v_mul_u32_u24 v27, 2560, v27
v_lshl_add_u32 v27, {vN}, 5, v27
v_and_b32 v28, 1, {vKg}
v_lshl_add_u32 v27, v28, 4, v27
s_mul_i32 s14, s11, 5120
s_lshl_b32 s15, s12, 9
s_add_u32 s14, s14, s15
s_add_u32 s14, s14, {R6}
buffer_store_dwordx4 v[32:35], v27, {srd(WS)}, s14 offen sc1
""")
stamp(4)
a("s_branch L_fin")
a.label("L_S1b")
mksrd(SA, pWM, 640 * 7680)
mksrd(SB, pC, 2560)
a(f"""
s_sub_u32 s11, s10, 40              ; q
s_mul_i32 s13, {sW}, 80
v_lshl_add_u32 v24, {vKg}, 2, s13   ; row
v_lshrrev_b32 v25, 3, {vN}
v_mul_u32_u24 v26, 1280, v25
v_lshl_add_u32 v26, v24, 1, v26
v_mul_u32_u24 v27, 7680, v24
v_lshl_add_u32 v27, {vN}, 4, v27
s_lshl_b32 s14, s11, 8
s_add_u32 s14, s14, 2560
""")
for g in range(5):
    a(f"buffer_load_dwordx2 v[{40+2*g}:{41+2*g}], v26, {srd(SB)}, 0 offen offset:{g*32}")
for g in range(5):
    for u in range(4):
        k = g * 4 + u
        a(f"s_add_u32 s15, s14, {(g*16+u)*7680}\nbuffer_load_dwordx4 v[{128+4*k}:{131+4*k}], v27, {srd(SA)}, s15 offen nt")
a("s_waitcnt vmcnt(20)")
for g in range(5):
    silu_c4(40 + 2 * g, 64 + 4 * g, "v24")
a(f"v_lshlrev_b32 v30, 4, v0\nv_add_u32 v30, {RED}, v30\ns_waitcnt vmcnt(0)")
diag_mfma([(64 + k, 128 + 4 * k) for k in range(20)], 32)
a(f"""s_nop 7
ds_write_b128 v30, v[32:35]
s_waitcnt lgkmcnt(0)
s_barrier
s_cmp_lg_u32 {sW}, 0
s_cbranch_scc1 L_fin
""")
final_reduce8("v30", 32)
a(f"""v_lshrrev_b32 v27, 1, {vKg}
v_mul_u32_u24 v27, 10240, v27
v_lshl_add_u32 v27, {vN}, 5, v27
v_and_b32 v28, 1, {vKg}
v_lshl_add_u32 v27, v28, 4, v27
s_lshl_b32 s14, s11, 9
s_add_u32 s14, s14, {R8}
buffer_store_dwordx4 v[32:35], v27, {srd(WS)}, s14 offen sc1
""")
stamp(4)
a("s_branch L_fin")
a.label("L_S3")
mksrd(SA, pWUK, 512 * 8192)
a(f"""
s_sub_u32 s10, s10, 64              ; f3
s_lshr_b32 s11, s10, 1              ; h
s_and_b32 s12, s10, 1               ; ch
v_mov_b32 v32, -1
v_mov_b32 v33, -1
v_mov_b32 v34, -1
v_mov_b32 v35, -1
s_cmp_lg_u32 {sW}, 7
s_cbranch_scc1 L_S3_noclr
v_lshrrev_b32 v26, 5, {vLane}
v_lshlrev_b32 v26, 15, v26
v_and_b32 v27, 31, {vLane}
v_lshl_add_u32 v26, v27, 4, v26
s_lshl_b32 s13, s10, 9
s_add_u32 s13, s13, {R3}
buffer_store_dwordx4 v[32:35], v26, {srd(WS)}, s13 offen sc1
s_cmp_ge_u32 s10, {NFFN}
s_cbranch_scc1 L_S3_noclr
s_mul_i32 s13, s10, 5120
s_add_u32 s13, s13, {R7}
v_lshlrev_b32 v26, 4, {vLane}
buffer_store_dwordx4 v[32:35], v26, {srd(WS)}, s13 offen sc1
buffer_store_dwordx4 v[32:35], v26, {srd(WS)}, s13 offen offset:1024 sc1
buffer_store_dwordx4 v[32:35], v26, {srd(WS)}, s13 offen offset:2048 sc1
buffer_store_dwordx4 v[32:35], v26, {srd(WS)}, s13 offen offset:3072 sc1
s_add_u32 s13, s13, 4096
buffer_store_dwordx4 v[32:35], v26, {srd(WS)}, s13 offen sc1
""")
a.label("L_S3_noclr")
a(f"""
s_lshl_b32 s13, s12, 8
s_lshl_b32 s14, {sW}, 5
s_add_u32 s13, s13, s14             ; c base
v_lshrrev_b32 v24, 2, {vN}
v_lshlrev_b32 v24, 3, v24
v_and_b32 v25, 3, {vN}
v_add3_u32 v24, v24, v25, s13
v_lshlrev_b32 v24, 13, v24
v_lshl_add_u32 v24, {vKg}, 4, v24
s_lshl_b32 s14, s11, 8
s_add_u32 s15, s14, 32768
""")
for t in range(2):
    for s in range(4):
        k = t * 4 + s
        a(f"buffer_load_dwordx4 v[{64+4*k}:{67+4*k}], v24, {srd(SA)}, s{14+t} offen offset:{s*64} nt")
get_nonce()
flag_store("L_S3_nofl", 8)
a(f"""s_cmp_lg_u32 {sW}, 0
s_cbranch_scc1 L_S3_bar
v_lshlrev_b32 v26, 4, {vLane}
s_lshl_b32 s14, s11, 11
s_add_u32 s14, s14, {R2}
s_mov_b32 s5, 0
""")
L = "L_H2poll"
a.label(L)
a(f"""buffer_load_dwordx4 v[32:35], v26, {srd(WS)}, s14 offen sc1
buffer_load_dwordx4 v[36:39], v26, {srd(WS)}, s14 offen offset:1024 sc1
s_waitcnt vmcnt(0)
v_min3_u32 v28, v33, v35, v37
v_max3_u32 v29, v33, v35, v37
v_min_u32 v28, v28, v39
v_max_u32 v29, v29, v39""")
timeout(L)
a(f"v_xor_b32 v28, {sN}, v28\nv_xor_b32 v29, {sN}, v29\nv_or_b32 v28, v28, v29\nv_cmp_ne_u32 vcc, 0, v28\ns_cbranch_vccnz {L}")
a.label(L + "_x")
stamp(1)
a(f"""v_lshlrev_b32 v40, 16, v32
v_lshlrev_b32 v41, 16, v34
v_and_b32 v42, 0xffff0000, v32
v_and_b32 v43, 0xffff0000, v34
v_lshlrev_b32 v44, 16, v36
v_lshlrev_b32 v45, 16, v38
v_and_b32 v46, 0xffff0000, v36
v_and_b32 v47, 0xffff0000, v38
v_pk_add_f32 v[40:41], v[40:41], v[44:45]
v_pk_add_f32 v[42:43], v[42:43], v[46:47]
v_cvt_pk_bf16_f32 v40, v40, v41
v_cvt_pk_bf16_f32 v42, v42, v43
v_lshlrev_b32 v26, 2, {vLane}
ds_write_b32 v26, v40 offset:{ACT}
ds_write_b32 v26, v42 offset:{ACT+320}
s_waitcnt lgkmcnt(0)
""")
a.label("L_S3_bar")
a(f"""v_and_b32 v26, 1, {vN}
v_mul_u32_u24 v27, 320, v26
v_lshl_add_u32 v27, {vKg}, 4, v27
v_lshlrev_b32 v28, 15, v26
v_lshl_add_u32 v28, {vKg}, 4, v28
s_lshl_b32 s14, s10, 9
s_lshl_b32 s15, {sW}, 6
s_add_u32 s14, s14, s15
s_add_u32 s14, s14, {R3}
s_waitcnt vmcnt(0)
s_barrier
""")
for s in range(4):
    a(f"ds_read_b128 v[{40+4*s}:{43+4*s}], v27 offset:{ACT+64*s}")
for s in range(4):
    a(f"s_waitcnt lgkmcnt({3-s})")
    for t in range(2):
        k = t * 4 + s
        c = "0" if s == 0 else f"v[{32+4*t}:{35+4*t}]"
        a(f"v_mfma_f32_16x16x32_bf16 v[{32+4*t}:{35+4*t}], v[{64+4*k}:{67+4*k}], v[{40+4*s}:{43+4*s}], {c}")
SCL = 128 ** -0.5 * LOG2E
a(f"s_mov_b32 s15, 0x{f2u(SCL):08x}\ns_nop 6")
for i in range(8):
    a(f"v_mul_f32 v{32+i}, s15, v{32+i}")
for i in range(4):
    a(f"v_cvt_pk_bf16_f32 v{32+i}, v{32+2*i}, v{33+2*i}")
a(f"""s_mov_b32 s8, 0x00030003
s_mov_b32 s9, 0x00030003
s_mov_b64 exec, s[8:9]
buffer_store_dwordx4 v[32:35], v28, {srd(WS)}, s14 offen sc1
s_mov_b64 exec, -1
""")
stamp(2)
a(f"s_cmp_ge_u32 s10, {NFFN}\ns_cbranch_scc1 L_fin")
mksrd(SA, pWG, 640 * 3456)
mksrd(SB, pWU, 640 * 3456)
mksrd(SC, pWD, 1728 * 1280)
mksrd(SD, pX, 2560)
a(f"""
s_mul_i32 s13, {sW}, 80
v_lshl_add_u32 v24, {vKg}, 2, s13
v_mul_u32_u24 v24, 3456, v24
v_and_b32 v25, 7, {vN}
v_lshl_add_u32 v24, v25, 4, v24
s_lshl_b32 s14, s10, 7
s_mov_b32 s8, 0x00ff00ff
s_mov_b32 s9, 0x00ff00ff
s_mov_b64 exec, s[8:9]
""")
for half, sr in ((0, SA), (1, SB)):
    if half: a("s_not_b64 exec, exec")
    for g in range(5):
        for u in range(4):
            k = g * 4 + u
            a(f"s_add_u32 s15, s14, {(g*16+u)*3456}\nbuffer_load_dwordx4 v[{64+4*k}:{67+4*k}], v24, {srd(sr)}, s15 offen nt")
a("s_mov_b64 exec, -1")
a(f"""s_cmp_ge_u32 {sW}, 5
s_cbranch_scc1 L_FFN_nod
s_lshl_b32 s13, s10, 6
v_lshl_add_u32 v24, {vKg}, 2, s13
v_mul_u32_u24 v24, 1280, v24
v_lshl_add_u32 v24, {vN}, 4, v24
s_lshl_b32 s14, {sW}, 8
""")
for g in range(4):
    for u in range(4):
        k = g * 4 + u
        a(f"buffer_load_dwordx4 v[{144+4*k}:{147+4*k}], v24, {srd(SC)}, s14 offen offset:{u*1280} nt")
    if g < 3: a("s_add_u32 s14, s14, 20480")
a(f"""v_cmp_le_u32 vcc, 160, v0
v_subrev_u32 v25, 160, v0
s_nop 0
v_cndmask_b32 v25, v0, v25, vcc     ; t%160
v_cndmask_b32 v26, 0, 1, vcc        ; b   (VOP3)
v_lshlrev_b32 v27, 3, v0            ; x offset = t*8
buffer_load_dwordx2 v[48:49], v27, {srd(SD)}, 0 offen
v_min_u32 v28, 59, {vLane}
v_lshlrev_b32 v28, 2, v28
s_mov_b32 s5, 0
""")
L = "L_FFNflag"
a.label(L)
a(f"buffer_load_dword v29, v28, {srd(WS)}, 0 offen offset:{FL+128*4} sc1\ns_waitcnt vmcnt(0)")
timeout(L)
a(f"v_cmp_ne_u32 vcc, {sN}, v29\ns_cbranch_vccnz {L}")
a.label(L + "_x")
a(f"""v_mul_u32_u24 v28, 10240, v26
v_lshl_add_u32 v28, v25, 4, v28
v_lshrrev_b32 v29, 1, {vKg}
v_mul_u32_u24 v30, 10240, v29
v_lshl_add_u32 v30, {vN}, 5, v30
v_and_b32 v31, 1, {vKg}
v_lshl_add_u32 v30, v31, 4, v30
s_lshl_b32 s14, {sW}, 9
s_add_u32 s14, s14, {R8+7680}
s_mov_b32 s13, {R8}
s_mov_b32 s12, {R8+5120}
s_mov_b32 s5, 0
""")
L = "L_R8poll"
a.label(L)
a(f"""buffer_load_dwordx4 v[208:211], v28, {srd(WS)}, s13 offen sc1
buffer_load_dwordx4 v[212:215], v28, {srd(WS)}, s13 offen offset:2560 sc1
buffer_load_dwordx4 v[216:219], v28, {srd(WS)}, s12 offen sc1
buffer_load_dwordx4 v[220:223], v30, {srd(WS)}, s14 offen sc1
s_waitcnt vmcnt(0)
v_max3_u32 v31, v208, v209, v210""")
for i in range(211, 223, 2):
    a(f"v_max3_u32 v31, v31, v{i}, v{i+1}")
a("v_max_u32 v31, v31, v223")
timeout(L)
a(f"v_cmp_eq_u32 vcc, -1, v31\ns_cbranch_vccnz {L}")
a.label(L + "_x")
a(f"""v_lshlrev_b32 v50, 16, v48
v_and_b32 v51, 0xffff0000, v48
v_lshlrev_b32 v52, 16, v49
v_and_b32 v53, 0xffff0000, v49
v_add_f32 v216, 1.0, v216
v_add_f32 v217, 1.0, v217
v_add_f32 v218, 1.0, v218
v_add_f32 v219, 1.0, v219
v_lshlrev_b32 v27, 4, v0            ; R6 offset t*16
s_mov_b32 s5, 0
""")
stamp(3)
L = "L_H6poll"
a.label(L)
a(f"s_mov_b32 s13, {R6}")
HB = [224, 228, 232, 236, 240, 244, 32, 36]
for g in range(8):
    a(f"buffer_load_dwordx4 v[{HB[g]}:{HB[g]+3}], v27, {srd(WS)}, s13 offen sc1")
    if g < 7: a("s_add_u32 s13, s13, 5120")
a("s_waitcnt vmcnt(0)\nv_mov_b32 v31, 0")
for g in range(8):
    a(f"v_max3_u32 v31, v31, v{HB[g]}, v{HB[g]+1}\nv_max3_u32 v31, v31, v{HB[g]+2}, v{HB[g]+3}")
timeout(L)
a(f"v_cmp_eq_u32 vcc, -1, v31\ns_cbranch_vccnz {L}")
a.label(L + "_x")
stamp(4)
for g in (0, 2, 4, 6):
    a(f"v_pk_add_f32 v[{HB[g]}:{HB[g]+1}], v[{HB[g]}:{HB[g]+1}], v[{HB[g+1]}:{HB[g+1]+1}]\nv_pk_add_f32 v[{HB[g]+2}:{HB[g]+3}], v[{HB[g]+2}:{HB[g]+3}], v[{HB[g+1]+2}:{HB[g+1]+3}]")
for g0, g1 in ((0, 2), (4, 6), (0, 4)):
    a(f"v_pk_add_f32 v[{HB[g0]}:{HB[g0]+1}], v[{HB[g0]}:{HB[g0]+1}], v[{HB[g1]}:{HB[g1]+1}]\nv_pk_add_f32 v[{HB[g0]+2}:{HB[g0]+3}], v[{HB[g0]+2}:{HB[g0]+3}], v[{HB[g1]+2}:{HB[g1]+3}]")
for i in range(4):
    a(f"v_fmac_f32 v{50+i}, v{208+i}, v{224+i}")
X1L = MISC; STL = MISC + 5120
a(f"""ds_write_b128 v27, v[50:53] offset:{X1L}
v_add_f32 v32, v50, v51
v_add_f32 v33, v52, v53
v_add_f32 v32, v32, v33
v_mul_f32 v33, v50, v50
v_fmac_f32 v33, v51, v51
v_fmac_f32 v33, v52, v52
v_fmac_f32 v33, v53, v53
""")
for v in ("v32", "v33"):
    pass
for r in (8, 4, 2, 1):
    a(f"s_nop 0\nv_add_f32_dpp v32, v32, v32 row_ror:{r} row_mask:0xf bank_mask:0xf\nv_add_f32_dpp v33, v33, v33 row_ror:{r} row_mask:0xf bank_mask:0xf")
a(f"""v_mov_b32 v34, v32
v_mov_b32 v35, v33
s_nop 0
v_permlane16_swap_b32 v32, v34
v_permlane16_swap_b32 v33, v35
s_nop 0
v_add_f32 v32, v32, v34
v_add_f32 v33, v33, v35
v_lshrrev_b32 v34, 5, v0
v_lshlrev_b32 v34, 3, v34
ds_write_b64 v34, v[32:33] offset:{STL}
s_waitcnt lgkmcnt(0)
""")
a.label("L_FFN_nod")
a(f"""s_barrier
s_cmp_ge_u32 {sW}, 5
s_cbranch_scc1 L_FFN_bar2
v_mul_u32_u24 v34, 40, v26
ds_read_b64 v[32:33], v34 offset:{STL}
ds_read_b64 v[36:37], v34 offset:{STL+8}
ds_read_b64 v[38:39], v34 offset:{STL+16}
ds_read_b64 v[40:41], v34 offset:{STL+24}
ds_read_b64 v[42:43], v34 offset:{STL+32}
v_mul_u32_u24 v35, 2624, v26
v_lshl_add_u32 v35, v25, 4, v35
s_waitcnt lgkmcnt(0)
v_pk_add_f32 v[32:33], v[32:33], v[36:37]
v_pk_add_f32 v[38:39], v[38:39], v[40:41]
v_pk_add_f32 v[32:33], v[32:33], v[42:43]
v_pk_add_f32 v[32:33], v[32:33], v[38:39]
v_mul_f32 v32, 0x{f2u(1.0/640):08x}, v32      ; mean
v_mul_f32 v33, 0x{f2u(1.0/640):08x}, v33      ; E[x^2]
v_fma_f32 v33, -v32, v32, v33
v_max_f32 v33, 0, v33
v_add_f32 v33, 0x{f2u(1e-5):08x}, v33
v_rsq_f32 v33, v33
""")
for i in range(4):
    a(f"v_sub_f32 v{36+i}, v{50+i}, v32\nv_mul_f32 v{36+i}, v{36+i}, v33\nv_fma_f32 v{36+i}, v{36+i}, v{216+i}, v{212+i}\nv_cvt_pk_bf16_f32 v{36+i}, v{36+i}, v{36+i}")
a(f"ds_write_b128 v35, v[36:39] offset:{ACT}\ns_waitcnt lgkmcnt(0)")
a.label("L_FFN_bar2")
a(f"""v_lshrrev_b32 v27, 3, {vN}
v_mul_u32_u24 v28, 2624, v27
s_mul_i32 s15, {sW}, 320
v_add_u32 v28, s15, v28
v_lshl_add_u32 v28, {vKg}, 4, v28
v_lshlrev_b32 v30, 4, v0
s_waitcnt vmcnt(0)
s_barrier
""")
for g in range(5):
    a(f"ds_read_b128 v[{224+4*g}:{227+4*g}], v28 offset:{ACT+64*g}")
a("s_waitcnt lgkmcnt(0)")
diag_mfma([(224 + k, 64 + 4 * k) for k in range(20)], 32)
ACT2 = MISC + 6144
a(f"""; reader t<128: b=t>>6, f=t&63 : n'=f>>3 (gate), +8 (up)
v_bfe_u32 v28, v0, 3, 3
v_lshlrev_b32 v28, 4, v28
v_bfe_u32 v29, v0, 2, 1
v_lshl_add_u32 v28, v29, 8, v28
v_and_b32 v29, 3, v0
v_lshl_add_u32 v28, v29, 2, v28
v_bfe_u32 v29, v0, 6, 1
v_lshl_add_u32 v28, v29, 9, v28
ds_write_b128 v30, v[32:35] offset:{RED}
s_waitcnt lgkmcnt(0)
s_barrier
s_cmp_ge_u32 {sW}, 2
s_cbranch_scc1 L_FFN_bar4
""")
a(f"v_add_u32 v28, {RED}, v28")
for w in range(8):
    a(f"ds_read_b32 v{32+2*w}, v28 offset:{w*1024}\nds_read_b32 v{33+2*w}, v28 offset:{w*1024+128}")
a(f"""v_mul_u32_u24 v29, 320, v29
v_lshl_add_u32 v29, {vLane}, 2, v29
s_waitcnt lgkmcnt(0)
v_pk_add_f32 v[32:33], v[32:33], v[34:35]
v_pk_add_f32 v[36:37], v[36:37], v[38:39]
v_pk_add_f32 v[40:41], v[40:41], v[42:43]
v_pk_add_f32 v[44:45], v[44:45], v[46:47]
v_pk_add_f32 v[32:33], v[32:33], v[36:37]
v_pk_add_f32 v[40:41], v[40:41], v[44:45]
v_pk_add_f32 v[32:33], v[32:33], v[40:41]
""")
silu("v32", "v34")
a(f"""v_mul_f32 v32, v32, v33
v_cvt_pk_bf16_f32 v32, v32, v32
ds_write_b32 v29, v32 offset:{ACT2}
s_waitcnt lgkmcnt(0)
""")
a.label("L_FFN_bar4")
a(f"""s_barrier
s_cmp_ge_u32 {sW}, 5
s_cbranch_scc1 L_fin
v_mul_u32_u24 v28, 320, v27
v_lshl_add_u32 v28, {vKg}, 4, v28
""")
for g in range(4):
    a(f"ds_read_b128 v[{224+4*g}:{227+4*g}], v28 offset:{ACT2+64*g}")
a(f"""v_lshrrev_b32 v29, 1, {vKg}
v_mul_u32_u24 v29, 2560, v29
v_lshl_add_u32 v29, {vN}, 5, v29
v_and_b32 v31, 1, {vKg}
v_lshl_add_u32 v29, v31, 4, v29
s_lshl_b32 s14, {sW}, 9
v_add_u32 v29, s14, v29
ds_read_b128 v[36:39], v29 offset:{X1L}
s_waitcnt lgkmcnt(0)
""")
diag_mfma([(224 + k, 144 + 4 * k) for k in range(16)], 32)
a(f"""s_cmp_eq_u32 s10, 0
s_cselect_b32 s15, 1.0, 0
s_mul_i32 s14, s10, 5120
s_add_u32 s14, s14, {R7}
v_mul_f32 v36, s15, v36
v_mul_f32 v37, s15, v37
v_mul_f32 v38, s15, v38
v_mul_f32 v39, s15, v39
s_nop 1
v_fmac_f32 v36, v32, v220
v_fmac_f32 v37, v33, v221
v_fmac_f32 v38, v34, v222
v_fmac_f32 v39, v35, v223
buffer_store_dwordx4 v[36:39], v29, {srd(WS)}, s14 offen sc1
""")
stamp(5)

a.label("L_fin")
if STAMPS:
    stamp(15)
    a(f"""s_lshl_b32 s12, {sID}, 3
    s_add_u32 s12, s12, {sW}
    s_lshl_b32 s12, s12, 6
    s_add_u32 s12, s12, {STMP}
    v_lshlrev_b32 v24, 2, {vLane}
    s_mov_b64 exec, 0xffff
    buffer_store_dword {vST}, v24, {srd(WS)}, s12 offen""")
a.label("L_end")
a("s_endpgm")
a.label("L_code_end")

header = open("adaLN_cond__compressed_kv_cla__swiglu_ffn__decode.s.ref").read().split("; Override launch")[0]
open(OUT, "w").write(wrap(a.text(), 256, 512, 163840, header=header))
```

```python
import sys, math
from asmgen import Asm, wrap

STAMPS = "--stamps" in sys.argv
NOCLEAR = "--noclear" in sys.argv
NODMA = "--nodma" in sys.argv
ABL = [x for x in sys.argv if x.startswith("--abl")]
ABL = ABL[0][5:] if ABL else ""
OUT = [a for a in sys.argv[1:] if not a.startswith("--")]
OUT = OUT[0] if OUT else "k.s"

FL   = 0x0000
FL2  = 0x60000+0x1c000
R1   = 0x1000
R2   = 0x10000
R3   = 0x20000
R4S  = 0x30000
R5   = 0x38000
R6   = 0x48000
R8   = 0x52000
R7   = 0x58000
SMALL0, SMALL1 = 0x20000, 0x7A000
R4   = 0x100000
R4ST = 32768 + 256
STMP = 0x800000
WS_SIZE = 268435456
P1 = 10
NFFN = 27
LOG2E = 1.4426950408889634
import struct
def f2u(x): return struct.unpack("<I", struct.pack("<f", x))[0]

a = Asm()
sID, sW, sN = "s2", "s3", "s4"
pX, pCKV, pWQ, pWUK, pWUV, pWO, pWG, pWU, pWD, pC, pWM, pOUT, pDBG, pWS = 16, 18, 20, 22, 24, 26, 30, 32, 34, 36, 38, 40, 42, 44
WS, SA, SB, SC, SD = 48, 52, 56, 60, 64
def srd(n): return "s[%d:%d]" % (n, n + 3)
vLane, vN, vKg = "v1", "v2", "v3"
MK = [4, 5, 6, 7]
ASET = [8, 12]
vST = "v255"

def mksrd(n, p, size):
    a(f"s_mov_b32 s{n}, s{p}\ns_mov_b32 s{n+1}, s{p+1}\ns_mov_b32 s{n+2}, {size}\ns_mov_b32 s{n+3}, 0x00020000")

def stamp(k):
    if STAMPS:
        a(f"s_memrealtime s[90:91]\ns_waitcnt lgkmcnt(0)\nv_writelane_b32 {vST}, s90, {k}")

EPOCH = 0x800
def get_nonce():
    a(f"""s_waitcnt lgkmcnt(0)
    s_mul_i32 {sN}, s46, 1664525
    s_add_u32 {sN}, {sN}, 1013904223""")

def check_flags_vec(name, vaddr, soff, imm, vtmp, sleep=2):
    gather(name, [f"buffer_load_dword {vtmp}, {vaddr}, {srd(WS)}, {soff} offen offset:{imm} sc1"], [int(vtmp[1:])], vtmp, mode="tag", sleep=sleep)

def allreduce(op, v, t):
    for r in (8, 4, 2, 1):
        a(f"s_nop 1\n{op}_dpp {v}, {v}, {v} row_ror:{r} row_mask:0xf bank_mask:0xf")
    for sw in ("v_permlane16_swap_b32", "v_permlane32_swap_b32"):
        a(f"v_mov_b32 {t}, {v}\ns_nop 1\n{sw} {v}, {t}\ns_nop 1\n{op} {v}, {v}, {t}")

def diag_mfma(items, acc, first=True):
    def ands(k):
        s = ASET[k % 2]
        for t in range(4):
            a(f"v_and_b32 v{s+t}, v{items[k][0]}, v{MK[t]}")
    ands(0)
    for k in range(len(items)):
        if k + 1 < len(items):
            ands(k + 1)
        else:
            a("s_nop 1")
        s = ASET[k % 2]; wv = items[k][1]
        c = "0" if (first and k == 0) else f"v[{acc}:{acc+3}]"
        a(f"v_mfma_f32_16x16x32_bf16 v[{acc}:{acc+3}], v[{s}:{s+3}], v[{wv}:{wv+3}], {c}")

def silu(v, t):
    a(f"""v_mul_f32 {t}, 0x{f2u(-LOG2E):08x}, {v}
    v_exp_f32 {t}, {t}
    s_nop 0
    v_add_f32 {t}, 1.0, {t}
    v_rcp_f32 {t}, {t}
    s_nop 0
    v_mul_f32 {v}, {v}, {t}""")

def silu_c4(src, dst, t):
    a(f"""v_lshlrev_b32 v{dst}, 16, v{src}
    v_and_b32 v{dst+1}, 0xffff0000, v{src}
    v_lshlrev_b32 v{dst+2}, 16, v{src+1}
    v_and_b32 v{dst+3}, 0xffff0000, v{src+1}""")
    for i in range(4):
        silu(f"v{dst+i}", t)
    for i in range(4):
        a(f"v_cvt_pk_bf16_f32 v{dst+i}, v{dst+i}, v{dst+i}")

def timeout(L):
    a(f"s_add_u32 s5, s5, 1\ns_cmp_gt_u32 s5, 200000\ns_cbranch_scc1 {L}_x")

def gather(name, loads, regs, vt, mode="sent", vt2=None, first_issued=False, first_wait=0, sleep=1):
    a("s_mov_b32 s5, 0")
    if first_issued:
        a(f"s_waitcnt vmcnt({first_wait})\ns_branch {name}_c")
    else:
        a(f"s_branch {name}_l")
    a.label(name)
    if sleep: a(f"s_sleep {sleep}")
    a.label(name + "_l")
    for l in loads: a(l)
    a("s_waitcnt vmcnt(0)")
    a.label(name + "_c")
    def tree(op3, op2, dst):
        r = list(regs)
        if len(r) == 1:
            a(f"v_mov_b32 {dst}, v{r[0]}"); return
        if len(r) == 2:
            a(f"{op2} {dst}, v{r[0]}, v{r[1]}"); return
        a(f"{op3} {dst}, v{r[0]}, v{r[1]}, v{r[2]}"); r = r[3:]
        while len(r) >= 2:
            a(f"{op3} {dst}, {dst}, v{r[0]}, v{r[1]}"); r = r[2:]
        if r: a(f"{op2} {dst}, {dst}, v{r[0]}")
    if mode == "sent":
        tree("v_max3_u32", "v_max_u32", vt)
        timeout(name)
        a(f"v_cmp_eq_u32 vcc, -1, {vt}")
    else:
        if len(regs) == 1:
            timeout(name)
            a(f"v_cmp_ne_u32 vcc, {sN}, v{regs[0]}")
        else:
            tree("v_max3_u32", "v_max_u32", vt); tree("v_min3_u32", "v_min_u32", vt2)
            timeout(name)
            a(f"v_xor_b32 {vt}, {sN}, {vt}\nv_xor_b32 {vt2}, {sN}, {vt2}\nv_or_b32 {vt}, {vt}, {vt2}\nv_cmp_ne_u32 vcc, 0, {vt}")
    a(f"s_mov_b64 exec, vcc\ns_cbranch_execnz {name}")
    a.label(name + "_x")
    a("s_mov_b64 exec, -1")

def late_trigger(name, sib):
    a(f"""s_barrier
    s_cmp_lg_u32 {sW}, 0
    s_cbranch_scc1 {name}_x
    s_sub_u32 s14, {sID}, 128
    s_lshl_b32 s15, s14, 6
    s_add_u32 s15, s15, {FL2}
    v_mov_b32 v26, s15
    s_mov_b64 exec, 1""")
    if sib:
        a(f"""s_xor_b32 s14, s14, 1
        s_lshl_b32 s14, s14, 10
        s_add_u32 s14, s14, {R2+1020}
        s_mov_b64 exec, 2
        v_mov_b32 v26, s14
        s_mov_b64 exec, 3""")
    check_flags_vec(name, "v26", "0", 0, "v27", sleep=4)
    a("s_barrier")

a.label("L_code_start")
a(f"""
s_getpc_b64 s[6:7]
s_cmp_ge_u32 {sID}, 256
s_cbranch_scc1 L_end
s_load_dwordx16 s[16:31], s[0:1], 0
s_load_dwordx8 s[32:39], s[0:1], 64
s_load_dwordx4 s[40:43], s[0:1], 96
s_load_dwordx2 s[44:45], s[0:1], 112
s_memrealtime s[8:9]
v_and_b32 {vLane}, 63, v0
v_lshrrev_b32 v24, 6, v0
v_and_b32 {vN}, 15, v0
v_readfirstlane_b32 {sW}, v24
v_bfe_u32 {vKg}, v0, 4, 2
""")
a(f"""
s_lshr_b32 s5, {sID}, 3
s_lshl_b32 s5, s5, 3
s_add_u32 s5, s5, {sW}
s_and_b32 s5, s5, 63
s_lshl_b32 s5, s5, 10
v_lshlrev_b32 v25, 4, {vLane}
v_add_u32 v25, s5, v25
v_min_u32 v25, L_code_end-L_code_start-32, v25
""")
if "p" not in ABL: a("global_load_dwordx4 v[248:251], v25, s[6:7]")
else: a("global_load_dword v248, v25, s[6:7]".replace("v25", "v1"))
if STAMPS:
    a(f"v_mov_b32 {vST}, 0")
a(f"""
v_and_b32 v24, 1, {vN}
v_lshlrev_b32 v24, 4, v24
v_lshlrev_b32 v24, v24, v25
""".replace("v_lshlrev_b32 v24, v24, v25", "v_mov_b32 v25, 0xffff\nv_lshlrev_b32 v24, v24, v25"))
a(f"v_bfe_u32 v25, {vN}, 1, 2")
for t in range(4):
    a(f"v_cmp_eq_u32 vcc, {t}, v25\ns_nop 1\nv_cndmask_b32 v{MK[t]}, 0, v24, vcc")
a("s_waitcnt lgkmcnt(0)")
if STAMPS:
    a(f"v_writelane_b32 {vST}, s8, 0")
a(f"s_load_dword s46, s[{pWS}:{pWS+1}], {EPOCH}")
mksrd(WS, pWS, WS_SIZE)
a(f"s_cmp_ge_u32 {sID}, 128\ns_cbranch_scc1 L_F")

QB = 131072
a(f"s_cmp_ge_u32 {sID}, {10*P1}\ns_cbranch_scc1 L_A_main")
a(f"""s_lshl_b32 s12, {sID}, 13
s_add_u32 s12, s12, {SMALL0}
v_lshlrev_b32 v24, 4, v0
v_add_u32 v24, s12, v24
v_mov_b32 v32, -1
v_mov_b32 v33, -1
v_mov_b32 v34, -1
v_mov_b32 v35, -1
s_cmp_ge_u32 s12, {SMALL1}
s_cbranch_scc1 L_S1_noclr
buffer_store_dwordx4 v[32:35], v24, {srd(WS)}, 0 offen sc1
""")
a.label("L_S1_noclr")
mksrd(SA, pWM, 640 * 7680)
mksrd(SB, pC, 2560)
mksrd(SC, pX, 2560)
a(f"""
s_mul_i32 s10, {sID}, 205
s_lshr_b32 s10, s10, 11            ; p
s_mul_i32 s11, s10, 10
s_sub_u32 s11, {sID}, s11          ; j
s_cmp_ge_u32 {sW}, 4
s_cbranch_scc1 L_S1_other
s_lshl_b32 s12, s10, 6
s_lshl_b32 s13, {sW}, 4
s_add_u32 s12, s12, s13            ; rbase
v_lshl_add_u32 v24, {vKg}, 2, s12  ; row
v_lshrrev_b32 v25, 3, {vN}         ; bsel
v_mul_u32_u24 v26, 1280, v25
v_lshl_add_u32 v26, v24, 1, v26    ; c offset
buffer_load_dwordx2 v[28:29], v26, {srd(SB)}, 0 offen
v_mul_u32_u24 v27, 7680, v24
v_mul_u32_u24 v25, 1152, v25
v_lshl_add_u32 v25, {vN}, 4, v25
s_lshl_b32 s13, s11, 7
v_add3_u32 v27, v27, v25, s13
buffer_load_dwordx4 v[64:67], v27, {srd(SA)}, 0 offen nt
s_movk_i32 s13, 7680
buffer_load_dwordx4 v[68:71], v27, {srd(SA)}, s13 offen nt
s_movk_i32 s13, 15360
buffer_load_dwordx4 v[72:75], v27, {srd(SA)}, s13 offen nt
s_movk_i32 s13, 23040
buffer_load_dwordx4 v[76:79], v27, {srd(SA)}, s13 offen nt
v_lshlrev_b32 v30, 4, v0
v_add_u32 v30, {QB}, v30
s_waitcnt vmcnt(4)
""")
silu_c4(28, 16, "v24")
a("s_waitcnt vmcnt(0)")
stamp(1)
diag_mfma([(16 + u, 64 + 4 * u) for u in range(4)], 32)
a("s_nop 7\nds_write_b128 v30, v[32:35]")
a("s_branch L_S1_bar")
a.label("L_S1_other")
a(f"s_cmp_ge_u32 {sW}, 6\ns_cbranch_scc1 L_S1_bar")
a(f"""
s_sub_u32 s12, {sW}, 4
s_mul_i32 s13, s12, 1280
v_lshlrev_b32 v24, 2, {vLane}
buffer_load_dword v32, v24, {srd(SC)}, s13 offen
buffer_load_dword v33, v24, {srd(SC)}, s13 offen offset:256
buffer_load_dword v34, v24, {srd(SC)}, s13 offen offset:512
buffer_load_dword v35, v24, {srd(SC)}, s13 offen offset:768
buffer_load_dword v36, v24, {srd(SC)}, s13 offen offset:1024
s_lshl_b32 s14, s11, 7
s_add_u32 s13, s13, s14
v_lshlrev_b32 v25, 1, {vLane}
buffer_load_ushort v37, v25, {srd(SC)}, s13 offen
s_waitcnt vmcnt(0)
""")
for i in range(5):
    a(f"v_lshlrev_b32 v{40+2*i}, 16, v{32+i}\nv_and_b32 v{41+2*i}, 0xffff0000, v{32+i}")
a("v_add_f32 v26, v40, v41")
for i in range(2, 10):
    a(f"v_add_f32 v26, v26, v{40+i}")
allreduce("v_add_f32", "v26", "v27")
a(f"v_mul_f32 v26, 0x{f2u(1.0/640):08x}, v26       ; mean")
a("v_sub_f32 v40, v40, v26\nv_mul_f32 v28, v40, v40")
for i in range(1, 10):
    a(f"v_sub_f32 v{40+i}, v{40+i}, v26\nv_fmac_f32 v28, v{40+i}, v{40+i}")
allreduce("v_add_f32", "v28", "v27")
a(f"""
v_mov_b32 v27, 0x{f2u(1e-5):08x}
v_fmac_f32 v27, 0x{f2u(1.0/640):08x}, v28
v_rsq_f32 v27, v27
v_lshlrev_b32 v37, 16, v37
v_sub_f32 v37, v37, v26
v_mul_f32 v37, v37, v27
s_lshl_b32 s12, s12, 8
s_add_u32 s12, s12, {QB+4096}
v_add_u32 v24, s12, v24
ds_write_b32 v24, v37
s_waitcnt lgkmcnt(0)
""")
a.label("L_S1_bar")
get_nonce()
a(f"s_waitcnt vmcnt(0)\ns_barrier\ns_cmp_lg_u32 {sW}, 0\ns_cbranch_scc1 L_S1_end")
a(f"""
v_lshrrev_b32 v24, 3, {vLane}        ; n'
v_bfe_u32 v25, {vLane}, 2, 1         ; jj>>2
v_and_b32 v26, 3, {vLane}
v_lshlrev_b32 v24, 4, v24
v_lshl_add_u32 v24, v25, 8, v24
v_lshl_add_u32 v24, v26, 2, v24
v_add_u32 v24, {QB}, v24
v_lshlrev_b32 v25, 2, {vLane}
v_add_u32 v25, {QB+4096}, v25
""")
for w in range(4):
    for b in range(2):
        r = 32 + (w * 2 + b) * 2
        if w * 1024 + b * 512 + 128 < 1024:
            a(f"ds_read2_b32 v[{r}:{r+1}], v24 offset0:{(w*1024+b*512)//4} offset1:{(w*1024+b*512+128)//4}")
        else:
            a(f"ds_read_b32 v{r}, v24 offset:{w*1024+b*512}\nds_read_b32 v{r+1}, v24 offset:{w*1024+b*512+128}")
a("ds_read_b32 v48, v25\nds_read_b32 v49, v25 offset:256")
a(f"""
s_mul_i32 s12, s10, 640
s_lshl_b32 s13, s11, 6
s_add_u32 s12, s12, s13
s_lshl_b32 s12, s12, 3
s_add_u32 s12, s12, {R1}
v_lshlrev_b32 v26, 3, {vLane}
s_cmp_eq_u32 s10, 0
s_cselect_b32 s13, 1.0, 0
s_waitcnt lgkmcnt(0)
""")
for b in range(2):
    for x in range(2):
        r0 = 32 + b * 2 + x
        a(f"v_add_f32 v{r0}, v{r0}, v{r0+4}\nv_add_f32 v{r0+8}, v{r0+8}, v{r0+12}\nv_add_f32 v{r0}, v{r0}, v{r0+8}")
a(f"""
v_add_f32 v33, s13, v33
v_add_f32 v35, s13, v35
v_fmac_f32 v32, v48, v33
v_fmac_f32 v34, v49, v35
v_cvt_pk_bf16_f32 v32, v32, v34
v_mov_b32 v33, {sN}
buffer_store_dwordx2 v[32:33], v26, {srd(WS)}, s12 offen sc1
""")
stamp(2)
a.label("L_S1_end")
a("s_barrier")

a.label("L_A_main")
CLR = "" if NOCLEAR else "\n".join(f"buffer_store_dwordx4 v[32:35], v56, {srd(WS)}, s{68+i} offen sc1" for i in range(4))
mksrd(SA, pCKV, 16777216)
mksrd(SB, pWUV, 512 * 8192)
a(f"""
s_lshr_b32 s10, {sID}, 6            ; b
s_and_b32 s11, {sID}, 63            ; chunk
v_and_b32 v24, 31, {vLane}          ; head / l31
v_lshrrev_b32 v25, 5, {vLane}       ; hf
; O store address v56: lane -> head = l/8 (+8i), piece = l%8
s_lshr_b32 s12, {sW}, 1             ; cq
s_mul_i32 s12, s12, {R4ST}
s_lshl_b32 s13, {sID}, 8            ; (b*64+chunk)*256
s_add_u32 s12, s12, s13
s_and_b32 s13, {sW}, 1
s_lshl_b32 s13, s13, 7
s_add_u32 s12, s12, s13
s_add_u32 s68, s12, {R4}
s_add_u32 s69, s68, {32*R4ST}
s_add_u32 s70, s68, {64*R4ST}
s_add_u32 s71, s68, {96*R4ST}
v_lshrrev_b32 v56, 3, {vLane}
v_mul_u32_u24 v56, {4*R4ST}, v56
v_and_b32 v27, 7, {vLane}
v_lshl_add_u32 v56, v27, 4, v56
v_mov_b32 v32, -1
v_mov_b32 v33, -1
v_mov_b32 v34, -1
v_mov_b32 v35, -1
{CLR}
s_lshl_b32 s12, {sID}, 3
s_add_u32 s12, s12, {R4S}
v_lshlrev_b32 v57, 10, v24
v_add_u32 v57, s12, v57
""")
a(f"""
s_lshl_b32 s12, {sID}, 7            ; (b*64+chunk)*128
s_lshl_b32 s13, {sW}, 4
s_add_u32 s12, s12, s13
s_lshl_b32 s12, s12, 10
s_lshl_b32 s13, {sW}, 14
v_lshlrev_b32 v26, 4, {vLane}
""")
def fsw(k): return ((k & 3) << 2) | ((k >> 2) & 3)
a(f"""v_and_b32 v62, 1, {vLane}
v_lshlrev_b32 v62, 10, v62
s_and_b32 s9, {sID}, 31
s_lshl_b32 s9, s9, 11
s_lshl_b32 s14, {sW}, 7
s_add_u32 s9, s9, s14
s_add_u32 s9, s9, {R2}""")
for r in range(16):
    if r % 4 == 0:
        a(f"s_add_u32 s14, s13, {r*1024}\ns_mov_b32 m0, s14\ns_add_u32 s15, s12, {r*1024}")
    t = 27 + (r % 2)
    a(f"v_xor_b32 v{t}, {fsw(r)*16}, v26")
    a(f"buffer_load_dwordx4 v{t}, {srd(SA)}, s15 offen offset:{(r%4)*1024} nt lds")
    if r == 11:
        a(f"buffer_load_dword v61, v62, {srd(WS)}, s9 offen offset:4 sc1")
stamp(3)
if ABL:
    a("s_waitcnt vmcnt(0)")
    stamp(4)
    a("s_branch L_fin")
get_nonce()
a(f"""
v_and_b32 v27, 3, {vLane}
v_lshlrev_b32 v27, 2, v27
v_bfe_u32 v28, {vLane}, 2, 2
v_or_b32 v27, v27, v28              ; f(l%16)
v_xor_b32 v27, v27, v25             ; ^ kg2
v_lshlrev_b32 v27, 4, v27
v_lshl_or_b32 v27, v24, 10, v27     ; l31*1024 | x0
s_lshl_b32 s12, {sW}, 15
""")
for t8 in range(8):
    a(f"v_xor_b32 v{72+t8}, {t8<<5}, v27\nv_add_u32 v{64+t8}, s12, v{72+t8}\nv_add_u32 v{72+t8}, {QB}, v{72+t8}")
a(f"""
v_lshrrev_b32 v27, 2, {vN}          ; r
v_lshrrev_b32 v28, 1, {vKg}         ; kg
v_and_b32 v29, 1, {vKg}             ; G&1
v_lshl_add_u32 v30, v28, 3, v27
v_lshlrev_b32 v30, 10, v30
v_bfe_u32 v31, {vN}, 1, 1           ; q>>1
v_lshl_add_u32 v31, v29, 1, v31     ; 2(G&1) + (q>>1)
s_and_b32 s12, {sW}, 1
s_lshl_b32 s12, s12, 3
v_add_u32 v31, s12, v31
v_lshlrev_b32 v27, 2, v27
v_lshl_or_b32 v27, v28, 1, v27      ; f(e=0) = r<<2 | 2kg
v_xor_b32 v31, v31, v27
v_lshlrev_b32 v31, 4, v31
v_and_b32 v27, 1, {vN}
v_lshlrev_b32 v27, 3, v27
v_add3_u32 v30, v30, v31, v27
s_lshr_b32 s12, {sW}, 1
s_lshl_b32 s12, s12, 8
v_add_u32 v30, s12, v30
""")
for mt in range(2):
    for e in range(2):
        r = 80 + mt * 2 + e
        a(f"v_xor_b32 v{r}, {(mt*64) ^ (e*16) ^ (e*4096)}, v30\nv_add_u32 v{r+4}, 0x10000, v{r}")
a(f"""
s_lshl_b32 s12, s10, 5
s_lshl_b32 s13, {sW}, 2
s_add_u32 s12, s12, s13
s_lshl_b32 s12, s12, 10
s_add_u32 s12, s12, {R3}
s_and_b32 s14, {sW}, 3
v_xor_b32 v27, s14, {vLane}
v_lshlrev_b32 v27, 4, v27
s_lshl_b32 s13, s13, 10
s_add_u32 s13, s13, {QB}
v_add_u32 v27, s13, v27
s_mov_b32 s5, 0
""")
a(f"""
s_and_b32 s8, {sID}, 3              ; cq
s_lshl_b32 s8, s8, 7
s_lshl_b32 s13, {sW}, 4
s_add_u32 s8, s8, s13
v_lshl_add_u32 v63, {vKg}, 2, s8
v_lshlrev_b32 v63, 13, v63
v_lshl_add_u32 v63, {vN}, 4, v63
s_lshr_b32 s8, {sID}, 2
s_lshl_b32 s8, s8, 8
""")
a(f"s_waitcnt vmcnt(4)")
a(f"""s_cmp_lg_u32 {sW}, 0
s_cbranch_scc1 L_A_notrig
s_lshl_b32 s14, {sID}, 6
s_add_u32 s14, s14, {FL2}
v_mov_b32 v28, {sN}
v_mov_b32 v29, s14
s_mov_b64 exec, 1
buffer_store_dword v28, v29, {srd(WS)}, 0 offen sc1
s_mov_b64 exec, -1""")
a.label("L_A_notrig")
a(f"v_cmp_ne_u32 vcc, {sN}, v61\ns_cbranch_vccz L_Qflag_x")
check_flags_vec("L_Qflag", "v62", "s9", 4, "v61")
a("s_mov_b32 s5, 0")
for u in range(4):
    a(f"buffer_load_dwordx4 v[{32+4*u}:{35+4*u}], v26, {srd(WS)}, s12 offen offset:{u*1024} sc1")
for u in range(4):
    a(f"buffer_load_dwordx4 v[{224+4*u}:{227+4*u}], v63, {srd(SB)}, s8 offen nt")
    if u < 3: a("s_add_u32 s8, s8, 8192")
gather("L_Qpoll", [f"buffer_load_dwordx4 v[{32+4*u}:{35+4*u}], v26, {srd(WS)}, s12 offen offset:{u*1024} sc1" for u in range(4)],
       list(range(32, 48)), "v28", first_issued=True, first_wait=4, sleep=2)
stamp(4)
for u in range(4):
    a(f"v_xor_b32 v28, {u<<6}, v27\nds_write_b128 v28, v[{32+4*u}:{35+4*u}] offset:{u*1024}")
a("s_waitcnt lgkmcnt(0)\ns_barrier")
TR0 = 128
def tr_reads():
    for t in range(8):
        for mt in range(2):
            for e in range(2):
                ar = 80 + mt * 2 + e + (4 if t >= 4 else 0)
                d = TR0 + (t * 2 + mt) * 4 + e * 2
                a(f"ds_read_b64_tr_b16 v[{d}:{d+1}], v{ar} offset:{(t%4)*16384}")
a(f"s_cmp_ge_u32 {sW}, 4\ns_cbranch_scc1 L_A_noqk")
AF, BF, SACC = 96, 112, 192
def qk_read(t):
    s = t % 4
    a(f"ds_read_b128 v[{AF+4*s}:{AF+4*s+3}], v{64+t%8} offset:{(t//8)*256}")
    a(f"ds_read_b128 v[{BF+4*s}:{BF+4*s+3}], v{72+t%8} offset:{(t//8)*256}")
for t in range(4): qk_read(t)
for t in range(32):
    out = min(3, 31 - t) * 2
    a(f"s_waitcnt lgkmcnt({out})")
    s = t % 4
    c = "0" if t == 0 else f"v[{SACC}:{SACC+15}]"
    a(f"v_mfma_f32_32x32x16_bf16 v[{SACC}:{SACC+15}], v[{AF+4*s}:{AF+4*s+3}], v[{BF+4*s}:{BF+4*s+3}], {c}")
    if t + 4 < 32: qk_read(t + 4)
tr_reads()
a(f"v_max3_f32 v27, v{SACC}, v{SACC+1}, v{SACC+2}")
for i in range(3, 15, 2):
    a(f"v_max3_f32 v27, v27, v{SACC+i}, v{SACC+i+1}")
a(f"""v_max_f32 v27, v27, v{SACC+15}
v_mov_b32 v28, v27
s_nop 1
v_permlane32_swap_b32 v27, v28
s_nop 1
v_max_f32 v27, v27, v28
s_lshl_b32 s12, {sW}, 2
v_lshlrev_b32 v29, 4, v24
v_add_u32 v29, {QB+9216}, v29       ; MX[head][4]
v_add_u32 v30, s12, v29
""")
stamp(5)
a("s_barrier\nds_write_b32 v30, v27\ns_waitcnt lgkmcnt(0)\ns_barrier")
a(f"""ds_read_b128 v[32:35], v29
v_mul_u32_u24 v31, 272, v24
v_lshl_add_u32 v31, v25, 3, v31
s_lshl_b32 s12, {sW}, 6
s_add_u32 s12, s12, {QB}
v_add_u32 v31, s12, v31
s_waitcnt lgkmcnt(0)
v_max3_f32 v27, v32, v33, v34
v_max_f32 v27, v27, v35
""")
for i in range(16):
    a(f"v_sub_f32 v{SACC+i}, v{SACC+i}, v27")
for i in range(16):
    a(f"v_exp_f32 v{SACC+i}, v{SACC+i}")
a("s_nop 0")
for g in range(4):
    a(f"v_cvt_pk_bf16_f32 v{32+2*g}, v{SACC+4*g}, v{SACC+4*g+1}\nv_cvt_pk_bf16_f32 v{33+2*g}, v{SACC+4*g+2}, v{SACC+4*g+3}")
    a(f"ds_write_b64 v31, v[{32+2*g}:{33+2*g}] offset:{g*16}")
a(f"v_add_f32 v28, v{SACC}, v{SACC+1}")
for i in range(2, 16):
    a(f"v_add_f32 v28, v28, v{SACC+i}")
a(f"""v_mov_b32 v40, v28
s_nop 1
v_permlane32_swap_b32 v28, v40
s_nop 1
v_add_f32 v28, v28, v40
ds_write_b32 v30, v28 offset:512
s_waitcnt lgkmcnt(0)
s_barrier
s_cmp_lg_u32 {sW}, 0
s_cbranch_scc1 L_A_pv
ds_read_b128 v[32:35], v29 offset:512
s_waitcnt lgkmcnt(0)
v_add_f32 v32, v32, v33
v_add_f32 v34, v34, v35
v_add_f32 v28, v32, v34
v_mov_b32 v32, v27
v_mov_b32 v33, v28
buffer_store_dwordx2 v[32:33], v57, {srd(WS)}, 0 offen sc1
s_branch L_A_pv
""")
a.label("L_A_noqk")
tr_reads()
a("s_barrier\ns_barrier\ns_waitcnt lgkmcnt(0)\ns_barrier")
a.label("L_A_pv")
stamp(6)
PF, OACC = 96, 192
a(f"""v_mul_u32_u24 v31, 272, v24
v_lshl_add_u32 v31, v25, 4, v31
v_add_u32 v31, {QB}, v31
""")
for t in range(8):
    a(f"ds_read_b128 v[{PF+4*t}:{PF+4*t+3}], v31 offset:{t*32}")
for t in range(8):
    a(f"s_waitcnt lgkmcnt({7-t})")
    for mt in range(2):
        d = TR0 + (t * 2 + mt) * 4; o = OACC + 16 * mt
        c = "0" if t == 0 else f"v[{o}:{o+15}]"
        a(f"v_mfma_f32_32x32x16_bf16 v[{o}:{o+15}], v[{d}:{d+3}], v[{PF+4*t}:{PF+4*t+3}], {c}")
a(f"""v_mul_u32_u24 v27, 144, v24
v_lshl_add_u32 v27, v25, 3, v27
s_mul_i32 s13, {sW}, 4608
v_add_u32 v27, s13, v27
v_lshrrev_b32 v28, 3, {vLane}
v_mul_u32_u24 v28, 144, v28
v_and_b32 v29, 7, {vLane}
v_lshl_add_u32 v28, v29, 4, v28
v_add_u32 v28, s13, v28
s_nop 1
""")
for mt in range(2):
    o = OACC + 16 * mt
    for g in range(4):
        r = 32 + (mt * 4 + g) * 2
        a(f"v_cvt_pk_bf16_f32 v{r}, v{o+4*g}, v{o+4*g+1}\nv_cvt_pk_bf16_f32 v{r+1}, v{o+4*g+2}, v{o+4*g+3}")
        a(f"ds_write_b64 v27, v[{r}:{r+1}] offset:{mt*64+g*16}")
a("s_waitcnt lgkmcnt(0)")
for i in range(4):
    a(f"ds_read_b128 v[{32+4*i}:{35+4*i}], v28 offset:{i*1152}")
for i in range(4):
    a(f"s_waitcnt lgkmcnt({3-i})\nbuffer_store_dwordx4 v[{32+4*i}:{35+4*i}], v56, {srd(WS)}, s{68+i} offen sc1")
stamp(7)
a(f"""
s_lshr_b32 s10, {sW}, 2             ; b'
s_lshr_b32 s11, {sID}, 2            ; h
s_lshl_b32 s12, s10, 9
s_lshl_b32 s13, s11, 10
s_add_u32 s12, s12, s13
s_add_u32 s12, s12, {R4S}
v_lshlrev_b32 v27, 3, {vLane}
s_mul_i32 s13, {sID}, {R4ST}
s_lshl_b32 s14, {sW}, 12
s_add_u32 s13, s13, s14
s_add_u32 s13, s13, {R4}
s_mov_b32 s5, 0
""")
gather("L_S5stat", [f"buffer_load_dwordx2 v[32:33], v27, {srd(WS)}, s12 offen sc1"], [32, 33], "v28")
S5L = [f"buffer_load_dwordx4 v[{64+4*u}:{67+4*u}], v26, {srd(WS)}, s13 offen offset:{u*1024} sc1" for u in range(4)]
for l in S5L: a(l)
a("v_mov_b32 v34, v32")
allreduce("v_max_f32", "v34", "v35")
a("v_sub_f32 v32, v32, v34\nv_exp_f32 v32, v32\ns_nop 0\nv_mul_f32 v33, v33, v32")
allreduce("v_add_f32", "v33", "v35")
a(f"""v_rcp_f32 v33, v33
s_nop 0
v_mul_f32 v32, v32, v33
v_cvt_pk_bf16_f32 v33, v32, v32
v_and_b32 v34, 0xffff0000, v33
v_sub_f32 v34, v32, v34
v_cvt_pk_bf16_f32 v33, v32, v34
s_and_b32 s14, {sW}, 3
s_lshl_b32 s14, s14, 4
v_add_u32 v35, s14, {vKg}
v_lshlrev_b32 v35, 2, v35
v_cmp_gt_u32 vcc, 8, {vN}
v_mov_b32 v36, 0x03020302
v_mov_b32 v37, 0x01000100
v_cndmask_b32 v36, v36, v37, vcc    ; selector
""")
for u in range(4):
    a(f"ds_bpermute_b32 v{16+u}, v35, v33 offset:{u*16}")
a("s_waitcnt lgkmcnt(0)")
for u in range(4):
    a(f"v_perm_b32 v{16+u}, v{16+u}, v{16+u}, v36")
gather("L_S5data", S5L, list(range(64, 80)), "v28", first_issued=True, first_wait=0)
stamp(8)
RED5 = QB + 12288; ACT5 = QB + 21504; RED5b = QB + 23552
diag_mfma([(16 + u, 64 + 4 * u) for u in range(4)], 32)
a(f"""v_lshlrev_b32 v30, 4, v0
v_add_u32 v30, {RED5}, v30
v_bfe_u32 v27, v0, 3, 4
v_lshlrev_b32 v27, 4, v27
v_bfe_u32 v28, v0, 2, 1
v_lshl_add_u32 v27, v28, 8, v27
v_and_b32 v28, 3, v0
v_lshl_add_u32 v27, v28, 2, v27
v_bfe_u32 v28, v0, 7, 1
v_lshl_add_u32 v27, v28, 12, v27
v_add_u32 v27, {RED5}, v27
ds_write_b128 v30, v[32:35]
s_waitcnt lgkmcnt(0)
s_barrier
s_cmp_ge_u32 {sW}, 4
s_cbranch_scc1 L_S5_skip
""")
for w in range(4):
    a(f"ds_read2st64_b32 v[{32+2*w}:{33+2*w}], v27 offset0:{w*4} offset1:{w*4+2}")
a(f"""v_and_b32 v28, 127, v0
v_lshlrev_b32 v28, 2, v28
v_bfe_u32 v29, v0, 7, 1
v_mul_u32_u24 v29, 576, v29
v_add3_u32 v28, v28, v29, s14
""".replace("v_add3_u32 v28, v28, v29, s14", f"v_add_u32 v28, v28, v29\nv_add_u32 v28, {ACT5}, v28"))
a("""s_waitcnt lgkmcnt(0)
v_add_f32 v32, v32, v33
v_add_f32 v34, v34, v35
v_add_f32 v36, v36, v37
v_add_f32 v38, v38, v39
v_add_f32 v32, v32, v34
v_add_f32 v36, v36, v38
v_add_f32 v32, v32, v36
v_cvt_pk_bf16_f32 v32, v32, v32
ds_write_b32 v28, v32
s_waitcnt lgkmcnt(0)
""")
a.label("L_S5_skip")
a(f"""v_lshrrev_b32 v27, 3, {vN}
v_mul_u32_u24 v27, 576, v27
v_lshl_add_u32 v27, {vKg}, 4, v27
s_lshl_b32 s12, {sW}, 6
s_add_u32 s12, s12, {ACT5}
v_add_u32 v27, s12, v27
s_barrier
ds_read_b128 v[16:19], v27
s_waitcnt lgkmcnt(0)
""")
diag_mfma([(16 + u, 224 + 4 * u) for u in range(4)], 32)
a(f"""v_add_u32 v30, {RED5b-RED5}, v30
s_nop 6
ds_write_b128 v30, v[32:35]
s_waitcnt lgkmcnt(0)
s_barrier
s_cmp_lg_u32 {sW}, 0
s_cbranch_scc1 L_S9
""")
def final_reduce8(addr, dst):
    for w in range(8):
        a(f"ds_read_b128 v[{64+4*w}:{67+4*w}], {addr} offset:{w*1024}")
    for w in range(0, 8, 2):
        a(f"s_waitcnt lgkmcnt({6-w})")
        a(f"v_pk_add_f32 v[{64+4*w}:{65+4*w}], v[{64+4*w}:{65+4*w}], v[{68+4*w}:{69+4*w}]")
        a(f"v_pk_add_f32 v[{66+4*w}:{67+4*w}], v[{66+4*w}:{67+4*w}], v[{70+4*w}:{71+4*w}]")
    a("""v_pk_add_f32 v[64:65], v[64:65], v[72:73]
    v_pk_add_f32 v[66:67], v[66:67], v[74:75]
    v_pk_add_f32 v[80:81], v[80:81], v[88:89]
    v_pk_add_f32 v[82:83], v[82:83], v[90:91]""")
    a(f"v_pk_add_f32 v[{dst}:{dst+1}], v[64:65], v[80:81]\nv_pk_add_f32 v[{dst+2}:{dst+3}], v[66:67], v[82:83]")
final_reduce8("v30", 32)
a(f"""v_cvt_pk_bf16_f32 v32, v32, v33
v_cvt_pk_bf16_f32 v33, v34, v35
v_lshrrev_b32 v27, 1, {vKg}
v_lshlrev_b32 v27, 8, v27
v_lshl_add_u32 v27, {vN}, 4, v27
v_and_b32 v28, 1, {vKg}
v_lshl_add_u32 v27, v28, 3, v27
s_lshl_b32 s12, {sID}, 9
s_add_u32 s12, s12, {R5}
buffer_store_dwordx2 v[32:33], v27, {srd(WS)}, s12 offen sc1
""")
stamp(9)
a.label("L_S9")
a(f"s_cmp_ge_u32 {sID}, 10\ns_cbranch_scc1 L_fin")
mksrd(SC, pOUT, 2560)
a(f"""
s_lshl_b32 s12, {sID}, 3
s_add_u32 s12, s12, {sW}
s_lshl_b32 s13, s12, 6
s_add_u32 s13, s13, {R7}
v_lshrrev_b32 v27, 2, {vLane}       ; pg
v_and_b32 v28, 3, {vLane}
v_mul_u32_u24 v29, 5120, v27
v_lshl_add_u32 v29, v28, 4, v29
v_add_u32 v30, {16*5120}, v29
v_cmp_gt_u32 vcc, {NFFN-16}, v27
v_mov_b32 v31, 0x7fffff00
v_cndmask_b32 v30, v31, v30, vcc
s_mov_b32 s5, 0
""")
a("s_mov_b64 exec, 1")
gather("L_S9gate", [f"buffer_load_dword v32, v29, {srd(WS)}, s13 offen sc1"], [32], "v31", sleep=2)
gather("L_S9data", [f"buffer_load_dwordx4 v[32:35], v29, {srd(WS)}, s13 offen sc1", f"buffer_load_dwordx4 v[36:39], v30, {srd(WS)}, s13 offen sc1"], list(range(32, 40)), "v31", sleep=1)
stamp(10)
for i in range(4):
    a(f"v_add_f32 v{32+i}, v{32+i}, v{36+i}")
for r in (4, 8):
    a("s_nop 0")
    for i in range(4):
        a(f"v_add_f32_dpp v{32+i}, v{32+i}, v{32+i} row_ror:{r} row_mask:0xf bank_mask:0xf")
for sw in ("v_permlane16_swap_b32", "v_permlane32_swap_b32"):
    for i in range(4):
        a(f"v_mov_b32 v{36+i}, v{32+i}")
    a("s_nop 0")
    for i in range(4):
        a(f"{sw} v{32+i}, v{36+i}")
    a("s_nop 0")
    for i in range(4):
        a(f"v_add_f32 v{32+i}, v{32+i}, v{36+i}")
a(f"""v_cvt_pk_bf16_f32 v32, v32, v33
v_cvt_pk_bf16_f32 v33, v34, v35
s_lshl_b32 s13, s12, 5
v_lshlrev_b32 v28, 3, v28
s_mov_b64 exec, 15
buffer_store_dwordx2 v[32:33], v28, {srd(SC)}, s13 offen
s_cmp_lg_u32 s12, 0
s_cbranch_scc1 L_noep
s_mov_b64 exec, 1
v_mov_b32 v32, {sN}
v_mov_b32 v33, {EPOCH}
buffer_store_dword v32, v33, {srd(WS)}, 0 offen
""")
a.label("L_noep")
a(f"""s_mov_b64 exec, -1
s_branch L_fin
""")

a.label("L_F")
ACT = 0; RED = 8192; MISC = 16384
a(f"s_sub_u32 s10, {sID}, 128\ns_cmp_ge_u32 s10, 64\ns_cbranch_scc1 L_S3")
mksrd(SA, pWQ, 640 * 8192)
a(f"""
s_lshr_b32 s11, s10, 1              ; h
s_and_b32 s12, s10, 1               ; kh
s_mul_i32 s13, s12, 320
s_mul_i32 s14, {sW}, 40
s_add_u32 s13, s13, s14             ; rbase
v_lshl_add_u32 v24, {vKg}, 2, s13
v_lshlrev_b32 v24, 13, v24
v_lshl_add_u32 v24, {vN}, 4, v24
v_lshl_add_u32 v25, {vKg}, 1, s13
v_lshlrev_b32 v25, 13, v25
v_lshl_add_u32 v25, {vN}, 4, v25
s_lshl_b32 s14, s11, 8
""")
k = 0
for g in range(2):
    for u in range(4):
        a(f"s_add_u32 s15, s14, {(g*16+u)*8192}\nbuffer_load_dwordx4 v[{64+4*k}:{67+4*k}], v24, {srd(SA)}, s15 offen nt"); k += 1
for u in range(2):
    a(f"s_add_u32 s15, s14, {(32+u)*8192}\nbuffer_load_dwordx4 v[{64+4*k}:{67+4*k}], v25, {srd(SA)}, s15 offen nt"); k += 1
get_nonce()
def flag_store(lbl, cnt):
    a(f"""s_cmp_lg_u32 {sW}, 7
    s_cbranch_scc1 {lbl}
    s_waitcnt vmcnt({cnt})
    s_lshl_b32 s15, {sID}, 2
    v_mov_b32 v27, {sN}
    v_mov_b32 v28, s15
    s_mov_b64 exec, 1
    buffer_store_dword v27, v28, {srd(WS)}, 0 offen sc1
    s_mov_b64 exec, -1""")
    a.label(lbl)
if "a" in ABL:
    a("s_waitcnt vmcnt(0)")
    stamp(7)
    a("s_branch L_fin")
a(f"""s_cmp_ge_u32 {sW}, 3
s_cbranch_scc1 L_S2_bar
v_min_u32 v26, 159, v0
v_lshlrev_b32 v27, 4, v26
s_mul_i32 s15, s12, 2560
s_add_u32 s15, s15, {R1}
s_mov_b32 s5, 0
""")
lds_ = ["s_mov_b32 s8, s15"]
for p in range(P1):
    lds_.append(f"buffer_load_dwordx4 v[{128+4*p}:{131+4*p}], v27, {srd(WS)}, s8 offen sc1")
    if p < P1 - 1: lds_.append("s_add_u32 s8, s8, 5120")
gather("L_H1poll", lds_, [129 + 2 * i for i in range(2 * P1)], "v28", mode="tag", vt2="v29", sleep=2)
stamp(1)
a("v_lshlrev_b32 v32, 16, v128\nv_lshlrev_b32 v33, 16, v130\nv_and_b32 v34, 0xffff0000, v128\nv_and_b32 v35, 0xffff0000, v130")
for p in range(1, P1):
    a(f"""v_lshlrev_b32 v36, 16, v{128+4*p}
    v_lshlrev_b32 v37, 16, v{130+4*p}
    v_and_b32 v38, 0xffff0000, v{128+4*p}
    v_and_b32 v39, 0xffff0000, v{130+4*p}
    v_pk_add_f32 v[32:33], v[32:33], v[36:37]
    v_pk_add_f32 v[34:35], v[34:35], v[38:39]""")
for i in range(4):
    a(f"v_cvt_pk_bf16_f32 v{32+i}, v{32+i}, v{32+i}")
a(f"""v_lshlrev_b32 v26, 3, v26
ds_write_b64 v26, v[32:33] offset:{ACT}
ds_write_b64 v26, v[34:35] offset:{ACT+1344}
s_waitcnt lgkmcnt(0)
""")
a.label("L_S2_bar")
a(f"""v_lshrrev_b32 v26, 3, {vN}
v_mul_u32_u24 v26, 1344, v26
s_mul_i32 s15, {sW}, 160
v_add_u32 v26, s15, v26
v_lshl_add_u32 v27, {vKg}, 4, v26
v_lshl_add_u32 v28, {vKg}, 3, v26
v_lshlrev_b32 v30, 4, v0
s_waitcnt vmcnt(0)""")
stamp(7)
a(f"""
s_barrier
ds_read_b128 v[16:19], v27 offset:{ACT}
ds_read_b128 v[20:23], v27 offset:{ACT+64}
ds_read_b64 v[36:37], v28 offset:{ACT+128}
s_waitcnt lgkmcnt(0)
""")
diag_mfma([(16 + u, 64 + 4 * u) for u in range(8)] + [(36, 96), (37, 100)], 32)
a(f"""; reader: t<128: d=t
v_bfe_u32 v27, v0, 3, 4
v_lshlrev_b32 v27, 4, v27
v_bfe_u32 v28, v0, 2, 1
v_lshl_add_u32 v27, v28, 8, v27
v_and_b32 v28, 3, v0
v_lshl_add_u32 v27, v28, 2, v27
s_nop 1
ds_write_b128 v30, v[32:35] offset:{RED}
s_waitcnt lgkmcnt(0)
s_barrier
s_cmp_ge_u32 {sW}, 2
s_cbranch_scc1 L_S2_done
""")
for w in range(8):
    a(f"ds_read2st64_b32 v[{32+2*w}:{33+2*w}], v27 offset0:{RED//256+w*4} offset1:{RED//256+w*4+2}")
a(f"""s_lshl_b32 s15, s10, 10
s_add_u32 s15, s15, {R2}
v_lshlrev_b32 v28, 3, v0
s_waitcnt lgkmcnt(0)
v_pk_add_f32 v[32:33], v[32:33], v[34:35]
v_pk_add_f32 v[36:37], v[36:37], v[38:39]
v_pk_add_f32 v[40:41], v[40:41], v[42:43]
v_pk_add_f32 v[44:45], v[44:45], v[46:47]
v_pk_add_f32 v[32:33], v[32:33], v[36:37]
v_pk_add_f32 v[40:41], v[40:41], v[44:45]
v_pk_add_f32 v[32:33], v[32:33], v[40:41]
v_cvt_pk_bf16_f32 v32, v32, v33
v_mov_b32 v33, {sN}
buffer_store_dwordx2 v[32:33], v28, {srd(WS)}, s15 offen sc1
""")
a.label("L_S2_done")
stamp(2)
a("s_cmp_ge_u32 s10, 60\ns_cbranch_scc1 L_fin")
if ABL: a("s_branch L_fin")
late_trigger("L_trig2", True)
stamp(6)
a("s_cmp_ge_u32 s10, 40\ns_cbranch_scc1 L_S1b")
mksrd(SA, pWO, 4096 * 1280)
a(f"""
s_mul_i32 s11, s10, 205
s_lshr_b32 s11, s11, 10             ; g
s_mul_i32 s12, s11, 5
s_sub_u32 s12, s10, s12             ; nb
s_lshl_b32 s13, s11, 9
s_lshl_b32 s14, {sW}, 6
s_add_u32 s13, s13, s14
v_lshl_add_u32 v24, {vKg}, 2, s13
v_mul_u32_u24 v24, 1280, v24
v_lshl_add_u32 v24, {vN}, 4, v24
s_lshl_b32 s14, s12, 8
""")
for g in range(4):
    for u in range(4):
        k = g * 4 + u
        a(f"buffer_load_dwordx4 v[{128+4*k}:{131+4*k}], v24, {srd(SA)}, s14 offen offset:{u*1280} nt")
    if g < 3: a("s_add_u32 s14, s14, 20480")
a(f"s_cmp_ge_u32 {sW}, 2\ns_cbranch_scc1 L_S6_bar")
a(f"""v_lshrrev_b32 v26, 5, v0
v_lshlrev_b32 v27, 11, v26
v_and_b32 v28, 31, v0
v_lshl_add_u32 v27, v28, 4, v27
s_lshl_b32 s14, s11, 13
s_add_u32 s14, s14, {R5}
v_bfe_u32 v28, v0, 4, 1
v_mul_u32_u24 v28, 2112, v28
v_lshl_add_u32 v28, v26, 9, v28
v_lshl_add_u32 v28, {vN}, 5, v28
s_mov_b32 s5, 0
""")
a(f"v_lshlrev_b32 v29, 9, {vN}\ns_mov_b64 exec, 0xffff")
gather("L_H5gate", [f"buffer_load_dword v30, v29, {srd(WS)}, s14 offen sc1"], [30], "v31", sleep=2)
gather("L_H5poll", [f"buffer_load_dwordx4 v[{64+4*c}:{67+4*c}], v27, {srd(WS)}, s14 offen offset:{c*512} sc1" for c in range(4)], list(range(64, 80)), "v29")
stamp(3)
for i in range(4):
    a(f"v_lshlrev_b32 v{32+2*i}, 16, v{64+i}\nv_and_b32 v{33+2*i}, 0xffff0000, v{64+i}")
for c in range(1, 4):
    for i in range(4):
        a(f"v_lshlrev_b32 v40, 16, v{64+4*c+i}\nv_and_b32 v41, 0xffff0000, v{64+4*c+i}\nv_pk_add_f32 v[{32+2*i}:{33+2*i}], v[{32+2*i}:{33+2*i}], v[40:41]")
for i in range(8):
    a(f"v_cvt_pk_bf16_f32 v{32+i}, v{32+i}, v{32+i}")
a(f"ds_write_b128 v28, v[32:35] offset:{ACT}\nds_write_b128 v28, v[36:39] offset:{ACT+16}\ns_waitcnt lgkmcnt(0)")
a.label("L_S6_bar")
a(f"""v_lshrrev_b32 v26, 3, {vN}
v_mul_u32_u24 v26, 2112, v26
s_lshl_b32 s15, {sW}, 8
v_add_u32 v26, s15, v26
v_lshl_add_u32 v27, {vKg}, 4, v26
v_lshlrev_b32 v30, 4, v0
v_add_u32 v30, {RED}, v30
s_waitcnt vmcnt(0)
s_barrier
""")
for g in range(4):
    a(f"ds_read_b128 v[{40+4*g}:{43+4*g}], v27 offset:{ACT+64*g}")
a("s_waitcnt lgkmcnt(0)")
diag_mfma([(40 + k, 128 + 4 * k) for k in range(16)], 32)
a(f"""s_nop 7
ds_write_b128 v30, v[32:35]
s_waitcnt lgkmcnt(0)
s_barrier
s_cmp_lg_u32 {sW}, 0
s_cbranch_scc1 L_fin
""")
final_reduce8("v30", 32)
a(f"""v_lshrrev_b32 v27, 1, {vKg}
v_mul_u32_u24 v27, 2560, v27
v_lshl_add_u32 v27, {vN}, 5, v27
v_and_b32 v28, 1, {vKg}
v_lshl_add_u32 v27, v28, 4, v27
s_mul_i32 s14, s11, 5120
s_lshl_b32 s15, s12, 9
s_add_u32 s14, s14, s15
s_add_u32 s14, s14, {R6}
buffer_store_dwordx4 v[32:35], v27, {srd(WS)}, s14 offen sc1
""")
stamp(4)
a("s_branch L_fin")
a.label("L_S1b")
mksrd(SA, pWM, 640 * 7680)
mksrd(SB, pC, 2560)
a(f"""
s_sub_u32 s11, s10, 40              ; q
s_mul_i32 s13, {sW}, 80
v_lshl_add_u32 v24, {vKg}, 2, s13   ; row
v_lshrrev_b32 v25, 3, {vN}
v_mul_u32_u24 v26, 1280, v25
v_lshl_add_u32 v26, v24, 1, v26
v_mul_u32_u24 v27, 7680, v24
v_lshl_add_u32 v27, {vN}, 4, v27
s_lshl_b32 s14, s11, 8
s_add_u32 s14, s14, 2560
""")
for g in range(5):
    a(f"buffer_load_dwordx2 v[{40+2*g}:{41+2*g}], v26, {srd(SB)}, 0 offen offset:{g*32}")
for g in range(5):
    for u in range(4):
        k = g * 4 + u
        a(f"s_add_u32 s15, s14, {(g*16+u)*7680}\nbuffer_load_dwordx4 v[{128+4*k}:{131+4*k}], v27, {srd(SA)}, s15 offen nt")
a("s_waitcnt vmcnt(20)")
for g in range(5):
    silu_c4(40 + 2 * g, 64 + 4 * g, "v24")
a(f"v_lshlrev_b32 v30, 4, v0\nv_add_u32 v30, {RED}, v30\ns_waitcnt vmcnt(0)")
diag_mfma([(64 + k, 128 + 4 * k) for k in range(20)], 32)
a(f"""s_nop 7
ds_write_b128 v30, v[32:35]
s_waitcnt lgkmcnt(0)
s_barrier
s_cmp_lg_u32 {sW}, 0
s_cbranch_scc1 L_fin
""")
final_reduce8("v30", 32)
a(f"""v_lshrrev_b32 v27, 1, {vKg}
v_mul_u32_u24 v27, 10240, v27
v_lshl_add_u32 v27, {vN}, 5, v27
v_and_b32 v28, 1, {vKg}
v_lshl_add_u32 v27, v28, 4, v27
s_lshl_b32 s14, s11, 9
s_add_u32 s14, s14, {R8}
buffer_store_dwordx4 v[32:35], v27, {srd(WS)}, s14 offen sc1
""")
stamp(4)
a("s_branch L_fin")
a.label("L_S3")
mksrd(SA, pWUK, 512 * 8192)
a(f"""
s_sub_u32 s10, s10, 64              ; f3
s_lshr_b32 s11, s10, 1              ; h
s_and_b32 s12, s10, 1               ; ch
""")
a(f"""
s_lshl_b32 s13, s12, 8
s_lshl_b32 s14, {sW}, 5
s_add_u32 s13, s13, s14             ; c base
v_lshrrev_b32 v24, 2, {vN}
v_lshlrev_b32 v24, 3, v24
v_and_b32 v25, 3, {vN}
v_add3_u32 v24, v24, v25, s13
v_lshlrev_b32 v24, 13, v24
v_lshl_add_u32 v24, {vKg}, 4, v24
s_lshl_b32 s14, s11, 8
s_add_u32 s15, s14, 32768
""")
for t in range(2):
    for s in range(4):
        k = t * 4 + s
        a(f"buffer_load_dwordx4 v[{64+4*k}:{67+4*k}], v24, {srd(SA)}, s{14+t} offen offset:{s*64}")
get_nonce()
if "a" in ABL or "b" in ABL:
    a("s_waitcnt vmcnt(0)")
    stamp(7)
    a("s_branch L_fin")
a(f"""s_cmp_lg_u32 {sW}, 0
s_cbranch_scc1 L_S3_bar
v_lshlrev_b32 v26, 4, {vLane}
s_lshl_b32 s14, s11, 11
s_add_u32 s14, s14, {R2}
s_mov_b32 s5, 0
""")
a(f"v_lshlrev_b32 v27, 10, {vLane}\ns_mov_b64 exec, 3")
gather("L_H2gate", [f"buffer_load_dword v30, v27, {srd(WS)}, s14 offen offset:4 sc1"], [30], "v31", mode="tag", sleep=1)
gather("L_H2poll", [f"buffer_load_dwordx4 v[32:35], v26, {srd(WS)}, s14 offen sc1", f"buffer_load_dwordx4 v[36:39], v26, {srd(WS)}, s14 offen offset:1024 sc1"], [33, 35, 37, 39], "v28", mode="tag", vt2="v29")
stamp(1)
a(f"""v_lshlrev_b32 v40, 16, v32
v_lshlrev_b32 v41, 16, v34
v_and_b32 v42, 0xffff0000, v32
v_and_b32 v43, 0xffff0000, v34
v_lshlrev_b32 v44, 16, v36
v_lshlrev_b32 v45, 16, v38
v_and_b32 v46, 0xffff0000, v36
v_and_b32 v47, 0xffff0000, v38
v_pk_add_f32 v[40:41], v[40:41], v[44:45]
v_pk_add_f32 v[42:43], v[42:43], v[46:47]
v_cvt_pk_bf16_f32 v40, v40, v41
v_cvt_pk_bf16_f32 v42, v42, v43
v_lshlrev_b32 v26, 2, {vLane}
ds_write_b32 v26, v40 offset:{ACT}
ds_write_b32 v26, v42 offset:{ACT+320}
s_waitcnt lgkmcnt(0)
""")
a.label("L_S3_bar")
a(f"""v_and_b32 v26, 1, {vN}
v_mul_u32_u24 v27, 320, v26
v_lshl_add_u32 v27, {vKg}, 4, v27
v_lshlrev_b32 v28, 15, v26
v_lshl_add_u32 v28, {vKg}, 4, v28
s_lshl_b32 s14, s10, 9
s_lshl_b32 s15, {sW}, 6
s_add_u32 s14, s14, s15
s_add_u32 s14, s14, {R3}
s_waitcnt vmcnt(0)""")
stamp(7)
a(f"""
s_barrier
""")
for s in range(4):
    a(f"ds_read_b128 v[{40+4*s}:{43+4*s}], v27 offset:{ACT+64*s}")
for s in range(4):
    a(f"s_waitcnt lgkmcnt({3-s})")
    for t in range(2):
        k = t * 4 + s
        c = "0" if s == 0 else f"v[{32+4*t}:{35+4*t}]"
        a(f"v_mfma_f32_16x16x32_bf16 v[{32+4*t}:{35+4*t}], v[{64+4*k}:{67+4*k}], v[{40+4*s}:{43+4*s}], {c}")
SCL = 128 ** -0.5 * LOG2E
a(f"s_mov_b32 s15, 0x{f2u(SCL):08x}\ns_nop 6")
for i in range(8):
    a(f"v_mul_f32 v{32+i}, s15, v{32+i}")
for i in range(4):
    a(f"v_cvt_pk_bf16_f32 v{32+i}, v{32+2*i}, v{33+2*i}")
a(f"""s_mov_b32 s8, 0x00030003
s_mov_b32 s9, 0x00030003
s_mov_b64 exec, s[8:9]
buffer_store_dwordx4 v[32:35], v28, {srd(WS)}, s14 offen sc1
s_mov_b64 exec, -1
""")
stamp(2)
a(f"s_cmp_ge_u32 s10, {NFFN}\ns_cbranch_scc1 L_fin")
if ABL: a("s_branch L_fin")
late_trigger("L_trig3", False)
stamp(6)
mksrd(SA, pWG, 640 * 3456)
mksrd(SB, pWU, 640 * 3456)
mksrd(SC, pWD, 1728 * 1280)
mksrd(SD, pX, 2560)
a(f"""
s_mul_i32 s13, {sW}, 80
v_lshl_add_u32 v24, {vKg}, 2, s13
v_mul_u32_u24 v24, 3456, v24
v_and_b32 v25, 7, {vN}
v_lshl_add_u32 v24, v25, 4, v24
s_lshl_b32 s14, s10, 7
s_mov_b32 s8, 0x00ff00ff
s_mov_b32 s9, 0x00ff00ff
s_mov_b64 exec, s[8:9]
""")
for half, sr in ((0, SA), (1, SB)):
    if half: a("s_not_b64 exec, exec")
    for g in range(5):
        for u in range(4):
            k = g * 4 + u
            a(f"s_add_u32 s15, s14, {(g*16+u)*3456}\nbuffer_load_dwordx4 v[{64+4*k}:{67+4*k}], v24, {srd(sr)}, s15 offen nt")
a("s_mov_b64 exec, -1")
a(f"""s_cmp_ge_u32 {sW}, 5
s_cbranch_scc1 L_FFN_nod
s_lshl_b32 s13, s10, 6
v_lshl_add_u32 v24, {vKg}, 2, s13
v_mul_u32_u24 v24, 1280, v24
v_lshl_add_u32 v24, {vN}, 4, v24
s_lshl_b32 s14, {sW}, 8
""")
for g in range(4):
    for u in range(4):
        k = g * 4 + u
        a(f"buffer_load_dwordx4 v[{144+4*k}:{147+4*k}], v24, {srd(SC)}, s14 offen offset:{u*1280} nt")
    if g < 3: a("s_add_u32 s14, s14, 20480")
a(f"""v_cmp_le_u32 vcc, 160, v0
v_subrev_u32 v25, 160, v0
s_nop 0
v_cndmask_b32 v25, v0, v25, vcc     ; t%160
v_cndmask_b32 v26, 0, 1, vcc        ; b   (VOP3)
v_lshlrev_b32 v27, 3, v0            ; x offset = t*8
buffer_load_dwordx2 v[48:49], v27, {srd(SD)}, 0 offen
v_min_u32 v28, 59, {vLane}
v_lshlrev_b32 v28, 2, v28
s_mov_b32 s5, 0
""")
a(f"""v_mul_u32_u24 v28, 10240, v26
v_lshl_add_u32 v28, v25, 4, v28
v_lshrrev_b32 v29, 1, {vKg}
v_mul_u32_u24 v30, 10240, v29
v_lshl_add_u32 v30, {vN}, 5, v30
v_and_b32 v31, 1, {vKg}
v_lshl_add_u32 v30, v31, 4, v30
s_lshl_b32 s14, {sW}, 9
s_add_u32 s14, s14, {R8+7680}
s_mov_b32 s13, {R8}
s_mov_b32 s12, {R8+5120}
s_mov_b32 s5, 0
""")
gather("L_R8poll", [f"buffer_load_dwordx4 v[208:211], v28, {srd(WS)}, s13 offen sc1",
    f"buffer_load_dwordx4 v[212:215], v28, {srd(WS)}, s13 offen offset:2560 sc1",
    f"buffer_load_dwordx4 v[216:219], v28, {srd(WS)}, s12 offen sc1",
    f"buffer_load_dwordx4 v[220:223], v30, {srd(WS)}, s14 offen sc1"], list(range(208, 224)), "v31", sleep=8)
a(f"""v_lshlrev_b32 v50, 16, v48
v_and_b32 v51, 0xffff0000, v48
v_lshlrev_b32 v52, 16, v49
v_and_b32 v53, 0xffff0000, v49
v_add_f32 v216, 1.0, v216
v_add_f32 v217, 1.0, v217
v_add_f32 v218, 1.0, v218
v_add_f32 v219, 1.0, v219
v_lshlrev_b32 v27, 4, v0            ; R6 offset t*16
s_mov_b32 s5, 0
""")
stamp(3)
HB = [224, 228, 232, 236, 240, 244, 32, 36]
a(f"""v_mul_u32_u24 v31, 5120, {vLane}
s_lshl_b32 s13, {sW}, 10
s_add_u32 s13, s13, {R6}
s_mov_b64 exec, 0xff""")
gather("L_H6gate", [f"buffer_load_dword v32, v31, {srd(WS)}, s13 offen sc1"], [32], "v33", sleep=2)
lds_ = [f"s_mov_b32 s13, {R6}"]
for g in range(8):
    lds_.append(f"buffer_load_dwordx4 v[{HB[g]}:{HB[g]+3}], v27, {srd(WS)}, s13 offen sc1")
    if g < 7: lds_.append("s_add_u32 s13, s13, 5120")
gather("L_H6poll", lds_, [HB[g] + i for g in range(8) for i in range(4)], "v31")
stamp(4)
for g in (0, 2, 4, 6):
    a(f"v_pk_add_f32 v[{HB[g]}:{HB[g]+1}], v[{HB[g]}:{HB[g]+1}], v[{HB[g+1]}:{HB[g+1]+1}]\nv_pk_add_f32 v[{HB[g]+2}:{HB[g]+3}], v[{HB[g]+2}:{HB[g]+3}], v[{HB[g+1]+2}:{HB[g+1]+3}]")
for g0, g1 in ((0, 2), (4, 6), (0, 4)):
    a(f"v_pk_add_f32 v[{HB[g0]}:{HB[g0]+1}], v[{HB[g0]}:{HB[g0]+1}], v[{HB[g1]}:{HB[g1]+1}]\nv_pk_add_f32 v[{HB[g0]+2}:{HB[g0]+3}], v[{HB[g0]+2}:{HB[g0]+3}], v[{HB[g1]+2}:{HB[g1]+3}]")
for i in range(4):
    a(f"v_fmac_f32 v{50+i}, v{208+i}, v{224+i}")
X1L = MISC; STL = MISC + 5120
a(f"""ds_write_b128 v27, v[50:53] offset:{X1L}
v_add_f32 v32, v50, v51
v_add_f32 v33, v52, v53
v_add_f32 v32, v32, v33
v_mul_f32 v33, v50, v50
v_fmac_f32 v33, v51, v51
v_fmac_f32 v33, v52, v52
v_fmac_f32 v33, v53, v53
""")
for v in ("v32", "v33"):
    pass
for r in (8, 4, 2, 1):
    a(f"s_nop 0\nv_add_f32_dpp v32, v32, v32 row_ror:{r} row_mask:0xf bank_mask:0xf\nv_add_f32_dpp v33, v33, v33 row_ror:{r} row_mask:0xf bank_mask:0xf")
a(f"""v_mov_b32 v34, v32
v_mov_b32 v35, v33
s_nop 0
v_permlane16_swap_b32 v32, v34
v_permlane16_swap_b32 v33, v35
s_nop 0
v_add_f32 v32, v32, v34
v_add_f32 v33, v33, v35
v_lshrrev_b32 v34, 5, v0
v_lshlrev_b32 v34, 3, v34
ds_write_b64 v34, v[32:33] offset:{STL}
s_waitcnt lgkmcnt(0)
""")
a.label("L_FFN_nod")
a(f"""s_barrier
s_cmp_ge_u32 {sW}, 5
s_cbranch_scc1 L_FFN_bar2
v_mul_u32_u24 v34, 40, v26
ds_read_b64 v[32:33], v34 offset:{STL}
ds_read_b64 v[36:37], v34 offset:{STL+8}
ds_read_b64 v[38:39], v34 offset:{STL+16}
ds_read_b64 v[40:41], v34 offset:{STL+24}
ds_read_b64 v[42:43], v34 offset:{STL+32}
v_mul_u32_u24 v35, 2624, v26
v_lshl_add_u32 v35, v25, 4, v35
s_waitcnt lgkmcnt(0)
v_pk_add_f32 v[32:33], v[32:33], v[36:37]
v_pk_add_f32 v[38:39], v[38:39], v[40:41]
v_pk_add_f32 v[32:33], v[32:33], v[42:43]
v_pk_add_f32 v[32:33], v[32:33], v[38:39]
v_mul_f32 v32, 0x{f2u(1.0/640):08x}, v32      ; mean
v_mul_f32 v33, 0x{f2u(1.0/640):08x}, v33      ; E[x^2]
v_fma_f32 v33, -v32, v32, v33
v_max_f32 v33, 0, v33
v_add_f32 v33, 0x{f2u(1e-5):08x}, v33
v_rsq_f32 v33, v33
""")
for i in range(4):
    a(f"v_sub_f32 v{36+i}, v{50+i}, v32\nv_mul_f32 v{36+i}, v{36+i}, v33\nv_fma_f32 v{36+i}, v{36+i}, v{216+i}, v{212+i}\nv_cvt_pk_bf16_f32 v{36+i}, v{36+i}, v{36+i}")
a(f"ds_write_b128 v35, v[36:39] offset:{ACT}\ns_waitcnt lgkmcnt(0)")
a.label("L_FFN_bar2")
a(f"""v_lshrrev_b32 v27, 3, {vN}
v_mul_u32_u24 v28, 2624, v27
s_mul_i32 s15, {sW}, 320
v_add_u32 v28, s15, v28
v_lshl_add_u32 v28, {vKg}, 4, v28
v_lshlrev_b32 v30, 4, v0
s_waitcnt vmcnt(0)
s_barrier
""")
for g in range(5):
    a(f"ds_read_b128 v[{224+4*g}:{227+4*g}], v28 offset:{ACT+64*g}")
a("s_waitcnt lgkmcnt(0)")
diag_mfma([(224 + k, 64 + 4 * k) for k in range(20)], 32)
ACT2 = MISC + 6144
a(f"""; reader t<128: b=t>>6, f=t&63 : n'=f>>3 (gate), +8 (up)
v_bfe_u32 v28, v0, 3, 3
v_lshlrev_b32 v28, 4, v28
v_bfe_u32 v29, v0, 2, 1
v_lshl_add_u32 v28, v29, 8, v28
v_and_b32 v29, 3, v0
v_lshl_add_u32 v28, v29, 2, v28
v_bfe_u32 v29, v0, 6, 1
v_lshl_add_u32 v28, v29, 9, v28
ds_write_b128 v30, v[32:35] offset:{RED}
s_waitcnt lgkmcnt(0)
s_barrier
s_cmp_ge_u32 {sW}, 2
s_cbranch_scc1 L_FFN_bar4
""")
a(f"v_add_u32 v28, {RED}, v28")
for w in range(8):
    a(f"ds_read_b32 v{32+2*w}, v28 offset:{w*1024}\nds_read_b32 v{33+2*w}, v28 offset:{w*1024+128}")
a(f"""v_mul_u32_u24 v29, 320, v29
v_lshl_add_u32 v29, {vLane}, 2, v29
s_waitcnt lgkmcnt(0)
v_pk_add_f32 v[32:33], v[32:33], v[34:35]
v_pk_add_f32 v[36:37], v[36:37], v[38:39]
v_pk_add_f32 v[40:41], v[40:41], v[42:43]
v_pk_add_f32 v[44:45], v[44:45], v[46:47]
v_pk_add_f32 v[32:33], v[32:33], v[36:37]
v_pk_add_f32 v[40:41], v[40:41], v[44:45]
v_pk_add_f32 v[32:33], v[32:33], v[40:41]
""")
silu("v32", "v34")
a(f"""v_mul_f32 v32, v32, v33
v_cvt_pk_bf16_f32 v32, v32, v32
ds_write_b32 v29, v32 offset:{ACT2}
s_waitcnt lgkmcnt(0)
""")
a.label("L_FFN_bar4")
a(f"""s_barrier
s_cmp_ge_u32 {sW}, 5
s_cbranch_scc1 L_fin
v_mul_u32_u24 v28, 320, v27
v_lshl_add_u32 v28, {vKg}, 4, v28
""")
for g in range(4):
    a(f"ds_read_b128 v[{224+4*g}:{227+4*g}], v28 offset:{ACT2+64*g}")
a(f"""v_lshrrev_b32 v29, 1, {vKg}
v_mul_u32_u24 v29, 2560, v29
v_lshl_add_u32 v29, {vN}, 5, v29
v_and_b32 v31, 1, {vKg}
v_lshl_add_u32 v29, v31, 4, v29
s_lshl_b32 s14, {sW}, 9
v_add_u32 v29, s14, v29
ds_read_b128 v[36:39], v29 offset:{X1L}
s_waitcnt lgkmcnt(0)
""")
diag_mfma([(224 + k, 144 + 4 * k) for k in range(16)], 32)
a(f"""s_cmp_eq_u32 s10, 0
s_cselect_b32 s15, 1.0, 0
s_mul_i32 s14, s10, 5120
s_add_u32 s14, s14, {R7}
v_mul_f32 v36, s15, v36
v_mul_f32 v37, s15, v37
v_mul_f32 v38, s15, v38
v_mul_f32 v39, s15, v39
s_nop 1
v_fmac_f32 v36, v32, v220
v_fmac_f32 v37, v33, v221
v_fmac_f32 v38, v34, v222
v_fmac_f32 v39, v35, v223
buffer_store_dwordx4 v[36:39], v29, {srd(WS)}, s14 offen sc1
""")
stamp(5)

a.label("L_fin")
if STAMPS:
    stamp(15)
    a(f"""s_lshl_b32 s12, {sID}, 3
    s_add_u32 s12, s12, {sW}
    s_lshl_b32 s12, s12, 6
    s_add_u32 s12, s12, {STMP}
    v_lshlrev_b32 v24, 2, {vLane}
    s_mov_b64 exec, 0xffff
    buffer_store_dword {vST}, v24, {srd(WS)}, s12 offen""")
a.label("L_end")
a("s_endpgm")
a.label("L_code_end")

header = open("adaLN_cond__compressed_kv_cla__swiglu_ffn__decode.s.ref").read().split("; Override launch")[0]
open(OUT, "w").write(wrap(a.text(), 256, 512, 163840, header=header))
```

```python
import sys, math
from asmgen import Asm, wrap

STAMPS = "--stamps" in sys.argv
NOCLEAR = "--noclear" in sys.argv
NODMA = "--nodma" in sys.argv
ABL = [x for x in sys.argv if x.startswith("--abl")]
ABL = ABL[0][5:] if ABL else ""
OUT = [a for a in sys.argv[1:] if not a.startswith("--")]
OUT = OUT[0] if OUT else "k.s"

FL   = 0x0000
FL2  = 0x60000+0x1c000
R1   = 0x1000
R2   = 0x10000
R3   = 0x20000
R4S  = 0x30000
R5   = 0x38000
R6   = 0x48000
R8   = 0x52000
R7   = 0x58000
SMALL0, SMALL1 = 0x20000, 0x7A000
R4   = 0x100000
R4ST = 32768 + 256
STMP = 0x800000
WS_SIZE = 268435456
P1 = 10
NFFN = 27
LOG2E = 1.4426950408889634
import struct
def f2u(x): return struct.unpack("<I", struct.pack("<f", x))[0]

a = Asm()
sID, sW, sN = "s2", "s3", "s4"
pX, pCKV, pWQ, pWUK, pWUV, pWO, pWG, pWU, pWD, pC, pWM, pOUT, pDBG, pWS = 16, 18, 20, 22, 24, 26, 30, 32, 34, 36, 38, 40, 42, 44
WS, SA, SB, SC, SD = 48, 52, 56, 60, 64
def srd(n): return "s[%d:%d]" % (n, n + 3)
vLane, vN, vKg = "v1", "v2", "v3"
MK = [4, 5, 6, 7]
ASET = [8, 12]
vST = "v255"

def mksrd(n, p, size):
    a(f"s_mov_b32 s{n}, s{p}\ns_mov_b32 s{n+1}, s{p+1}\ns_mov_b32 s{n+2}, {size}\ns_mov_b32 s{n+3}, 0x00020000")

def stamp(k):
    if STAMPS:
        a(f"s_memrealtime s[90:91]\ns_waitcnt lgkmcnt(0)\nv_writelane_b32 {vST}, s90, {k}")

EPOCH = 0x800
def get_nonce():
    a(f"""s_waitcnt lgkmcnt(0)
    s_mul_i32 {sN}, s46, 1664525
    s_add_u32 {sN}, {sN}, 1013904223""")

def check_flags_vec(name, vaddr, soff, imm, vtmp, sleep=2):
    gather(name, [f"buffer_load_dword {vtmp}, {vaddr}, {srd(WS)}, {soff} offen offset:{imm} sc1"], [int(vtmp[1:])], vtmp, mode="tag", sleep=sleep)

def allreduce(op, v, t):
    for r in (8, 4, 2, 1):
        a(f"s_nop 1\n{op}_dpp {v}, {v}, {v} row_ror:{r} row_mask:0xf bank_mask:0xf")
    for sw in ("v_permlane16_swap_b32", "v_permlane32_swap_b32"):
        a(f"v_mov_b32 {t}, {v}\ns_nop 1\n{sw} {v}, {t}\ns_nop 1\n{op} {v}, {v}, {t}")

def diag_mfma(items, acc, first=True):
    def ands(k):
        s = ASET[k % 2]
        for t in range(4):
            a(f"v_and_b32 v{s+t}, v{items[k][0]}, v{MK[t]}")
    ands(0)
    for k in range(len(items)):
        if k + 1 < len(items):
            ands(k + 1)
        else:
            a("s_nop 1")
        s = ASET[k % 2]; wv = items[k][1]
        c = "0" if (first and k == 0) else f"v[{acc}:{acc+3}]"
        a(f"v_mfma_f32_16x16x32_bf16 v[{acc}:{acc+3}], v[{s}:{s+3}], v[{wv}:{wv+3}], {c}")

def silu(v, t):
    a(f"""v_mul_f32 {t}, 0x{f2u(-LOG2E):08x}, {v}
    v_exp_f32 {t}, {t}
    s_nop 0
    v_add_f32 {t}, 1.0, {t}
    v_rcp_f32 {t}, {t}
    s_nop 0
    v_mul_f32 {v}, {v}, {t}""")

def silu_c4(src, dst, t):
    a(f"""v_lshlrev_b32 v{dst}, 16, v{src}
    v_and_b32 v{dst+1}, 0xffff0000, v{src}
    v_lshlrev_b32 v{dst+2}, 16, v{src+1}
    v_and_b32 v{dst+3}, 0xffff0000, v{src+1}""")
    for i in range(4):
        silu(f"v{dst+i}", t)
    for i in range(4):
        a(f"v_cvt_pk_bf16_f32 v{dst+i}, v{dst+i}, v{dst+i}")

def timeout(L):
    a(f"s_add_u32 s5, s5, 1\ns_cmp_gt_u32 s5, 200000\ns_cbranch_scc1 {L}_x")

def gather(name, loads, regs, vt, mode="sent", vt2=None, first_issued=False, first_wait=0, sleep=1):
    a("s_mov_b32 s5, 0")
    if first_issued:
        a(f"s_waitcnt vmcnt({first_wait})\ns_branch {name}_c")
    else:
        a(f"s_branch {name}_l")
    a.label(name)
    if sleep: a(f"s_sleep {sleep}")
    a.label(name + "_l")
    for l in loads: a(l)
    a("s_waitcnt vmcnt(0)")
    a.label(name + "_c")
    def tree(op3, op2, dst):
        r = list(regs)
        if len(r) == 1:
            a(f"v_mov_b32 {dst}, v{r[0]}"); return
        if len(r) == 2:
            a(f"{op2} {dst}, v{r[0]}, v{r[1]}"); return
        a(f"{op3} {dst}, v{r[0]}, v{r[1]}, v{r[2]}"); r = r[3:]
        while len(r) >= 2:
            a(f"{op3} {dst}, {dst}, v{r[0]}, v{r[1]}"); r = r[2:]
        if r: a(f"{op2} {dst}, {dst}, v{r[0]}")
    if mode == "sent":
        tree("v_max3_u32", "v_max_u32", vt)
        timeout(name)
        a(f"v_cmp_eq_u32 vcc, -1, {vt}")
    else:
        if len(regs) == 1:
            timeout(name)
            a(f"v_cmp_ne_u32 vcc, {sN}, v{regs[0]}")
        else:
            tree("v_max3_u32", "v_max_u32", vt); tree("v_min3_u32", "v_min_u32", vt2)
            timeout(name)
            a(f"v_xor_b32 {vt}, {sN}, {vt}\nv_xor_b32 {vt2}, {sN}, {vt2}\nv_or_b32 {vt}, {vt}, {vt2}\nv_cmp_ne_u32 vcc, 0, {vt}")
    a(f"s_mov_b64 exec, vcc\ns_cbranch_execnz {name}")
    a.label(name + "_x")
    a("s_mov_b64 exec, -1")

def late_trigger(name, sib):
    a(f"""s_barrier
    s_cmp_lg_u32 {sW}, 0
    s_cbranch_scc1 {name}_x
    s_sub_u32 s14, {sID}, 128
    s_lshl_b32 s15, s14, 6
    s_add_u32 s15, s15, {FL2}
    v_mov_b32 v26, s15
    s_mov_b64 exec, 1""")
    if sib:
        a(f"""s_xor_b32 s14, s14, 1
        s_lshl_b32 s14, s14, 10
        s_add_u32 s14, s14, {R2+1020}
        s_mov_b64 exec, 2
        v_mov_b32 v26, s14
        s_mov_b64 exec, 3""")
    check_flags_vec(name, "v26", "0", 0, "v27", sleep=4)
    a("s_barrier")

a.label("L_code_start")
a(f"""
s_getpc_b64 s[6:7]
s_cmp_ge_u32 {sID}, 256
s_cbranch_scc1 L_end
s_load_dwordx16 s[16:31], s[0:1], 0
s_load_dwordx8 s[32:39], s[0:1], 64
s_load_dwordx4 s[40:43], s[0:1], 96
s_load_dwordx2 s[44:45], s[0:1], 112
s_memrealtime s[8:9]
s_memtime s[92:93]
v_and_b32 {vLane}, 63, v0
v_lshrrev_b32 v24, 6, v0
v_and_b32 {vN}, 15, v0
v_readfirstlane_b32 {sW}, v24
v_bfe_u32 {vKg}, v0, 4, 2
""")
a(f"""
s_lshr_b32 s5, {sID}, 3
s_lshl_b32 s5, s5, 3
s_add_u32 s5, s5, {sW}
s_and_b32 s5, s5, 63
s_lshl_b32 s5, s5, 10
v_lshlrev_b32 v25, 4, {vLane}
v_add_u32 v25, s5, v25
v_min_u32 v25, L_code_end-L_code_start-32, v25
""")
if "p" not in ABL: a("global_load_dwordx4 v[248:251], v25, s[6:7]")
else: a("global_load_dword v248, v25, s[6:7]".replace("v25", "v1"))
if STAMPS:
    a(f"v_mov_b32 {vST}, 0")
a(f"""
v_and_b32 v24, 1, {vN}
v_lshlrev_b32 v24, 4, v24
v_lshlrev_b32 v24, v24, v25
""".replace("v_lshlrev_b32 v24, v24, v25", "v_mov_b32 v25, 0xffff\nv_lshlrev_b32 v24, v24, v25"))
a(f"v_bfe_u32 v25, {vN}, 1, 2")
for t in range(4):
    a(f"v_cmp_eq_u32 vcc, {t}, v25\ns_nop 1\nv_cndmask_b32 v{MK[t]}, 0, v24, vcc")
a("s_waitcnt lgkmcnt(0)")
if STAMPS:
    a(f"v_writelane_b32 {vST}, s8, 0")
a(f"s_load_dword s46, s[{pWS}:{pWS+1}], {EPOCH}")
mksrd(WS, pWS, WS_SIZE)
a(f"s_cmp_ge_u32 {sID}, 128\ns_cbranch_scc1 L_F")

QB = 131072
a(f"s_cmp_ge_u32 {sID}, {10*P1}\ns_cbranch_scc1 L_A_main")
a(f"""s_lshl_b32 s12, {sID}, 13
s_add_u32 s12, s12, {SMALL0}
v_lshlrev_b32 v24, 4, v0
v_add_u32 v24, s12, v24
v_mov_b32 v32, -1
v_mov_b32 v33, -1
v_mov_b32 v34, -1
v_mov_b32 v35, -1
s_cmp_ge_u32 s12, {SMALL1}
s_cbranch_scc1 L_S1_noclr
buffer_store_dwordx4 v[32:35], v24, {srd(WS)}, 0 offen sc1
""")
a.label("L_S1_noclr")
mksrd(SA, pWM, 640 * 7680)
mksrd(SB, pC, 2560)
mksrd(SC, pX, 2560)
a(f"""
s_mul_i32 s10, {sID}, 205
s_lshr_b32 s10, s10, 11            ; p
s_mul_i32 s11, s10, 10
s_sub_u32 s11, {sID}, s11          ; j
s_cmp_ge_u32 {sW}, 4
s_cbranch_scc1 L_S1_other
s_lshl_b32 s12, s10, 6
s_lshl_b32 s13, {sW}, 4
s_add_u32 s12, s12, s13            ; rbase
v_lshl_add_u32 v24, {vKg}, 2, s12  ; row
v_lshrrev_b32 v25, 3, {vN}         ; bsel
v_mul_u32_u24 v26, 1280, v25
v_lshl_add_u32 v26, v24, 1, v26    ; c offset
buffer_load_dwordx2 v[28:29], v26, {srd(SB)}, 0 offen
v_mul_u32_u24 v27, 7680, v24
v_mul_u32_u24 v25, 1152, v25
v_lshl_add_u32 v25, {vN}, 4, v25
s_lshl_b32 s13, s11, 7
v_add3_u32 v27, v27, v25, s13
buffer_load_dwordx4 v[64:67], v27, {srd(SA)}, 0 offen nt
s_movk_i32 s13, 7680
buffer_load_dwordx4 v[68:71], v27, {srd(SA)}, s13 offen nt
s_movk_i32 s13, 15360
buffer_load_dwordx4 v[72:75], v27, {srd(SA)}, s13 offen nt
s_movk_i32 s13, 23040
buffer_load_dwordx4 v[76:79], v27, {srd(SA)}, s13 offen nt
v_lshlrev_b32 v30, 4, v0
v_add_u32 v30, {QB}, v30
s_waitcnt vmcnt(4)
""")
silu_c4(28, 16, "v24")
a("s_waitcnt vmcnt(0)")
stamp(1)
diag_mfma([(16 + u, 64 + 4 * u) for u in range(4)], 32)
a("s_nop 7\nds_write_b128 v30, v[32:35]")
a("s_branch L_S1_bar")
a.label("L_S1_other")
a(f"s_cmp_ge_u32 {sW}, 6\ns_cbranch_scc1 L_S1_bar")
a(f"""
s_sub_u32 s12, {sW}, 4
s_mul_i32 s13, s12, 1280
v_lshlrev_b32 v24, 2, {vLane}
buffer_load_dword v32, v24, {srd(SC)}, s13 offen
buffer_load_dword v33, v24, {srd(SC)}, s13 offen offset:256
buffer_load_dword v34, v24, {srd(SC)}, s13 offen offset:512
buffer_load_dword v35, v24, {srd(SC)}, s13 offen offset:768
buffer_load_dword v36, v24, {srd(SC)}, s13 offen offset:1024
s_lshl_b32 s14, s11, 7
s_add_u32 s13, s13, s14
v_lshlrev_b32 v25, 1, {vLane}
buffer_load_ushort v37, v25, {srd(SC)}, s13 offen
s_waitcnt vmcnt(0)
""")
for i in range(5):
    a(f"v_lshlrev_b32 v{40+2*i}, 16, v{32+i}\nv_and_b32 v{41+2*i}, 0xffff0000, v{32+i}")
a("v_add_f32 v26, v40, v41")
for i in range(2, 10):
    a(f"v_add_f32 v26, v26, v{40+i}")
allreduce("v_add_f32", "v26", "v27")
a(f"v_mul_f32 v26, 0x{f2u(1.0/640):08x}, v26       ; mean")
a("v_sub_f32 v40, v40, v26\nv_mul_f32 v28, v40, v40")
for i in range(1, 10):
    a(f"v_sub_f32 v{40+i}, v{40+i}, v26\nv_fmac_f32 v28, v{40+i}, v{40+i}")
allreduce("v_add_f32", "v28", "v27")
a(f"""
v_mov_b32 v27, 0x{f2u(1e-5):08x}
v_fmac_f32 v27, 0x{f2u(1.0/640):08x}, v28
v_rsq_f32 v27, v27
v_lshlrev_b32 v37, 16, v37
v_sub_f32 v37, v37, v26
v_mul_f32 v37, v37, v27
s_lshl_b32 s12, s12, 8
s_add_u32 s12, s12, {QB+4096}
v_add_u32 v24, s12, v24
ds_write_b32 v24, v37
s_waitcnt lgkmcnt(0)
""")
a.label("L_S1_bar")
get_nonce()
a(f"s_waitcnt vmcnt(0)\ns_barrier\ns_cmp_lg_u32 {sW}, 0\ns_cbranch_scc1 L_S1_end")
a(f"""
v_lshrrev_b32 v24, 3, {vLane}        ; n'
v_bfe_u32 v25, {vLane}, 2, 1         ; jj>>2
v_and_b32 v26, 3, {vLane}
v_lshlrev_b32 v24, 4, v24
v_lshl_add_u32 v24, v25, 8, v24
v_lshl_add_u32 v24, v26, 2, v24
v_add_u32 v24, {QB}, v24
v_lshlrev_b32 v25, 2, {vLane}
v_add_u32 v25, {QB+4096}, v25
""")
for w in range(4):
    for b in range(2):
        r = 32 + (w * 2 + b) * 2
        if w * 1024 + b * 512 + 128 < 1024:
            a(f"ds_read2_b32 v[{r}:{r+1}], v24 offset0:{(w*1024+b*512)//4} offset1:{(w*1024+b*512+128)//4}")
        else:
            a(f"ds_read_b32 v{r}, v24 offset:{w*1024+b*512}\nds_read_b32 v{r+1}, v24 offset:{w*1024+b*512+128}")
a("ds_read_b32 v48, v25\nds_read_b32 v49, v25 offset:256")
a(f"""
s_mul_i32 s12, s10, 640
s_lshl_b32 s13, s11, 6
s_add_u32 s12, s12, s13
s_lshl_b32 s12, s12, 3
s_add_u32 s12, s12, {R1}
v_lshlrev_b32 v26, 3, {vLane}
s_cmp_eq_u32 s10, 0
s_cselect_b32 s13, 1.0, 0
s_waitcnt lgkmcnt(0)
""")
for b in range(2):
    for x in range(2):
        r0 = 32 + b * 2 + x
        a(f"v_add_f32 v{r0}, v{r0}, v{r0+4}\nv_add_f32 v{r0+8}, v{r0+8}, v{r0+12}\nv_add_f32 v{r0}, v{r0}, v{r0+8}")
a(f"""
v_add_f32 v33, s13, v33
v_add_f32 v35, s13, v35
v_fmac_f32 v32, v48, v33
v_fmac_f32 v34, v49, v35
v_cvt_pk_bf16_f32 v32, v32, v34
v_mov_b32 v33, {sN}
buffer_store_dwordx2 v[32:33], v26, {srd(WS)}, s12 offen sc1
""")
stamp(2)
a.label("L_S1_end")
a("s_barrier")

a.label("L_A_main")
CLR = "" if NOCLEAR else "\n".join(f"buffer_store_dwordx4 v[32:35], v56, {srd(WS)}, s{68+i} offen sc1" for i in range(4))
mksrd(SA, pCKV, 16777216)
mksrd(SB, pWUV, 512 * 8192)
a(f"""
s_lshr_b32 s10, {sID}, 6            ; b
s_and_b32 s11, {sID}, 63            ; chunk
v_and_b32 v24, 31, {vLane}          ; head / l31
v_lshrrev_b32 v25, 5, {vLane}       ; hf
; O store address v56: lane -> head = l/8 (+8i), piece = l%8
s_lshr_b32 s12, {sW}, 1             ; cq
s_mul_i32 s12, s12, {R4ST}
s_lshl_b32 s13, {sID}, 8            ; (b*64+chunk)*256
s_add_u32 s12, s12, s13
s_and_b32 s13, {sW}, 1
s_lshl_b32 s13, s13, 7
s_add_u32 s12, s12, s13
s_add_u32 s68, s12, {R4}
s_add_u32 s69, s68, {32*R4ST}
s_add_u32 s70, s68, {64*R4ST}
s_add_u32 s71, s68, {96*R4ST}
v_lshrrev_b32 v56, 3, {vLane}
v_mul_u32_u24 v56, {4*R4ST}, v56
v_and_b32 v27, 7, {vLane}
v_lshl_add_u32 v56, v27, 4, v56
v_mov_b32 v32, -1
v_mov_b32 v33, -1
v_mov_b32 v34, -1
v_mov_b32 v35, -1
{CLR}
s_lshl_b32 s12, {sID}, 3
s_add_u32 s12, s12, {R4S}
v_lshlrev_b32 v57, 10, v24
v_add_u32 v57, s12, v57
""")
a(f"""
s_lshl_b32 s12, {sID}, 7            ; (b*64+chunk)*128
s_lshl_b32 s13, {sW}, 4
s_add_u32 s12, s12, s13
s_lshl_b32 s12, s12, 10
s_lshl_b32 s13, {sW}, 14
v_lshlrev_b32 v26, 4, {vLane}
""")
def fsw(k): return ((k & 3) << 2) | ((k >> 2) & 3)
a(f"""v_and_b32 v62, 1, {vLane}
v_lshlrev_b32 v62, 10, v62
s_and_b32 s9, {sID}, 31
s_lshl_b32 s9, s9, 11
s_lshl_b32 s14, {sW}, 7
s_add_u32 s9, s9, s14
s_add_u32 s9, s9, {R2}""")
for r in range(16):
    if r % 4 == 0:
        a(f"s_add_u32 s14, s13, {r*1024}\ns_mov_b32 m0, s14\ns_add_u32 s15, s12, {r*1024}")
    t = 27 + (r % 2)
    a(f"v_xor_b32 v{t}, {fsw(r)*16}, v26")
    a(f"buffer_load_dwordx4 v{t}, {srd(SA)}, s15 offen offset:{(r%4)*1024} nt lds")
    if r == 11:
        a(f"buffer_load_dword v61, v62, {srd(WS)}, s9 offen offset:4 sc1")
stamp(3)
if ABL:
    a("s_waitcnt vmcnt(0)")
    stamp(4)
    a("s_branch L_fin")
get_nonce()
a(f"""
v_and_b32 v27, 3, {vLane}
v_lshlrev_b32 v27, 2, v27
v_bfe_u32 v28, {vLane}, 2, 2
v_or_b32 v27, v27, v28              ; f(l%16)
v_xor_b32 v27, v27, v25             ; ^ kg2
v_lshlrev_b32 v27, 4, v27
v_lshl_or_b32 v27, v24, 10, v27     ; l31*1024 | x0
s_lshl_b32 s12, {sW}, 15
""")
for t8 in range(8):
    a(f"v_xor_b32 v{72+t8}, {t8<<5}, v27\nv_add_u32 v{64+t8}, s12, v{72+t8}\nv_add_u32 v{72+t8}, {QB}, v{72+t8}")
a(f"""
v_lshrrev_b32 v27, 2, {vN}          ; r
v_lshrrev_b32 v28, 1, {vKg}         ; kg
v_and_b32 v29, 1, {vKg}             ; G&1
v_lshl_add_u32 v30, v28, 3, v27
v_lshlrev_b32 v30, 10, v30
v_bfe_u32 v31, {vN}, 1, 1           ; q>>1
v_lshl_add_u32 v31, v29, 1, v31     ; 2(G&1) + (q>>1)
s_and_b32 s12, {sW}, 1
s_lshl_b32 s12, s12, 3
v_add_u32 v31, s12, v31
v_lshlrev_b32 v27, 2, v27
v_lshl_or_b32 v27, v28, 1, v27      ; f(e=0) = r<<2 | 2kg
v_xor_b32 v31, v31, v27
v_lshlrev_b32 v31, 4, v31
v_and_b32 v27, 1, {vN}
v_lshlrev_b32 v27, 3, v27
v_add3_u32 v30, v30, v31, v27
s_lshr_b32 s12, {sW}, 1
s_lshl_b32 s12, s12, 8
v_add_u32 v30, s12, v30
""")
for mt in range(2):
    for e in range(2):
        r = 80 + mt * 2 + e
        a(f"v_xor_b32 v{r}, {(mt*64) ^ (e*16) ^ (e*4096)}, v30\nv_add_u32 v{r+4}, 0x10000, v{r}")
a(f"""
s_lshl_b32 s12, s10, 5
s_lshl_b32 s13, {sW}, 2
s_add_u32 s12, s12, s13
s_lshl_b32 s12, s12, 10
s_add_u32 s12, s12, {R3}
s_and_b32 s14, {sW}, 3
v_xor_b32 v27, s14, {vLane}
v_lshlrev_b32 v27, 4, v27
s_lshl_b32 s13, s13, 10
s_add_u32 s13, s13, {QB}
v_add_u32 v27, s13, v27
s_mov_b32 s5, 0
""")
a(f"""
s_and_b32 s8, {sID}, 3              ; cq
s_lshl_b32 s8, s8, 7
s_lshl_b32 s13, {sW}, 4
s_add_u32 s8, s8, s13
v_lshl_add_u32 v63, {vKg}, 2, s8
v_lshlrev_b32 v63, 13, v63
v_lshl_add_u32 v63, {vN}, 4, v63
s_lshr_b32 s8, {sID}, 2
s_lshl_b32 s8, s8, 8
""")
a(f"s_waitcnt vmcnt(4)")
a(f"""s_cmp_lg_u32 {sW}, 0
s_cbranch_scc1 L_A_notrig
s_lshl_b32 s14, {sID}, 6
s_add_u32 s14, s14, {FL2}
v_mov_b32 v28, {sN}
v_mov_b32 v29, s14
s_mov_b64 exec, 1
buffer_store_dword v28, v29, {srd(WS)}, 0 offen sc1
s_mov_b64 exec, -1""")
a.label("L_A_notrig")
a(f"v_cmp_ne_u32 vcc, {sN}, v61\ns_cbranch_vccz L_Qflag_x")
check_flags_vec("L_Qflag", "v62", "s9", 4, "v61")
a("s_mov_b32 s5, 0")
for u in range(4):
    a(f"buffer_load_dwordx4 v[{32+4*u}:{35+4*u}], v26, {srd(WS)}, s12 offen offset:{u*1024} sc1")
for u in range(4):
    a(f"buffer_load_dwordx4 v[{224+4*u}:{227+4*u}], v63, {srd(SB)}, s8 offen nt")
    if u < 3: a("s_add_u32 s8, s8, 8192")
gather("L_Qpoll", [f"buffer_load_dwordx4 v[{32+4*u}:{35+4*u}], v26, {srd(WS)}, s12 offen offset:{u*1024} sc1" for u in range(4)],
       list(range(32, 48)), "v28", first_issued=True, first_wait=4, sleep=2)
stamp(4)
for u in range(4):
    a(f"v_xor_b32 v28, {u<<6}, v27\nds_write_b128 v28, v[{32+4*u}:{35+4*u}] offset:{u*1024}")
a("s_waitcnt lgkmcnt(0)\ns_barrier")
TR0 = 128
def tr_reads():
    for t in range(8):
        for mt in range(2):
            for e in range(2):
                ar = 80 + mt * 2 + e + (4 if t >= 4 else 0)
                d = TR0 + (t * 2 + mt) * 4 + e * 2
                a(f"ds_read_b64_tr_b16 v[{d}:{d+1}], v{ar} offset:{(t%4)*16384}")
a(f"s_cmp_ge_u32 {sW}, 4\ns_cbranch_scc1 L_A_noqk")
AF, BF, SACC = 96, 112, 192
def qk_read(t):
    s = t % 4
    a(f"ds_read_b128 v[{AF+4*s}:{AF+4*s+3}], v{64+t%8} offset:{(t//8)*256}")
    a(f"ds_read_b128 v[{BF+4*s}:{BF+4*s+3}], v{72+t%8} offset:{(t//8)*256}")
for t in range(4): qk_read(t)
for t in range(32):
    out = min(3, 31 - t) * 2
    a(f"s_waitcnt lgkmcnt({out})")
    s = t % 4
    c = "0" if t == 0 else f"v[{SACC}:{SACC+15}]"
    a(f"v_mfma_f32_32x32x16_bf16 v[{SACC}:{SACC+15}], v[{AF+4*s}:{AF+4*s+3}], v[{BF+4*s}:{BF+4*s+3}], {c}")
    if t + 4 < 32: qk_read(t + 4)
tr_reads()
a(f"v_max3_f32 v27, v{SACC}, v{SACC+1}, v{SACC+2}")
for i in range(3, 15, 2):
    a(f"v_max3_f32 v27, v27, v{SACC+i}, v{SACC+i+1}")
a(f"""v_max_f32 v27, v27, v{SACC+15}
v_mov_b32 v28, v27
s_nop 1
v_permlane32_swap_b32 v27, v28
s_nop 1
v_max_f32 v27, v27, v28
s_lshl_b32 s12, {sW}, 2
v_lshlrev_b32 v29, 4, v24
v_add_u32 v29, {QB+9216}, v29       ; MX[head][4]
v_add_u32 v30, s12, v29
""")
stamp(5)
a("s_barrier\nds_write_b32 v30, v27\ns_waitcnt lgkmcnt(0)\ns_barrier")
a(f"""ds_read_b128 v[32:35], v29
v_mul_u32_u24 v31, 272, v24
v_lshl_add_u32 v31, v25, 3, v31
s_lshl_b32 s12, {sW}, 6
s_add_u32 s12, s12, {QB}
v_add_u32 v31, s12, v31
s_waitcnt lgkmcnt(0)
v_max3_f32 v27, v32, v33, v34
v_max_f32 v27, v27, v35
""")
for i in range(16):
    a(f"v_sub_f32 v{SACC+i}, v{SACC+i}, v27")
for i in range(16):
    a(f"v_exp_f32 v{SACC+i}, v{SACC+i}")
a("s_nop 0")
for g in range(4):
    a(f"v_cvt_pk_bf16_f32 v{32+2*g}, v{SACC+4*g}, v{SACC+4*g+1}\nv_cvt_pk_bf16_f32 v{33+2*g}, v{SACC+4*g+2}, v{SACC+4*g+3}")
    a(f"ds_write_b64 v31, v[{32+2*g}:{33+2*g}] offset:{g*16}")
a(f"v_add_f32 v28, v{SACC}, v{SACC+1}")
for i in range(2, 16):
    a(f"v_add_f32 v28, v28, v{SACC+i}")
a(f"""v_mov_b32 v40, v28
s_nop 1
v_permlane32_swap_b32 v28, v40
s_nop 1
v_add_f32 v28, v28, v40
ds_write_b32 v30, v28 offset:512
s_waitcnt lgkmcnt(0)
s_barrier
s_cmp_lg_u32 {sW}, 0
s_cbranch_scc1 L_A_pv
ds_read_b128 v[32:35], v29 offset:512
s_waitcnt lgkmcnt(0)
v_add_f32 v32, v32, v33
v_add_f32 v34, v34, v35
v_add_f32 v28, v32, v34
v_mov_b32 v32, v27
v_mov_b32 v33, v28
buffer_store_dwordx2 v[32:33], v57, {srd(WS)}, 0 offen sc1
s_branch L_A_pv
""")
a.label("L_A_noqk")
tr_reads()
a("s_barrier\ns_barrier\ns_waitcnt lgkmcnt(0)\ns_barrier")
a.label("L_A_pv")
stamp(6)
PF, OACC = 96, 192
a(f"""v_mul_u32_u24 v31, 272, v24
v_lshl_add_u32 v31, v25, 4, v31
v_add_u32 v31, {QB}, v31
""")
for t in range(8):
    a(f"ds_read_b128 v[{PF+4*t}:{PF+4*t+3}], v31 offset:{t*32}")
for t in range(8):
    a(f"s_waitcnt lgkmcnt({7-t})")
    for mt in range(2):
        d = TR0 + (t * 2 + mt) * 4; o = OACC + 16 * mt
        c = "0" if t == 0 else f"v[{o}:{o+15}]"
        a(f"v_mfma_f32_32x32x16_bf16 v[{o}:{o+15}], v[{d}:{d+3}], v[{PF+4*t}:{PF+4*t+3}], {c}")
a(f"""v_mul_u32_u24 v27, 144, v24
v_lshl_add_u32 v27, v25, 3, v27
s_mul_i32 s13, {sW}, 4608
v_add_u32 v27, s13, v27
v_lshrrev_b32 v28, 3, {vLane}
v_mul_u32_u24 v28, 144, v28
v_and_b32 v29, 7, {vLane}
v_lshl_add_u32 v28, v29, 4, v28
v_add_u32 v28, s13, v28
s_nop 1
""")
for mt in range(2):
    o = OACC + 16 * mt
    for g in range(4):
        r = 32 + (mt * 4 + g) * 2
        a(f"v_cvt_pk_bf16_f32 v{r}, v{o+4*g}, v{o+4*g+1}\nv_cvt_pk_bf16_f32 v{r+1}, v{o+4*g+2}, v{o+4*g+3}")
        a(f"ds_write_b64 v27, v[{r}:{r+1}] offset:{mt*64+g*16}")
a("s_waitcnt lgkmcnt(0)")
for i in range(4):
    a(f"ds_read_b128 v[{32+4*i}:{35+4*i}], v28 offset:{i*1152}")
for i in range(4):
    a(f"s_waitcnt lgkmcnt({3-i})\nbuffer_store_dwordx4 v[{32+4*i}:{35+4*i}], v56, {srd(WS)}, s{68+i} offen sc1")
stamp(7)
a(f"""
s_lshr_b32 s10, {sW}, 2             ; b'
s_lshr_b32 s11, {sID}, 2            ; h
s_lshl_b32 s12, s10, 9
s_lshl_b32 s13, s11, 10
s_add_u32 s12, s12, s13
s_add_u32 s12, s12, {R4S}
v_lshlrev_b32 v27, 3, {vLane}
s_mul_i32 s13, {sID}, {R4ST}
s_lshl_b32 s14, {sW}, 12
s_add_u32 s13, s13, s14
s_add_u32 s13, s13, {R4}
s_mov_b32 s5, 0
""")
gather("L_S5stat", [f"buffer_load_dwordx2 v[32:33], v27, {srd(WS)}, s12 offen sc1"], [32, 33], "v28")
S5L = [f"buffer_load_dwordx4 v[{64+4*u}:{67+4*u}], v26, {srd(WS)}, s13 offen offset:{u*1024} sc1" for u in range(4)]
for l in S5L: a(l)
a("v_mov_b32 v34, v32")
allreduce("v_max_f32", "v34", "v35")
a("v_sub_f32 v32, v32, v34\nv_exp_f32 v32, v32\ns_nop 0\nv_mul_f32 v33, v33, v32")
allreduce("v_add_f32", "v33", "v35")
a(f"""v_rcp_f32 v33, v33
s_nop 0
v_mul_f32 v32, v32, v33
v_cvt_pk_bf16_f32 v33, v32, v32
v_and_b32 v34, 0xffff0000, v33
v_sub_f32 v34, v32, v34
v_cvt_pk_bf16_f32 v33, v32, v34
s_and_b32 s14, {sW}, 3
s_lshl_b32 s14, s14, 4
v_add_u32 v35, s14, {vKg}
v_lshlrev_b32 v35, 2, v35
v_cmp_gt_u32 vcc, 8, {vN}
v_mov_b32 v36, 0x03020302
v_mov_b32 v37, 0x01000100
v_cndmask_b32 v36, v36, v37, vcc    ; selector
""")
for u in range(4):
    a(f"ds_bpermute_b32 v{16+u}, v35, v33 offset:{u*16}")
a("s_waitcnt lgkmcnt(0)")
for u in range(4):
    a(f"v_perm_b32 v{16+u}, v{16+u}, v{16+u}, v36")
gather("L_S5data", S5L, list(range(64, 80)), "v28", first_issued=True, first_wait=0)
stamp(8)
RED5 = QB + 12288; ACT5 = QB + 21504; RED5b = QB + 23552
diag_mfma([(16 + u, 64 + 4 * u) for u in range(4)], 32)
a(f"""v_lshlrev_b32 v30, 4, v0
v_add_u32 v30, {RED5}, v30
v_bfe_u32 v27, v0, 3, 4
v_lshlrev_b32 v27, 4, v27
v_bfe_u32 v28, v0, 2, 1
v_lshl_add_u32 v27, v28, 8, v27
v_and_b32 v28, 3, v0
v_lshl_add_u32 v27, v28, 2, v27
v_bfe_u32 v28, v0, 7, 1
v_lshl_add_u32 v27, v28, 12, v27
v_add_u32 v27, {RED5}, v27
ds_write_b128 v30, v[32:35]
s_waitcnt lgkmcnt(0)
s_barrier
s_cmp_ge_u32 {sW}, 4
s_cbranch_scc1 L_S5_skip
""")
for w in range(4):
    a(f"ds_read2st64_b32 v[{32+2*w}:{33+2*w}], v27 offset0:{w*4} offset1:{w*4+2}")
a(f"""v_and_b32 v28, 127, v0
v_lshlrev_b32 v28, 2, v28
v_bfe_u32 v29, v0, 7, 1
v_mul_u32_u24 v29, 576, v29
v_add3_u32 v28, v28, v29, s14
""".replace("v_add3_u32 v28, v28, v29, s14", f"v_add_u32 v28, v28, v29\nv_add_u32 v28, {ACT5}, v28"))
a("""s_waitcnt lgkmcnt(0)
v_add_f32 v32, v32, v33
v_add_f32 v34, v34, v35
v_add_f32 v36, v36, v37
v_add_f32 v38, v38, v39
v_add_f32 v32, v32, v34
v_add_f32 v36, v36, v38
v_add_f32 v32, v32, v36
v_cvt_pk_bf16_f32 v32, v32, v32
ds_write_b32 v28, v32
s_waitcnt lgkmcnt(0)
""")
a.label("L_S5_skip")
a(f"""v_lshrrev_b32 v27, 3, {vN}
v_mul_u32_u24 v27, 576, v27
v_lshl_add_u32 v27, {vKg}, 4, v27
s_lshl_b32 s12, {sW}, 6
s_add_u32 s12, s12, {ACT5}
v_add_u32 v27, s12, v27
s_barrier
ds_read_b128 v[16:19], v27
s_waitcnt lgkmcnt(0)
""")
diag_mfma([(16 + u, 224 + 4 * u) for u in range(4)], 32)
a(f"""v_add_u32 v30, {RED5b-RED5}, v30
s_nop 6
ds_write_b128 v30, v[32:35]
s_waitcnt lgkmcnt(0)
s_barrier
s_cmp_lg_u32 {sW}, 0
s_cbranch_scc1 L_S9
""")
def final_reduce8(addr, dst):
    for w in range(8):
        a(f"ds_read_b128 v[{64+4*w}:{67+4*w}], {addr} offset:{w*1024}")
    for w in range(0, 8, 2):
        a(f"s_waitcnt lgkmcnt({6-w})")
        a(f"v_pk_add_f32 v[{64+4*w}:{65+4*w}], v[{64+4*w}:{65+4*w}], v[{68+4*w}:{69+4*w}]")
        a(f"v_pk_add_f32 v[{66+4*w}:{67+4*w}], v[{66+4*w}:{67+4*w}], v[{70+4*w}:{71+4*w}]")
    a("""v_pk_add_f32 v[64:65], v[64:65], v[72:73]
    v_pk_add_f32 v[66:67], v[66:67], v[74:75]
    v_pk_add_f32 v[80:81], v[80:81], v[88:89]
    v_pk_add_f32 v[82:83], v[82:83], v[90:91]""")
    a(f"v_pk_add_f32 v[{dst}:{dst+1}], v[64:65], v[80:81]\nv_pk_add_f32 v[{dst+2}:{dst+3}], v[66:67], v[82:83]")
final_reduce8("v30", 32)
a(f"""v_cvt_pk_bf16_f32 v32, v32, v33
v_cvt_pk_bf16_f32 v33, v34, v35
v_lshrrev_b32 v27, 1, {vKg}
v_lshlrev_b32 v27, 8, v27
v_lshl_add_u32 v27, {vN}, 4, v27
v_and_b32 v28, 1, {vKg}
v_lshl_add_u32 v27, v28, 3, v27
s_lshl_b32 s12, {sID}, 9
s_add_u32 s12, s12, {R5}
buffer_store_dwordx2 v[32:33], v27, {srd(WS)}, s12 offen sc1
""")
stamp(9)
a.label("L_S9")
a(f"s_cmp_ge_u32 {sID}, 10\ns_cbranch_scc1 L_fin")
mksrd(SC, pOUT, 2560)
a(f"""
s_lshl_b32 s12, {sID}, 3
s_add_u32 s12, s12, {sW}
s_lshl_b32 s13, s12, 6
s_add_u32 s13, s13, {R7}
v_lshrrev_b32 v27, 2, {vLane}       ; pg
v_and_b32 v28, 3, {vLane}
v_mul_u32_u24 v29, 5120, v27
v_lshl_add_u32 v29, v28, 4, v29
v_add_u32 v30, {16*5120}, v29
v_cmp_gt_u32 vcc, {NFFN-16}, v27
v_mov_b32 v31, 0x7fffff00
v_cndmask_b32 v30, v31, v30, vcc
s_mov_b32 s5, 0
""")
a("s_mov_b64 exec, 1")
gather("L_S9gate", [f"buffer_load_dword v32, v29, {srd(WS)}, s13 offen sc1"], [32], "v31", sleep=2)
gather("L_S9data", [f"buffer_load_dwordx4 v[32:35], v29, {srd(WS)}, s13 offen sc1", f"buffer_load_dwordx4 v[36:39], v30, {srd(WS)}, s13 offen sc1"], list(range(32, 40)), "v31", sleep=1)
stamp(10)
for i in range(4):
    a(f"v_add_f32 v{32+i}, v{32+i}, v{36+i}")
for r in (4, 8):
    a("s_nop 0")
    for i in range(4):
        a(f"v_add_f32_dpp v{32+i}, v{32+i}, v{32+i} row_ror:{r} row_mask:0xf bank_mask:0xf")
for sw in ("v_permlane16_swap_b32", "v_permlane32_swap_b32"):
    for i in range(4):
        a(f"v_mov_b32 v{36+i}, v{32+i}")
    a("s_nop 0")
    for i in range(4):
        a(f"{sw} v{32+i}, v{36+i}")
    a("s_nop 0")
    for i in range(4):
        a(f"v_add_f32 v{32+i}, v{32+i}, v{36+i}")
a(f"""v_cvt_pk_bf16_f32 v32, v32, v33
v_cvt_pk_bf16_f32 v33, v34, v35
s_lshl_b32 s13, s12, 5
v_lshlrev_b32 v28, 3, v28
s_mov_b64 exec, 15
buffer_store_dwordx2 v[32:33], v28, {srd(SC)}, s13 offen
s_cmp_lg_u32 s12, 0
s_cbranch_scc1 L_noep
s_mov_b64 exec, 1
v_mov_b32 v32, {sN}
v_mov_b32 v33, {EPOCH}
buffer_store_dword v32, v33, {srd(WS)}, 0 offen
""")
a.label("L_noep")
a(f"""s_mov_b64 exec, -1
s_branch L_fin
""")

a.label("L_F")
ACT = 0; RED = 8192; MISC = 16384
a(f"s_sub_u32 s10, {sID}, 128\ns_cmp_ge_u32 s10, 64\ns_cbranch_scc1 L_S3")
mksrd(SA, pWQ, 640 * 8192)
a(f"""
s_lshr_b32 s11, s10, 1              ; h
s_and_b32 s12, s10, 1               ; kh
s_mul_i32 s13, s12, 320
s_mul_i32 s14, {sW}, 40
s_add_u32 s13, s13, s14             ; rbase
v_lshl_add_u32 v24, {vKg}, 2, s13
v_lshlrev_b32 v24, 13, v24
v_lshl_add_u32 v24, {vN}, 4, v24
v_lshl_add_u32 v25, {vKg}, 1, s13
v_lshlrev_b32 v25, 13, v25
v_lshl_add_u32 v25, {vN}, 4, v25
s_lshl_b32 s14, s11, 8
""")
k = 0
for g in range(2):
    for u in range(4):
        a(f"s_add_u32 s15, s14, {(g*16+u)*8192}\nbuffer_load_dwordx4 v[{64+4*k}:{67+4*k}], v24, {srd(SA)}, s15 offen nt"); k += 1
for u in range(2):
    a(f"s_add_u32 s15, s14, {(32+u)*8192}\nbuffer_load_dwordx4 v[{64+4*k}:{67+4*k}], v25, {srd(SA)}, s15 offen nt"); k += 1
get_nonce()
def flag_store(lbl, cnt):
    a(f"""s_cmp_lg_u32 {sW}, 7
    s_cbranch_scc1 {lbl}
    s_waitcnt vmcnt({cnt})
    s_lshl_b32 s15, {sID}, 2
    v_mov_b32 v27, {sN}
    v_mov_b32 v28, s15
    s_mov_b64 exec, 1
    buffer_store_dword v27, v28, {srd(WS)}, 0 offen sc1
    s_mov_b64 exec, -1""")
    a.label(lbl)
if "a" in ABL:
    a("s_waitcnt vmcnt(0)")
    stamp(7)
    a("s_branch L_fin")
a(f"""s_cmp_ge_u32 {sW}, 3
s_cbranch_scc1 L_S2_bar
v_min_u32 v26, 159, v0
v_lshlrev_b32 v27, 4, v26
s_mul_i32 s15, s12, 2560
s_add_u32 s15, s15, {R1}
s_mov_b32 s5, 0
""")
lds_ = ["s_mov_b32 s8, s15"]
for p in range(P1):
    lds_.append(f"buffer_load_dwordx4 v[{128+4*p}:{131+4*p}], v27, {srd(WS)}, s8 offen sc1")
    if p < P1 - 1: lds_.append("s_add_u32 s8, s8, 5120")
gather("L_H1poll", lds_, [129 + 2 * i for i in range(2 * P1)], "v28", mode="tag", vt2="v29", sleep=2)
stamp(1)
a("v_lshlrev_b32 v32, 16, v128\nv_lshlrev_b32 v33, 16, v130\nv_and_b32 v34, 0xffff0000, v128\nv_and_b32 v35, 0xffff0000, v130")
for p in range(1, P1):
    a(f"""v_lshlrev_b32 v36, 16, v{128+4*p}
    v_lshlrev_b32 v37, 16, v{130+4*p}
    v_and_b32 v38, 0xffff0000, v{128+4*p}
    v_and_b32 v39, 0xffff0000, v{130+4*p}
    v_pk_add_f32 v[32:33], v[32:33], v[36:37]
    v_pk_add_f32 v[34:35], v[34:35], v[38:39]""")
for i in range(4):
    a(f"v_cvt_pk_bf16_f32 v{32+i}, v{32+i}, v{32+i}")
a(f"""v_lshlrev_b32 v26, 3, v26
ds_write_b64 v26, v[32:33] offset:{ACT}
ds_write_b64 v26, v[34:35] offset:{ACT+1344}
s_waitcnt lgkmcnt(0)
""")
a.label("L_S2_bar")
a(f"""v_lshrrev_b32 v26, 3, {vN}
v_mul_u32_u24 v26, 1344, v26
s_mul_i32 s15, {sW}, 160
v_add_u32 v26, s15, v26
v_lshl_add_u32 v27, {vKg}, 4, v26
v_lshl_add_u32 v28, {vKg}, 3, v26
v_lshlrev_b32 v30, 4, v0
s_waitcnt vmcnt(0)""")
stamp(7)
a(f"""
s_barrier
ds_read_b128 v[16:19], v27 offset:{ACT}
ds_read_b128 v[20:23], v27 offset:{ACT+64}
ds_read_b64 v[36:37], v28 offset:{ACT+128}
s_waitcnt lgkmcnt(0)
""")
diag_mfma([(16 + u, 64 + 4 * u) for u in range(8)] + [(36, 96), (37, 100)], 32)
a(f"""; reader: t<128: d=t
v_bfe_u32 v27, v0, 3, 4
v_lshlrev_b32 v27, 4, v27
v_bfe_u32 v28, v0, 2, 1
v_lshl_add_u32 v27, v28, 8, v27
v_and_b32 v28, 3, v0
v_lshl_add_u32 v27, v28, 2, v27
s_nop 1
ds_write_b128 v30, v[32:35] offset:{RED}
s_waitcnt lgkmcnt(0)
s_barrier
s_cmp_ge_u32 {sW}, 2
s_cbranch_scc1 L_S2_done
""")
for w in range(8):
    a(f"ds_read2st64_b32 v[{32+2*w}:{33+2*w}], v27 offset0:{RED//256+w*4} offset1:{RED//256+w*4+2}")
a(f"""s_lshl_b32 s15, s10, 10
s_add_u32 s15, s15, {R2}
v_lshlrev_b32 v28, 3, v0
s_waitcnt lgkmcnt(0)
v_pk_add_f32 v[32:33], v[32:33], v[34:35]
v_pk_add_f32 v[36:37], v[36:37], v[38:39]
v_pk_add_f32 v[40:41], v[40:41], v[42:43]
v_pk_add_f32 v[44:45], v[44:45], v[46:47]
v_pk_add_f32 v[32:33], v[32:33], v[36:37]
v_pk_add_f32 v[40:41], v[40:41], v[44:45]
v_pk_add_f32 v[32:33], v[32:33], v[40:41]
v_cvt_pk_bf16_f32 v32, v32, v33
v_mov_b32 v33, {sN}
buffer_store_dwordx2 v[32:33], v28, {srd(WS)}, s15 offen sc1
""")
a.label("L_S2_done")
stamp(2)
a("s_cmp_ge_u32 s10, 60\ns_cbranch_scc1 L_fin")
if ABL: a("s_branch L_fin")
late_trigger("L_trig2", True)
stamp(6)
a("s_cmp_ge_u32 s10, 40\ns_cbranch_scc1 L_S1b")
mksrd(SA, pWO, 4096 * 1280)
a(f"""
s_mul_i32 s11, s10, 205
s_lshr_b32 s11, s11, 10             ; g
s_mul_i32 s12, s11, 5
s_sub_u32 s12, s10, s12             ; nb
s_lshl_b32 s13, s11, 9
s_lshl_b32 s14, {sW}, 6
s_add_u32 s13, s13, s14
v_lshl_add_u32 v24, {vKg}, 2, s13
v_mul_u32_u24 v24, 1280, v24
v_lshl_add_u32 v24, {vN}, 4, v24
s_lshl_b32 s14, s12, 8
""")
for g in range(4):
    for u in range(4):
        k = g * 4 + u
        a(f"buffer_load_dwordx4 v[{128+4*k}:{131+4*k}], v24, {srd(SA)}, s14 offen offset:{u*1280} nt")
    if g < 3: a("s_add_u32 s14, s14, 20480")
a(f"s_cmp_ge_u32 {sW}, 2\ns_cbranch_scc1 L_S6_bar")
a(f"""v_lshrrev_b32 v26, 5, v0
v_lshlrev_b32 v27, 11, v26
v_and_b32 v28, 31, v0
v_lshl_add_u32 v27, v28, 4, v27
s_lshl_b32 s14, s11, 13
s_add_u32 s14, s14, {R5}
v_bfe_u32 v28, v0, 4, 1
v_mul_u32_u24 v28, 2112, v28
v_lshl_add_u32 v28, v26, 9, v28
v_lshl_add_u32 v28, {vN}, 5, v28
s_mov_b32 s5, 0
""")
a(f"v_lshlrev_b32 v29, 9, {vN}\ns_mov_b64 exec, 0xffff")
gather("L_H5gate", [f"buffer_load_dword v30, v29, {srd(WS)}, s14 offen sc1"], [30], "v31", sleep=2)
gather("L_H5poll", [f"buffer_load_dwordx4 v[{64+4*c}:{67+4*c}], v27, {srd(WS)}, s14 offen offset:{c*512} sc1" for c in range(4)], list(range(64, 80)), "v29")
stamp(3)
for i in range(4):
    a(f"v_lshlrev_b32 v{32+2*i}, 16, v{64+i}\nv_and_b32 v{33+2*i}, 0xffff0000, v{64+i}")
for c in range(1, 4):
    for i in range(4):
        a(f"v_lshlrev_b32 v40, 16, v{64+4*c+i}\nv_and_b32 v41, 0xffff0000, v{64+4*c+i}\nv_pk_add_f32 v[{32+2*i}:{33+2*i}], v[{32+2*i}:{33+2*i}], v[40:41]")
for i in range(8):
    a(f"v_cvt_pk_bf16_f32 v{32+i}, v{32+i}, v{32+i}")
a(f"ds_write_b128 v28, v[32:35] offset:{ACT}\nds_write_b128 v28, v[36:39] offset:{ACT+16}\ns_waitcnt lgkmcnt(0)")
a.label("L_S6_bar")
a(f"""v_lshrrev_b32 v26, 3, {vN}
v_mul_u32_u24 v26, 2112, v26
s_lshl_b32 s15, {sW}, 8
v_add_u32 v26, s15, v26
v_lshl_add_u32 v27, {vKg}, 4, v26
v_lshlrev_b32 v30, 4, v0
v_add_u32 v30, {RED}, v30
s_waitcnt vmcnt(0)
s_barrier
""")
for g in range(4):
    a(f"ds_read_b128 v[{40+4*g}:{43+4*g}], v27 offset:{ACT+64*g}")
a("s_waitcnt lgkmcnt(0)")
diag_mfma([(40 + k, 128 + 4 * k) for k in range(16)], 32)
a(f"""s_nop 7
ds_write_b128 v30, v[32:35]
s_waitcnt lgkmcnt(0)
s_barrier
s_cmp_lg_u32 {sW}, 0
s_cbranch_scc1 L_fin
""")
final_reduce8("v30", 32)
a(f"""v_lshrrev_b32 v27, 1, {vKg}
v_mul_u32_u24 v27, 2560, v27
v_lshl_add_u32 v27, {vN}, 5, v27
v_and_b32 v28, 1, {vKg}
v_lshl_add_u32 v27, v28, 4, v27
s_mul_i32 s14, s11, 5120
s_lshl_b32 s15, s12, 9
s_add_u32 s14, s14, s15
s_add_u32 s14, s14, {R6}
buffer_store_dwordx4 v[32:35], v27, {srd(WS)}, s14 offen sc1
""")
stamp(4)
a("s_branch L_fin")
a.label("L_S1b")
mksrd(SA, pWM, 640 * 7680)
mksrd(SB, pC, 2560)
a(f"""
s_sub_u32 s11, s10, 40              ; q
s_mul_i32 s13, {sW}, 80
v_lshl_add_u32 v24, {vKg}, 2, s13   ; row
v_lshrrev_b32 v25, 3, {vN}
v_mul_u32_u24 v26, 1280, v25
v_lshl_add_u32 v26, v24, 1, v26
v_mul_u32_u24 v27, 7680, v24
v_lshl_add_u32 v27, {vN}, 4, v27
s_lshl_b32 s14, s11, 8
s_add_u32 s14, s14, 2560
""")
for g in range(5):
    a(f"buffer_load_dwordx2 v[{40+2*g}:{41+2*g}], v26, {srd(SB)}, 0 offen offset:{g*32}")
for g in range(5):
    for u in range(4):
        k = g * 4 + u
        a(f"s_add_u32 s15, s14, {(g*16+u)*7680}\nbuffer_load_dwordx4 v[{128+4*k}:{131+4*k}], v27, {srd(SA)}, s15 offen nt")
a("s_waitcnt vmcnt(20)")
for g in range(5):
    silu_c4(40 + 2 * g, 64 + 4 * g, "v24")
a(f"v_lshlrev_b32 v30, 4, v0\nv_add_u32 v30, {RED}, v30\ns_waitcnt vmcnt(0)")
diag_mfma([(64 + k, 128 + 4 * k) for k in range(20)], 32)
a(f"""s_nop 7
ds_write_b128 v30, v[32:35]
s_waitcnt lgkmcnt(0)
s_barrier
s_cmp_lg_u32 {sW}, 0
s_cbranch_scc1 L_fin
""")
final_reduce8("v30", 32)
a(f"""v_lshrrev_b32 v27, 1, {vKg}
v_mul_u32_u24 v27, 10240, v27
v_lshl_add_u32 v27, {vN}, 5, v27
v_and_b32 v28, 1, {vKg}
v_lshl_add_u32 v27, v28, 4, v27
s_lshl_b32 s14, s11, 9
s_add_u32 s14, s14, {R8}
buffer_store_dwordx4 v[32:35], v27, {srd(WS)}, s14 offen sc1
""")
stamp(4)
a("s_branch L_fin")
a.label("L_S3")
mksrd(SA, pWUK, 512 * 8192)
a(f"""
s_sub_u32 s10, s10, 64              ; f3
s_lshr_b32 s11, s10, 1              ; h
s_and_b32 s12, s10, 1               ; ch
""")
a(f"""
s_lshl_b32 s13, s12, 8
s_lshl_b32 s14, {sW}, 5
s_add_u32 s13, s13, s14             ; c base
v_lshrrev_b32 v24, 2, {vN}
v_lshlrev_b32 v24, 3, v24
v_and_b32 v25, 3, {vN}
v_add3_u32 v24, v24, v25, s13
v_lshlrev_b32 v24, 13, v24
v_lshl_add_u32 v24, {vKg}, 4, v24
s_lshl_b32 s14, s11, 8
s_add_u32 s15, s14, 32768
""")
for t in range(2):
    for s in range(4):
        k = t * 4 + s
        a(f"buffer_load_dwordx4 v[{64+4*k}:{67+4*k}], v24, {srd(SA)}, s{14+t} offen offset:{s*64}")
get_nonce()
if "a" in ABL or "b" in ABL:
    a("s_waitcnt vmcnt(0)")
    stamp(7)
    a("s_branch L_fin")
a(f"""s_cmp_lg_u32 {sW}, 0
s_cbranch_scc1 L_S3_bar
v_lshlrev_b32 v26, 4, {vLane}
s_lshl_b32 s14, s11, 11
s_add_u32 s14, s14, {R2}
s_mov_b32 s5, 0
""")
a(f"v_lshlrev_b32 v27, 10, {vLane}\ns_mov_b64 exec, 3")
gather("L_H2gate", [f"buffer_load_dword v30, v27, {srd(WS)}, s14 offen offset:4 sc1"], [30], "v31", mode="tag", sleep=1)
gather("L_H2poll", [f"buffer_load_dwordx4 v[32:35], v26, {srd(WS)}, s14 offen sc1", f"buffer_load_dwordx4 v[36:39], v26, {srd(WS)}, s14 offen offset:1024 sc1"], [33, 35, 37, 39], "v28", mode="tag", vt2="v29")
stamp(1)
a(f"""v_lshlrev_b32 v40, 16, v32
v_lshlrev_b32 v41, 16, v34
v_and_b32 v42, 0xffff0000, v32
v_and_b32 v43, 0xffff0000, v34
v_lshlrev_b32 v44, 16, v36
v_lshlrev_b32 v45, 16, v38
v_and_b32 v46, 0xffff0000, v36
v_and_b32 v47, 0xffff0000, v38
v_pk_add_f32 v[40:41], v[40:41], v[44:45]
v_pk_add_f32 v[42:43], v[42:43], v[46:47]
v_cvt_pk_bf16_f32 v40, v40, v41
v_cvt_pk_bf16_f32 v42, v42, v43
v_lshlrev_b32 v26, 2, {vLane}
ds_write_b32 v26, v40 offset:{ACT}
ds_write_b32 v26, v42 offset:{ACT+320}
s_waitcnt lgkmcnt(0)
""")
a.label("L_S3_bar")
a(f"""v_and_b32 v26, 1, {vN}
v_mul_u32_u24 v27, 320, v26
v_lshl_add_u32 v27, {vKg}, 4, v27
v_lshlrev_b32 v28, 15, v26
v_lshl_add_u32 v28, {vKg}, 4, v28
s_lshl_b32 s14, s10, 9
s_lshl_b32 s15, {sW}, 6
s_add_u32 s14, s14, s15
s_add_u32 s14, s14, {R3}
s_waitcnt vmcnt(0)""")
stamp(7)
a(f"""
s_barrier
""")
for s in range(4):
    a(f"ds_read_b128 v[{40+4*s}:{43+4*s}], v27 offset:{ACT+64*s}")
for s in range(4):
    a(f"s_waitcnt lgkmcnt({3-s})")
    for t in range(2):
        k = t * 4 + s
        c = "0" if s == 0 else f"v[{32+4*t}:{35+4*t}]"
        a(f"v_mfma_f32_16x16x32_bf16 v[{32+4*t}:{35+4*t}], v[{64+4*k}:{67+4*k}], v[{40+4*s}:{43+4*s}], {c}")
SCL = 128 ** -0.5 * LOG2E
a(f"s_mov_b32 s15, 0x{f2u(SCL):08x}\ns_nop 6")
for i in range(8):
    a(f"v_mul_f32 v{32+i}, s15, v{32+i}")
for i in range(4):
    a(f"v_cvt_pk_bf16_f32 v{32+i}, v{32+2*i}, v{33+2*i}")
a(f"""s_mov_b32 s8, 0x00030003
s_mov_b32 s9, 0x00030003
s_mov_b64 exec, s[8:9]
buffer_store_dwordx4 v[32:35], v28, {srd(WS)}, s14 offen sc1
s_mov_b64 exec, -1
""")
stamp(2)
a(f"s_cmp_ge_u32 s10, {NFFN}\ns_cbranch_scc1 L_fin")
if ABL: a("s_branch L_fin")
late_trigger("L_trig3", False)
stamp(6)
mksrd(SA, pWG, 640 * 3456)
mksrd(SB, pWU, 640 * 3456)
mksrd(SC, pWD, 1728 * 1280)
mksrd(SD, pX, 2560)
a(f"""
s_mul_i32 s13, {sW}, 80
v_lshl_add_u32 v24, {vKg}, 2, s13
v_mul_u32_u24 v24, 3456, v24
v_and_b32 v25, 7, {vN}
v_lshl_add_u32 v24, v25, 4, v24
s_lshl_b32 s14, s10, 7
s_mov_b32 s8, 0x00ff00ff
s_mov_b32 s9, 0x00ff00ff
s_mov_b64 exec, s[8:9]
""")
for half, sr in ((0, SA), (1, SB)):
    if half: a("s_not_b64 exec, exec")
    for g in range(5):
        for u in range(4):
            k = g * 4 + u
            a(f"s_add_u32 s15, s14, {(g*16+u)*3456}\nbuffer_load_dwordx4 v[{64+4*k}:{67+4*k}], v24, {srd(sr)}, s15 offen nt")
a("s_mov_b64 exec, -1")
a(f"""s_cmp_ge_u32 {sW}, 5
s_cbranch_scc1 L_FFN_nod
s_lshl_b32 s13, s10, 6
v_lshl_add_u32 v24, {vKg}, 2, s13
v_mul_u32_u24 v24, 1280, v24
v_lshl_add_u32 v24, {vN}, 4, v24
s_lshl_b32 s14, {sW}, 8
""")
for g in range(4):
    for u in range(4):
        k = g * 4 + u
        a(f"buffer_load_dwordx4 v[{144+4*k}:{147+4*k}], v24, {srd(SC)}, s14 offen offset:{u*1280} nt")
    if g < 3: a("s_add_u32 s14, s14, 20480")
a(f"""v_cmp_le_u32 vcc, 160, v0
v_subrev_u32 v25, 160, v0
s_nop 0
v_cndmask_b32 v25, v0, v25, vcc     ; t%160
v_cndmask_b32 v26, 0, 1, vcc        ; b   (VOP3)
v_lshlrev_b32 v27, 3, v0            ; x offset = t*8
buffer_load_dwordx2 v[48:49], v27, {srd(SD)}, 0 offen
v_min_u32 v28, 59, {vLane}
v_lshlrev_b32 v28, 2, v28
s_mov_b32 s5, 0
""")
a(f"""v_mul_u32_u24 v28, 10240, v26
v_lshl_add_u32 v28, v25, 4, v28
v_lshrrev_b32 v29, 1, {vKg}
v_mul_u32_u24 v30, 10240, v29
v_lshl_add_u32 v30, {vN}, 5, v30
v_and_b32 v31, 1, {vKg}
v_lshl_add_u32 v30, v31, 4, v30
s_lshl_b32 s14, {sW}, 9
s_add_u32 s14, s14, {R8+7680}
s_mov_b32 s13, {R8}
s_mov_b32 s12, {R8+5120}
s_mov_b32 s5, 0
""")
gather("L_R8poll", [f"buffer_load_dwordx4 v[208:211], v28, {srd(WS)}, s13 offen sc1",
    f"buffer_load_dwordx4 v[212:215], v28, {srd(WS)}, s13 offen offset:2560 sc1",
    f"buffer_load_dwordx4 v[216:219], v28, {srd(WS)}, s12 offen sc1",
    f"buffer_load_dwordx4 v[220:223], v30, {srd(WS)}, s14 offen sc1"], list(range(208, 224)), "v31", sleep=8)
a(f"""v_lshlrev_b32 v50, 16, v48
v_and_b32 v51, 0xffff0000, v48
v_lshlrev_b32 v52, 16, v49
v_and_b32 v53, 0xffff0000, v49
v_add_f32 v216, 1.0, v216
v_add_f32 v217, 1.0, v217
v_add_f32 v218, 1.0, v218
v_add_f32 v219, 1.0, v219
v_lshlrev_b32 v27, 4, v0            ; R6 offset t*16
s_mov_b32 s5, 0
""")
stamp(3)
HB = [224, 228, 232, 236, 240, 244, 32, 36]
a(f"""v_mul_u32_u24 v31, 5120, {vLane}
s_lshl_b32 s13, {sW}, 10
s_add_u32 s13, s13, {R6}
s_mov_b64 exec, 0xff""")
gather("L_H6gate", [f"buffer_load_dword v32, v31, {srd(WS)}, s13 offen sc1"], [32], "v33", sleep=2)
lds_ = [f"s_mov_b32 s13, {R6}"]
for g in range(8):
    lds_.append(f"buffer_load_dwordx4 v[{HB[g]}:{HB[g]+3}], v27, {srd(WS)}, s13 offen sc1")
    if g < 7: lds_.append("s_add_u32 s13, s13, 5120")
gather("L_H6poll", lds_, [HB[g] + i for g in range(8) for i in range(4)], "v31")
stamp(4)
for g in (0, 2, 4, 6):
    a(f"v_pk_add_f32 v[{HB[g]}:{HB[g]+1}], v[{HB[g]}:{HB[g]+1}], v[{HB[g+1]}:{HB[g+1]+1}]\nv_pk_add_f32 v[{HB[g]+2}:{HB[g]+3}], v[{HB[g]+2}:{HB[g]+3}], v[{HB[g+1]+2}:{HB[g+1]+3}]")
for g0, g1 in ((0, 2), (4, 6), (0, 4)):
    a(f"v_pk_add_f32 v[{HB[g0]}:{HB[g0]+1}], v[{HB[g0]}:{HB[g0]+1}], v[{HB[g1]}:{HB[g1]+1}]\nv_pk_add_f32 v[{HB[g0]+2}:{HB[g0]+3}], v[{HB[g0]+2}:{HB[g0]+3}], v[{HB[g1]+2}:{HB[g1]+3}]")
for i in range(4):
    a(f"v_fmac_f32 v{50+i}, v{208+i}, v{224+i}")
X1L = MISC; STL = MISC + 5120
a(f"""ds_write_b128 v27, v[50:53] offset:{X1L}
v_add_f32 v32, v50, v51
v_add_f32 v33, v52, v53
v_add_f32 v32, v32, v33
v_mul_f32 v33, v50, v50
v_fmac_f32 v33, v51, v51
v_fmac_f32 v33, v52, v52
v_fmac_f32 v33, v53, v53
""")
for v in ("v32", "v33"):
    pass
for r in (8, 4, 2, 1):
    a(f"s_nop 0\nv_add_f32_dpp v32, v32, v32 row_ror:{r} row_mask:0xf bank_mask:0xf\nv_add_f32_dpp v33, v33, v33 row_ror:{r} row_mask:0xf bank_mask:0xf")
a(f"""v_mov_b32 v34, v32
v_mov_b32 v35, v33
s_nop 0
v_permlane16_swap_b32 v32, v34
v_permlane16_swap_b32 v33, v35
s_nop 0
v_add_f32 v32, v32, v34
v_add_f32 v33, v33, v35
v_lshrrev_b32 v34, 5, v0
v_lshlrev_b32 v34, 3, v34
ds_write_b64 v34, v[32:33] offset:{STL}
s_waitcnt lgkmcnt(0)
""")
a.label("L_FFN_nod")
a(f"""s_barrier
s_cmp_ge_u32 {sW}, 5
s_cbranch_scc1 L_FFN_bar2
v_mul_u32_u24 v34, 40, v26
ds_read_b64 v[32:33], v34 offset:{STL}
ds_read_b64 v[36:37], v34 offset:{STL+8}
ds_read_b64 v[38:39], v34 offset:{STL+16}
ds_read_b64 v[40:41], v34 offset:{STL+24}
ds_read_b64 v[42:43], v34 offset:{STL+32}
v_mul_u32_u24 v35, 2624, v26
v_lshl_add_u32 v35, v25, 4, v35
s_waitcnt lgkmcnt(0)
v_pk_add_f32 v[32:33], v[32:33], v[36:37]
v_pk_add_f32 v[38:39], v[38:39], v[40:41]
v_pk_add_f32 v[32:33], v[32:33], v[42:43]
v_pk_add_f32 v[32:33], v[32:33], v[38:39]
v_mul_f32 v32, 0x{f2u(1.0/640):08x}, v32      ; mean
v_mul_f32 v33, 0x{f2u(1.0/640):08x}, v33      ; E[x^2]
v_fma_f32 v33, -v32, v32, v33
v_max_f32 v33, 0, v33
v_add_f32 v33, 0x{f2u(1e-5):08x}, v33
v_rsq_f32 v33, v33
""")
for i in range(4):
    a(f"v_sub_f32 v{36+i}, v{50+i}, v32\nv_mul_f32 v{36+i}, v{36+i}, v33\nv_fma_f32 v{36+i}, v{36+i}, v{216+i}, v{212+i}\nv_cvt_pk_bf16_f32 v{36+i}, v{36+i}, v{36+i}")
a(f"ds_write_b128 v35, v[36:39] offset:{ACT}\ns_waitcnt lgkmcnt(0)")
a.label("L_FFN_bar2")
a(f"""v_lshrrev_b32 v27, 3, {vN}
v_mul_u32_u24 v28, 2624, v27
s_mul_i32 s15, {sW}, 320
v_add_u32 v28, s15, v28
v_lshl_add_u32 v28, {vKg}, 4, v28
v_lshlrev_b32 v30, 4, v0
s_waitcnt vmcnt(0)
s_barrier
""")
for g in range(5):
    a(f"ds_read_b128 v[{224+4*g}:{227+4*g}], v28 offset:{ACT+64*g}")
a("s_waitcnt lgkmcnt(0)")
diag_mfma([(224 + k, 64 + 4 * k) for k in range(20)], 32)
ACT2 = MISC + 6144
a(f"""; reader t<128: b=t>>6, f=t&63 : n'=f>>3 (gate), +8 (up)
v_bfe_u32 v28, v0, 3, 3
v_lshlrev_b32 v28, 4, v28
v_bfe_u32 v29, v0, 2, 1
v_lshl_add_u32 v28, v29, 8, v28
v_and_b32 v29, 3, v0
v_lshl_add_u32 v28, v29, 2, v28
v_bfe_u32 v29, v0, 6, 1
v_lshl_add_u32 v28, v29, 9, v28
ds_write_b128 v30, v[32:35] offset:{RED}
s_waitcnt lgkmcnt(0)
s_barrier
s_cmp_ge_u32 {sW}, 2
s_cbranch_scc1 L_FFN_bar4
""")
a(f"v_add_u32 v28, {RED}, v28")
for w in range(8):
    a(f"ds_read_b32 v{32+2*w}, v28 offset:{w*1024}\nds_read_b32 v{33+2*w}, v28 offset:{w*1024+128}")
a(f"""v_mul_u32_u24 v29, 320, v29
v_lshl_add_u32 v29, {vLane}, 2, v29
s_waitcnt lgkmcnt(0)
v_pk_add_f32 v[32:33], v[32:33], v[34:35]
v_pk_add_f32 v[36:37], v[36:37], v[38:39]
v_pk_add_f32 v[40:41], v[40:41], v[42:43]
v_pk_add_f32 v[44:45], v[44:45], v[46:47]
v_pk_add_f32 v[32:33], v[32:33], v[36:37]
v_pk_add_f32 v[40:41], v[40:41], v[44:45]
v_pk_add_f32 v[32:33], v[32:33], v[40:41]
""")
silu("v32", "v34")
a(f"""v_mul_f32 v32, v32, v33
v_cvt_pk_bf16_f32 v32, v32, v32
ds_write_b32 v29, v32 offset:{ACT2}
s_waitcnt lgkmcnt(0)
""")
a.label("L_FFN_bar4")
a(f"""s_barrier
s_cmp_ge_u32 {sW}, 5
s_cbranch_scc1 L_fin
v_mul_u32_u24 v28, 320, v27
v_lshl_add_u32 v28, {vKg}, 4, v28
""")
for g in range(4):
    a(f"ds_read_b128 v[{224+4*g}:{227+4*g}], v28 offset:{ACT2+64*g}")
a(f"""v_lshrrev_b32 v29, 1, {vKg}
v_mul_u32_u24 v29, 2560, v29
v_lshl_add_u32 v29, {vN}, 5, v29
v_and_b32 v31, 1, {vKg}
v_lshl_add_u32 v29, v31, 4, v29
s_lshl_b32 s14, {sW}, 9
v_add_u32 v29, s14, v29
ds_read_b128 v[36:39], v29 offset:{X1L}
s_waitcnt lgkmcnt(0)
""")
diag_mfma([(224 + k, 144 + 4 * k) for k in range(16)], 32)
a(f"""s_cmp_eq_u32 s10, 0
s_cselect_b32 s15, 1.0, 0
s_mul_i32 s14, s10, 5120
s_add_u32 s14, s14, {R7}
v_mul_f32 v36, s15, v36
v_mul_f32 v37, s15, v37
v_mul_f32 v38, s15, v38
v_mul_f32 v39, s15, v39
s_nop 1
v_fmac_f32 v36, v32, v220
v_fmac_f32 v37, v33, v221
v_fmac_f32 v38, v34, v222
v_fmac_f32 v39, v35, v223
buffer_store_dwordx4 v[36:39], v29, {srd(WS)}, s14 offen sc1
""")
stamp(5)

a.label("L_fin")
if STAMPS:
    stamp(15)
    a(f"""s_lshl_b32 s12, {sID}, 3
    s_add_u32 s12, s12, {sW}
    s_lshl_b32 s12, s12, 6
    s_add_u32 s12, s12, {STMP}
    v_lshlrev_b32 v24, 2, {vLane}
    s_mov_b64 exec, 0xffff
    buffer_store_dword {vST}, v24, {srd(WS)}, s12 offen""")
    if "--dbg" in sys.argv:
        a(f"""s_memtime s[90:91]
        s_waitcnt lgkmcnt(0)
        s_sub_u32 s90, s90, s92
        v_writelane_b32 {vST}, s90, 14
        v_readlane_b32 s91, {vST}, 0
        s_nop 3
        v_subrev_u32 v25, s91, {vST}
        v_writelane_b32 v25, s90, 14
        s_cmp_lg_u32 s12, {STMP}
        s_cbranch_scc1 L_end
        global_store_dword v24, v25, s[{pDBG}:{pDBG+1}]""")
a.label("L_end")
a("s_endpgm")
a.label("L_code_end")

header = open("adaLN_cond__compressed_kv_cla__swiglu_ffn__decode.s.ref").read().split("; Override launch")[0]
open(OUT, "w").write(wrap(a.text(), 256, 512, 163840, header=header))
```

```python
import sys, math, struct
from asmgen import Asm, wrap

STAMPS = "--stamps" in sys.argv
OUT = [x for x in sys.argv[1:] if not x.startswith("--")]
OUT = OUT[0] if OUT else "k.s"
def opt(name, default):
    for x in sys.argv:
        if x.startswith("--" + name + "="): return int(x.split("=")[1])
    return default

EPOCH = 0x800
R1   = 0x1000
R2   = 0x10000
SMALL0 = 0x30000
R3   = 0x30000
R4S  = 0xAC000
R5   = 0x48000
R6   = 0x58000
R8   = 0x60000
R7   = 0x68000
SMALL1 = 0xCC000
FL2  = 0xD0000
R4   = 0x100000
R4ST = 32768 + 256
STMP = 0x800000
WS_SIZE = 268435456
NFFN = 54
F_FFN0, F_S1B0 = 40, 94
LOG2E = 1.4426950408889634
def f2u(x): return struct.unpack("<I", struct.pack("<f", x))[0]

a = Asm()
sID, sW, sN = "s2", "s3", "s4"
pX, pCKV, pWQ, pWUK, pWUV, pWO, pWG, pWU, pWD, pC, pWM, pOUT, pDBG, pWS = 16, 18, 20, 22, 24, 26, 30, 32, 34, 36, 38, 40, 42, 44
WS, SA, SB, SC, SD = 48, 52, 56, 60, 64
def srd(n): return "s[%d:%d]" % (n, n + 3)
vLane, vN, vKg = "v1", "v2", "v3"
MK = [4, 5, 6, 7]
ASET = [8, 12]
vST = "v255"
def vr(b, n=4): return f"v[{b}:{b+n-1}]"

def mksrd(n, p, size):
    a(f"s_mov_b32 s{n}, s{p}\ns_mov_b32 s{n+1}, s{p+1}\ns_mov_b32 s{n+2}, {size}\ns_mov_b32 s{n+3}, 0x00020000")

def stamp(k):
    if STAMPS:
        a(f"s_memrealtime s[90:91]\ns_waitcnt lgkmcnt(0)\nv_writelane_b32 {vST}, s90, {k}")

def get_tag():
    a(f"s_waitcnt lgkmcnt(0)\ns_mul_i32 {sN}, s46, 1664525\ns_add_u32 {sN}, {sN}, 1013904223")

def timeout(L):
    a(f"s_add_u32 s5, s5, 1\ns_cmp_gt_u32 s5, 200000\ns_cbranch_scc1 {L}_x")

def tree(op3, op2, dst, regs):
    r = list(regs)
    if len(r) == 1:
        a(f"v_mov_b32 {dst}, v{r[0]}"); return
    if len(r) == 2:
        a(f"{op2} {dst}, v{r[0]}, v{r[1]}"); return
    a(f"{op3} {dst}, v{r[0]}, v{r[1]}, v{r[2]}"); r = r[3:]
    while len(r) >= 2:
        a(f"{op3} {dst}, {dst}, v{r[0]}, v{r[1]}"); r = r[2:]
    if r: a(f"{op2} {dst}, {dst}, v{r[0]}")

DBGSLOT = {"L_H1": (11, 12), "L_H2": (13, 14), "L_S5stat": (1, 2), "L_H5": (11, 12), "L_H6": (11, 12), "L_H5gate": (13, 14), "L_H6gate": (13, 14)}
def gather(name, loads, regs, vt, mode="sent", vt2=None, first_issued=False, first_wait=0, sleep=1):
    if STAMPS and opt("polldbg", 0) and name in DBGSLOT and (opt("polldbg", 0) == 1) == (name in ("L_H1", "L_H2", "L_S5stat")):
        stamp(DBGSLOT[name][0])
    a("s_mov_b32 s5, 0")
    if first_issued:
        a(f"s_waitcnt vmcnt({first_wait})\ns_branch {name}_c")
    else:
        a(f"s_branch {name}_l")
    a.label(name)
    if sleep: a(f"s_sleep {sleep}")
    a.label(name + "_l")
    for l in loads: a(l)
    a("s_waitcnt vmcnt(0)")
    a.label(name + "_c")
    if mode == "sent":
        if len(regs) == 1:
            timeout(name)
            a(f"v_cmp_eq_u32 vcc, -1, v{regs[0]}")
        else:
            tree("v_max3_u32", "v_max_u32", vt, regs)
            timeout(name)
            a(f"v_cmp_eq_u32 vcc, -1, {vt}")
    else:
        if len(regs) == 1:
            timeout(name)
            a(f"v_cmp_ne_u32 vcc, {sN}, v{regs[0]}")
        else:
            tree("v_max3_u32", "v_max_u32", vt, regs); tree("v_min3_u32", "v_min_u32", vt2, regs)
            timeout(name)
            a(f"v_xor_b32 {vt}, {sN}, {vt}\nv_xor_b32 {vt2}, {sN}, {vt2}\nv_or_b32 {vt}, {vt}, {vt2}\nv_cmp_ne_u32 vcc, 0, {vt}")
    a(f"s_mov_b64 exec, vcc\ns_cbranch_execnz {name}")
    a.label(name + "_x")
    a("s_mov_b64 exec, -1")
    if STAMPS and opt("polldbg", 0) and name in DBGSLOT and (opt("polldbg", 0) == 1) == (name in ("L_H1", "L_H2", "L_S5stat")):
        a(f"v_writelane_b32 {vST}, s5, {DBGSLOT[name][1]}")

def pgather(name, loadfn, nregs, sets, dst, chk, vt, mode="sent", vt2=None, gap=2):
    n = len(sets); L = sum(1 for l in loadfn(sets[0]) if "buffer_load" in l)
    a("s_mov_b32 s5, 0")
    for i, b in enumerate(sets):
        for l in loadfn(b): a(l)
        if i < n - 1 and gap: a(f"s_sleep {gap}")
    a.label(name)
    for i, b in enumerate(sets):
        a(f"s_waitcnt vmcnt({L*(n-1)})")
        regs = [b + c for c in chk]
        if mode == "sent":
            if len(regs) == 1: a(f"v_cmp_eq_u32 vcc, -1, v{regs[0]}")
            else:
                tree("v_max3_u32", "v_max_u32", vt, regs)
                a(f"v_cmp_eq_u32 vcc, -1, {vt}")
        else:
            if len(regs) == 1: a(f"v_cmp_ne_u32 vcc, {sN}, v{regs[0]}")
            else:
                tree("v_max3_u32", "v_max_u32", vt, regs); tree("v_min3_u32", "v_min_u32", vt2, regs)
                a(f"v_xor_b32 {vt}, {sN}, {vt}\nv_xor_b32 {vt2}, {sN}, {vt2}\nv_or_b32 {vt}, {vt}, {vt2}\nv_cmp_ne_u32 vcc, 0, {vt}")
        a(f"s_cbranch_vccz {name}_d{i}")
        for l in loadfn(b): a(l)
    a(f"s_add_u32 s5, s5, 1\ns_cmp_lt_u32 s5, 100000\ns_cbranch_scc1 {name}")
    for i, b in enumerate(sets):
        a.label(f"{name}_d{i}")
        if dst is not None:
            for c in range(nregs): a(f"v_mov_b32 v{dst+c}, v{b+c}")
        if i < n - 1: a(f"s_branch {name}_x")
    a.label(name + "_x")
    a("s_mov_b64 exec, -1")

def allreduce(op, v, t):
    for r in (8, 4, 2, 1):
        a(f"s_nop 1\n{op}_dpp {v}, {v}, {v} row_ror:{r} row_mask:0xf bank_mask:0xf")
    for sw in ("v_permlane16_swap_b32", "v_permlane32_swap_b32"):
        a(f"v_mov_b32 {t}, {v}\ns_nop 1\n{sw} {v}, {t}\ns_nop 1\n{op} {v}, {v}, {t}")

def sum8(regs):
    assert len(regs) >= 3
    for mode in ("quad_perm:[1,0,3,2]", "quad_perm:[2,3,0,1]", "row_half_mirror"):
        for r in regs:
            a(f"v_add_f32_dpp v{r}, v{r}, v{r} {mode} row_mask:0xf bank_mask:0xf")

def diag_mfma(items, acc, first=True, waits=None, masks=None):
    def ands(k):
        s = ASET[k % 2]; act = items[k][0]
        if isinstance(act, tuple):
            m = masks
            a(f"v_and_b32 v{s}, v{act[0]}, v{m[0]}\nv_and_b32 v{s+1}, v{act[0]}, v{m[1]}\nv_and_b32 v{s+2}, v{act[1]}, v{m[0]}\nv_and_b32 v{s+3}, v{act[1]}, v{m[1]}")
        else:
            for t in range(4):
                a(f"v_and_b32 v{s+t}, v{act}, v{MK[t]}")
    ands(0)
    for k in range(len(items)):
        if k + 1 < len(items): ands(k + 1)
        else: a("s_nop 1")
        if waits and waits[k]: a(waits[k])
        s = ASET[k % 2]; wv = items[k][1]
        c = "0" if (first and k == 0) else vr(acc)
        a(f"v_mfma_f32_16x16x32_bf16 {vr(acc)}, {vr(s)}, {vr(wv)}, {c}")

def silu(v, t):
    a(f"""v_mul_f32 {t}, 0x{f2u(-LOG2E):08x}, {v}
    v_exp_f32 {t}, {t}
    s_nop 0
    v_add_f32 {t}, 1.0, {t}
    v_rcp_f32 {t}, {t}
    s_nop 0
    v_mul_f32 {v}, {v}, {t}""")

def silu_c4(src, dst, t):
    a(f"""v_lshlrev_b32 v{dst}, 16, v{src}
    v_and_b32 v{dst+1}, 0xffff0000, v{src}
    v_lshlrev_b32 v{dst+2}, 16, v{src+1}
    v_and_b32 v{dst+3}, 0xffff0000, v{src+1}""")
    for i in range(4): silu(f"v{dst+i}", t)
    for i in range(4): a(f"v_cvt_pk_bf16_f32 v{dst+i}, v{dst+i}, v{dst+i}")

def reduce_b128(addr, n, base, tmp, dst, stride=1024):
    for i in range(n):
        a(f"ds_read_b128 {vr(tmp+4*i)}, {addr} offset:{base+i*stride}")
    cur = [tmp + 4 * i for i in range(n)]
    a(f"s_waitcnt lgkmcnt({n-2})")
    d = dst if n == 2 else cur[0]
    a(f"v_pk_add_f32 {vr(d,2)}, {vr(cur[0],2)}, {vr(cur[1],2)}\nv_pk_add_f32 {vr(d+2,2)}, {vr(cur[0]+2,2)}, {vr(cur[1]+2,2)}")
    for i in range(2, n):
        a(f"s_waitcnt lgkmcnt({n-1-i})")
        d = dst if i == n - 1 else cur[0]
        a(f"v_pk_add_f32 {vr(d,2)}, {vr(cur[0],2)}, {vr(cur[i],2)}\nv_pk_add_f32 {vr(d+2,2)}, {vr(cur[0]+2,2)}, {vr(cur[i]+2,2)}")

def dlayout_off(dst, t, bstride, esz):
    sh = {2: 1, 4: 2}[esz]
    a(f"""v_lshrrev_b32 {dst}, 1, {vKg}
    v_mul_u32_u24 {dst}, {bstride}, {dst}
    v_lshl_add_u32 {dst}, {vN}, {3+sh}, {dst}
    v_and_b32 {t}, 1, {vKg}
    v_lshl_add_u32 {dst}, {t}, {2+sh}, {dst}""")

def fsw(k): return ((k & 3) << 2) | ((k >> 2) & 3)

a.label("L_code_start")
a(f"""
s_getpc_b64 s[6:7]
s_cmp_ge_u32 {sID}, 256
s_cbranch_scc1 L_end
s_load_dwordx16 s[16:31], s[0:1], 0
s_load_dwordx8 s[32:39], s[0:1], 64
s_load_dwordx4 s[40:43], s[0:1], 96
s_load_dwordx2 s[44:45], s[0:1], 112
""")
if STAMPS: a("s_memrealtime s[8:9]")
a(f"""
v_and_b32 {vLane}, 63, v0
v_lshrrev_b32 v24, 6, v0
v_and_b32 {vN}, 15, v0
v_readfirstlane_b32 {sW}, v24
v_bfe_u32 {vKg}, v0, 4, 2
s_cmp_lt_u32 {sW}, 7
s_cbranch_scc1 L_nopf
s_bfe_u32 s5, {sID}, 0x50003
s_lshl_b32 s5, s5, 10
v_lshlrev_b32 v25, 4, {vLane}
v_add_u32 v25, s5, v25
v_min_u32 v25, L_code_end-L_code_start-32, v25
global_load_dwordx4 v[244:247], v25, s[6:7]
""")
a.label("L_nopf")
if STAMPS: a(f"v_mov_b32 {vST}, 0")
a(f"""
v_mov_b32 v20, 0
v_mov_b32 v29, 0
v_and_b32 v24, 1, {vN}
v_lshlrev_b32 v24, 4, v24
v_mov_b32 v26, 0xffff
v_lshlrev_b32 v24, v24, v26
v_bfe_u32 v26, {vN}, 1, 2""")
for t in range(4):
    a(f"v_cmp_eq_u32 vcc, {t}, v26\ns_nop 1\nv_cndmask_b32 v{MK[t]}, 0, v24, vcc")
a("s_waitcnt lgkmcnt(0)")
if STAMPS: a(f"v_writelane_b32 {vST}, s8, 0")
a(f"s_load_dword s46, s[{pWS}:{pWS+1}], {EPOCH}")
mksrd(WS, pWS, WS_SIZE)
a(f"s_cmp_ge_u32 {sID}, 128\ns_cbranch_scc1 L_F")

LATEONLY = "--lateonly" in sys.argv
if LATEONLY: a("s_branch L_fin")
QB = 131072
NE = opt("early", 0)
mksrd(SD, pCKV, 16777216)
def dma_setup():
    a(f"""s_lshl_b32 s80, {sID}, 7
    s_lshl_b32 s81, {sW}, 4
    s_add_u32 s80, s80, s81
    s_lshl_b32 s80, s80, 10
    s_lshl_b32 s81, {sW}, 12
    v_lshlrev_b32 v240, 2, {vKg}
    v_xor_b32 v240, v240, {vN}
    v_lshlrev_b32 v240, 4, v240
    v_lshl_add_u32 v240, {vKg}, 10, v240
    v_xor_b32 v241, 16, v240
    v_add_u32 v241, 3072, v241
    v_xor_b32 v242, 32, v240
    v_add_u32 v242, 6144, v242
    v_xor_b32 v243, 48, v240
    v_add_u32 v243, 9216, v243""")
def dma_q(kq):
    a(f"s_add_u32 s82, s81, {kq*32768}\ns_mov_b32 m0, s82\ns_add_u32 s83, s80, {kq*256}")
    for i in range(4):
        a(f"buffer_load_dwordx4 v{240+i}, {srd(SD)}, s83 offen offset:{i*1024} nt lds")
def early():
    dma_setup()
    for kq in range(NE): dma_q(kq)
a(f"s_cmp_ge_u32 {sID}, 80\ns_cbranch_scc1 L_A_hold")
RED1 = QB; XN = QB + 8192
a(f"""s_and_b32 s47, {sID}, 63
s_lshl_b32 s47, s47, 10
s_add_u32 s47, s47, {R3-7168}
v_lshlrev_b32 v36, 4, v0
v_mov_b32 v32, -1
v_mov_b32 v33, -1
v_mov_b32 v34, -1
v_mov_b32 v35, -1
s_mul_i32 s10, {sID}, 205
s_lshr_b32 s10, s10, 11            ; p
s_mul_i32 s11, s10, 10
s_sub_u32 s11, {sID}, s11          ; j
s_cmp_ge_u32 {sW}, 5
s_cbranch_scc1 L_S1_other
""")
mksrd(SA, pWM, 640 * 7680)
mksrd(SB, pC, 2560)
a(f"""
s_mul_i32 s12, s10, 80
s_lshl_b32 s13, {sW}, 4
s_add_u32 s12, s12, s13
v_lshl_add_u32 v24, {vKg}, 2, s12  ; row
v_lshrrev_b32 v25, 3, {vN}
v_mul_u32_u24 v26, 1280, v25
v_lshl_add_u32 v26, v24, 1, v26
buffer_load_dwordx2 {vr(28,2)}, v26, {srd(SB)}, 0 offen
v_mul_u32_u24 v27, 7680, v24
v_mul_u32_u24 v26, 1152, v25
v_lshl_add_u32 v26, {vN}, 4, v26
s_lshl_b32 s13, s11, 7
v_add3_u32 v27, v27, v26, s13
buffer_load_dwordx4 {vr(64)}, v27, {srd(SA)}, 0 offen nt
s_movk_i32 s13, 7680
buffer_load_dwordx4 {vr(68)}, v27, {srd(SA)}, s13 offen nt
s_movk_i32 s13, 15360
buffer_load_dwordx4 {vr(72)}, v27, {srd(SA)}, s13 offen nt
s_movk_i32 s13, 23040
buffer_load_dwordx4 {vr(76)}, v27, {srd(SA)}, s13 offen nt
v_add_u32 v36, {RED1}, v36
v_lshrrev_b32 v29+8, 1, {vKg}
""".replace("v29+8", "v37"))
a(f"""v_lshlrev_b32 v30, 8, v37
v_and_b32 v31, 7, {vN}
v_lshl_add_u32 v30, v31, 5, v30
v_and_b32 v24, 1, {vKg}
v_lshl_add_u32 v30, v24, 4, v30
v_add_u32 v30, {XN}, v30
v_mul_u32_u24 v37, 2560, v37
v_lshl_add_u32 v37, v31, 5, v37
v_lshl_add_u32 v37, v24, 4, v37
s_mul_i32 s12, s10, 5120
s_lshl_b32 s13, s11, 8
s_add_u32 s12, s12, s13
s_add_u32 s12, s12, {R1}
s_cmp_eq_u32 s10, 0
s_cselect_b32 s13, 1.0, 0
s_mov_b32 s8, 0x00ff00ff
s_mov_b32 s9, 0x00ff00ff
""")
early()
a(f"s_waitcnt vmcnt({4+4*NE})")
silu_c4(28, 16, "v24")
diag_mfma([(16 + u, 64 + 4 * u) for u in range(4)], 40, waits=[f"s_waitcnt vmcnt({3-u+4*NE})" for u in range(4)])
stamp(1)
a(f"s_nop 7\nds_write_b128 v36, {vr(40)}")
get_tag()
a(f"s_waitcnt vmcnt({4*NE})\ns_barrier\ns_cmp_lg_u32 {sW}, 0\ns_cbranch_scc1 L_S1_end")
a(f"ds_read_b128 {vr(44)}, v30\nv_mov_b32 v53, {sN}\nv_mov_b32 v55, {sN}")
reduce_b128("v36", 5, 0, 64, 40)
a("s_nop 1")
for i in range(4):
    a(f"v_mov_b32_dpp v{48+i}, v{40+i} row_ror:8 row_mask:0xf bank_mask:0xf")
for i in range(4):
    a(f"v_add_f32 v{48+i}, s13, v{48+i}")
for i in range(4):
    a(f"v_fmac_f32 v{40+i}, v{44+i}, v{48+i}")
a(f"""v_cvt_pk_bf16_f32 v52, v40, v41
v_cvt_pk_bf16_f32 v54, v42, v43
s_mov_b64 exec, s[8:9]
buffer_store_dwordx4 {vr(52)}, v37, {srd(WS)}, s12 offen sc1
s_mov_b64 exec, -1
""")
stamp(2)
a("s_branch L_S1_end")
a.label("L_S1_other")
a(f"s_cmp_eq_u32 {sW}, 7\ns_cbranch_scc1 L_S1_w7")
mksrd(SC, pX, 2560)
a(f"""
s_sub_u32 s12, {sW}, 5
s_mul_i32 s13, s12, 1280
v_lshlrev_b32 v24, 2, {vLane}
buffer_load_dword v52, v24, {srd(SC)}, s13 offen
buffer_load_dword v53, v24, {srd(SC)}, s13 offen offset:256
buffer_load_dword v54, v24, {srd(SC)}, s13 offen offset:512
buffer_load_dword v55, v24, {srd(SC)}, s13 offen offset:768
buffer_load_dword v56, v24, {srd(SC)}, s13 offen offset:1024
s_lshl_b32 s14, s11, 7
s_add_u32 s13, s13, s14
v_lshlrev_b32 v25, 1, {vLane}
buffer_load_ushort v37, v25, {srd(SC)}, s13 offen
""")
early()
a(f"s_waitcnt vmcnt({4*NE})")
for i in range(5):
    a(f"v_lshlrev_b32 v{40+2*i}, 16, v{52+i}\nv_and_b32 v{41+2*i}, 0xffff0000, v{52+i}")
a("v_add_f32 v26, v40, v41")
for i in range(2, 10): a(f"v_add_f32 v26, v26, v{40+i}")
allreduce("v_add_f32", "v26", "v27")
a(f"v_mul_f32 v26, 0x{f2u(1.0/640):08x}, v26")
a("v_sub_f32 v40, v40, v26\nv_mul_f32 v28, v40, v40")
for i in range(1, 10):
    a(f"v_sub_f32 v{40+i}, v{40+i}, v26\nv_fmac_f32 v28, v{40+i}, v{40+i}")
allreduce("v_add_f32", "v28", "v27")
a(f"""
v_mov_b32 v27, 0x{f2u(1e-5):08x}
v_fmac_f32 v27, 0x{f2u(1.0/640):08x}, v28
v_rsq_f32 v27, v27
v_lshlrev_b32 v37, 16, v37
v_sub_f32 v37, v37, v26
v_mul_f32 v37, v37, v27
s_lshl_b32 s12, s12, 8
s_add_u32 s12, s12, {XN}
v_add_u32 v24, s12, v24
ds_write_b32 v24, v37
s_branch L_S1_bar
""")
a.label("L_S1_w7")
a(f"buffer_store_dwordx4 v[32:35], v36, {srd(WS)}, s47 offen sc1")
early()
a.label("L_S1_bar")
a(f"s_waitcnt vmcnt({4*NE}) lgkmcnt(0)\ns_barrier")
a.label("L_S1_end")
a("s_barrier\ns_branch L_A_main")
a.label("L_A_hold")
early()
if opt("hold", 1):
    get_tag()
    a(f"""s_cmp_lg_u32 {sW}, 0
    s_cbranch_scc1 L_hold_x
    s_sub_u32 s12, {sID}, 80
    s_lshl_b32 s12, s12, 9
    s_add_u32 s12, s12, {R1+4}
    v_mov_b32 v26, s12
    s_mov_b64 exec, 1""")
    gather("L_hold", [f"buffer_load_dword v27, v26, {srd(WS)}, 0 offen sc1"], [27], "v27", mode="tag", sleep=2)
    a("s_barrier")

a.label("L_A_main")
FL1 = FL2 + 0x2000
if opt("hold2", 0):
    get_tag()
    a(f"""s_cmp_lg_u32 {sW}, 1
    s_cbranch_scc1 L_hold2_x
    s_lshl_b32 s12, {sID}, 6
    s_add_u32 s12, s12, {FL1}
    v_mov_b32 v26, s12
    s_mov_b64 exec, 1""")
    gather("L_hold2", [f"buffer_load_dword v27, v26, {srd(WS)}, 0 offen sc1"], [27], "v27", mode="tag", sleep=2)
    a("s_barrier")
mksrd(SB, pWUV, 512 * 8192)
a(f"""
s_lshr_b32 s10, {sID}, 6            ; b
s_and_b32 s11, {sID}, 63            ; chunk
v_and_b32 v24, 31, {vLane}
v_lshrrev_b32 v25, 5, {vLane}
v_lshlrev_b32 v26, 4, {vLane}
s_lshl_b32 s13, {sID}, 8
s_add_u32 s13, s13, {R4}
v_lshrrev_b32 v23, 3, {vLane}
v_mul_u32_u24 v23, {4*R4ST}, v23
v_and_b32 v27, 7, {vLane}
v_lshl_add_u32 v23, v27, 4, v23
""")
a(f"""s_and_b32 s12, {sW}, 3
s_mul_i32 s12, s12, {R4ST}
s_add_u32 s68, s12, s13
s_add_u32 s69, s68, {32*R4ST}
s_add_u32 s70, s68, {64*R4ST}
s_add_u32 s71, s68, {96*R4ST}
v_and_b32 v22, 3, {vLane}
v_lshlrev_b32 v22, 10, v22
s_and_b32 s9, {sID}, 31
s_lshl_b32 s9, s9, 12
s_lshl_b32 s14, {sW}, 7
s_add_u32 s9, s9, s14
s_add_u32 s9, s9, {R2}
""")
for kq in range(NE, 4):
    dma_q(kq)
    if kq == 2:
        a(f"buffer_load_dword v21, v22, {srd(WS)}, s9 offen offset:4 sc1")
stamp(3)
get_tag()
a(f"""v_and_b32 v27, 7, {vLane}
v_mul_u32_u24 v27, 37, v27
v_xor_b32 v27, {sN}, v27
s_mov_b32 s79, 0x00010001""")
for i in range(4):
    a(f"v_bfe_u32 v28, v27, {2*i}, 1\nv_bfe_u32 v29, v27, {2*i+1}, 1\nv_lshl_or_b32 v{248+i}, v29, 16, v28")
a(f"""s_and_b32 s72, {sID}, 7
s_lshl_b32 s72, s72, 2
s_bfe_u32 s73, {sID}, 0x20003
s_add_u32 s72, s72, s73             ; h
s_lshr_b32 s73, {sID}, 5            ; cq
s_lshl_b32 s74, s72, 2
s_add_u32 s74, s74, s73             ; ci
s_lshl_b32 s76, s10, 5
s_lshl_b32 s13, {sW}, 2
s_add_u32 s76, s76, s13
s_lshl_b32 s76, s76, 10
s_add_u32 s76, s76, {R3}
s_lshl_b32 s77, s13, 10
s_add_u32 s77, s77, {QB}
s_and_b32 s14, {sW}, 3
v_xor_b32 v16, s14, {vLane}
v_lshlrev_b32 v16, 4, v16
v_xor_b32 v17, 64, v16
v_xor_b32 v18, 128, v16
v_xor_b32 v19, 192, v16
v_add_u32 v31, s77, v26
s_cmp_ge_u32 {sW}, 4
s_cbranch_scc1 L_A_pvprep
s_lshl_b32 s8, s73, 7
s_lshl_b32 s13, {sW}, 5
s_add_u32 s8, s8, s13
v_lshl_add_u32 v20, {vKg}, 2, s8
v_lshlrev_b32 v20, 13, v20
v_lshl_add_u32 v20, {vN}, 4, v20
s_lshl_b32 s75, s72, 8
v_and_b32 v27, 3, {vLane}
v_lshlrev_b32 v27, 2, v27
v_bfe_u32 v28, {vLane}, 2, 2
v_or_b32 v27, v27, v28
v_xor_b32 v27, v27, v25
v_lshlrev_b32 v27, 4, v27           ; x0
v_lshl_or_b32 v28, v24, 10, v27     ; Q: l31*1024 | x0
v_lshl_or_b32 v27, v24, 8, v27      ; C: l31*256 | x0
s_lshl_b32 s12, {sW}, 13
v_add_u32 v27, s12, v27
v_add_u32 v28, {QB}, v28
""")
for t8 in range(8):
    a(f"v_xor_b32 v{224+t8}, {t8<<5}, v27\nv_xor_b32 v{232+t8}, {t8<<5}, v28")
def q_issue(tagl):
    a(f"v_cmp_ne_u32 vcc, {sN}, v21\ns_mov_b32 s78, 0\ns_cbranch_vccnz {tagl}\ns_mov_b32 m0, s77\ns_mov_b32 s78, 1")
    if not opt("qfirst", 1):
        a(f"s_mov_b32 s78, 0\ns_branch {tagl}")
    for u in range(4):
        a(f"buffer_load_dwordx4 v{16+u}, {srd(WS)}, s76 offen offset:{u*1024} sc1 lds")
    a.label(tagl)
QW = [13, 9, 4]
for kq in range(4):
    if kq < 3: a(f"s_waitcnt vmcnt({QW[kq]}) lgkmcnt(0)")
    if kq == 2: q_issue("L_qi0")
    if kq == 3:
        a("s_cmp_eq_u32 s78, 1\ns_cbranch_scc1 L_qw0\ns_waitcnt vmcnt(0)")
        a.label("L_qw0")
        a("s_waitcnt vmcnt(4) lgkmcnt(0)")
    a("s_barrier")
    if kq == 2:
        for t8 in range(8): a(f"v_add_u32 v{224+t8}, 0x10000, v{224+t8}")
    for t8 in range(8):
        a(f"ds_read_b128 {vr(32+4*(kq*8+t8))}, v{224+t8} offset:{(kq%2)*32768}")
a("s_branch L_A_q")
a.label("L_A_pvprep")
a(f"""v_lshrrev_b32 v27, 2, {vN}          ; r
v_lshrrev_b32 v28, 1, {vKg}         ; kg
v_and_b32 v29, 1, {vKg}
v_lshl_add_u32 v30, v28, 3, v27
v_lshlrev_b32 v30, 8, v30
v_bfe_u32 v20, {vN}, 1, 1
v_lshl_add_u32 v20, v29, 1, v20
v_lshlrev_b32 v27, 2, v27
v_lshl_or_b32 v27, v28, 1, v27
v_xor_b32 v20, v20, v27
v_lshlrev_b32 v20, 4, v20
v_and_b32 v27, 1, {vN}
v_lshlrev_b32 v27, 3, v27
v_add3_u32 v30, v30, v20, v27
s_and_b32 s12, {sW}, 3
s_lshl_b32 s13, s12, 15
v_add_u32 v30, s13, v30
s_lshl_b32 s14, {sID}, 6
s_add_u32 s14, s14, {FL2}
v_mov_b32 v28, {sN}
v_mov_b32 v29, s14
""")
for mt in range(4):
    for e in range(2):
        a(f"v_xor_b32 v{224+mt*2+e}, {(mt*64) ^ (e*16) ^ (e*1024)}, v30")
TRIGQ = opt("trigq", 2)
for kq in range(4):
    if kq < 3: a(f"s_waitcnt vmcnt({QW[kq]}) lgkmcnt(0)")
    if kq == 2: q_issue("L_qi1")
    if kq == 3:
        a("s_cmp_eq_u32 s78, 1\ns_cbranch_scc1 L_qw1\ns_waitcnt vmcnt(0)")
        a.label("L_qw1")
        a("s_waitcnt vmcnt(4) lgkmcnt(0)")
    a("s_barrier")
    if kq == TRIGQ:
        a(f"""s_cmp_lg_u32 {sW}, {4 if kq == 3 else 7}
        s_cbranch_scc1 L_notrig
        s_mov_b64 exec, 1
        buffer_store_dword v28, v29, {srd(WS)}, 0 offen sc1
        s_mov_b64 exec, -1""")
        a.label("L_notrig")
    a(f"s_cmp_lg_u32 s12, {kq}\ns_cbranch_scc1 L_trs{kq}")
    if kq == 0: a.label("L_trread")
    if kq == 0:
        for mt in range(4):
            for t in range(8):
                for e in range(2):
                    d = 32 + (mt * 8 + t) * 4 + e * 2
                    a(f"ds_read_b64_tr_b16 {vr(d,2)}, v{224+mt*2+e} offset:{t*4096}")
        for k2 in range(1, 4):
            a(f"s_cmp_eq_u32 s12, {k2}\ns_cbranch_scc1 L_trs{k2}")
    else:
        a("s_branch L_trread")
    a.label(f"L_trs{kq}")
a.label("L_A_q")
stamp(4)
a("s_cmp_eq_u32 s78, 1\ns_mov_b32 s5, 0\ns_cbranch_scc1 L_Qdma_w\ns_mov_b64 exec, 15")
gather("L_wit", [f"buffer_load_dword v21, v22, {srd(WS)}, s9 offen offset:4 sc1"], [21], "v21", mode="tag", sleep=2)
a(f"s_lshl_b32 s14, s11, 6\nv_mov_b32 v22, s14\ns_mov_b64 exec, 1")
pgather("L_Qgate", lambda b: [f"buffer_load_dword v{b}, v22, {srd(WS)}, s76 offen offset:60 sc1"], 1, [244, 245, 246], None, [0], "v21", gap=3)
a("s_mov_b32 s5, 0\ns_mov_b32 m0, s77\ns_branch L_Qdma_l")
a.label("L_Qdma")
a(f"s_sleep {opt('qsleep', 2)}")
a.label("L_Qdma_l")
for u in range(4):
    a(f"buffer_load_dwordx4 v{16+u}, {srd(WS)}, s76 offen offset:{u*1024} sc1 lds")
a.label("L_Qdma_w")
a("s_waitcnt vmcnt(0)")
for u in range(4):
    a(f"ds_read_b128 {vr(176+4*u)}, v31 offset:{u*1024}")
a("s_waitcnt lgkmcnt(0)")
tree("v_max3_u32", "v_max_u32", "v21", list(range(176, 192)))
timeout("L_Qdma")
a("v_cmp_eq_u32 vcc, -1, v21\ns_mov_b64 exec, vcc\ns_cbranch_execnz L_Qdma")
a.label("L_Qdma_x")
a("s_mov_b64 exec, -1")
stamp(5)
MXL, PL, WTL = 0, 4096, 2048
a(f"""s_barrier
s_cmp_lg_u32 {sW}, 7
s_cbranch_scc1 L_nofl3
s_mov_b64 exec, 1
buffer_store_dword v28, v29, {srd(WS)}, 0 offen offset:32 sc1
s_mov_b64 exec, -1""")
a.label("L_nofl3")
stamp(11)
a(f"s_cmp_ge_u32 {sW}, 4\ns_cbranch_scc1 L_A_pv")
SACC, BF = 160, 176
def qk_read(t):
    a(f"ds_read_b128 {vr(BF+4*(t%4))}, v{232+t%8} offset:{(t//8)*256}")
for t in range(4): qk_read(t)
for t in range(32):
    a(f"s_waitcnt lgkmcnt({min(3, 31-t)})")
    c = "0" if t == 0 else vr(SACC, 16)
    a(f"v_mfma_f32_32x32x16_bf16 {vr(SACC,16)}, {vr(32+4*t)}, {vr(BF+4*(t%4))}, {c}")
    if t + 4 < 32: qk_read(t + 4)
a(f"""s_lshl_b32 s12, {sW}, 2
v_lshlrev_b32 v29, 4, v24           ; MX[head][4]
v_add_u32 v30, s12, v29
v_mul_u32_u24 v31, 272, v24
v_lshl_add_u32 v31, v25, 3, v31
s_lshl_b32 s12, {sW}, 6
v_add_u32 v31, s12, v31
s_lshl_b32 s12, {sID}, 3
s_add_u32 s12, s12, {R4S}
v_lshlrev_b32 v22, 10, v24
s_nop 1
""")
tree("v_max3_f32", "v_max_f32", "v27", list(range(SACC, SACC + 16)))
stamp(12)
a(f"""v_mov_b32 v28, v27
s_nop 1
v_permlane32_swap_b32 v27, v28
s_nop 1
v_max_f32 v27, v27, v28
ds_write_b32 v30, v27 offset:{MXL}
s_waitcnt lgkmcnt(0)
s_barrier
ds_read_b128 {vr(32)}, v29 offset:{MXL}
s_waitcnt lgkmcnt(0)
v_max3_f32 v27, v32, v33, v34
v_max_f32 v27, v27, v35
""")
for g in range(4):
    for i in range(4): a(f"v_sub_f32 v{SACC+4*g+i}, v{SACC+4*g+i}, v27")
    for i in range(4): a(f"v_exp_f32 v{SACC+4*g+i}, v{SACC+4*g+i}")
    a("s_nop 0")
    a(f"v_cvt_pk_bf16_f32 v{32+2*g}, v{SACC+4*g}, v{SACC+4*g+1}\nv_cvt_pk_bf16_f32 v{33+2*g}, v{SACC+4*g+2}, v{SACC+4*g+3}")
    a(f"ds_write_b64 v31, {vr(32+2*g,2)} offset:{PL+g*16}")
a("s_waitcnt lgkmcnt(0)\ns_barrier")
stamp(6)
a(f"v_add_f32 v28, v{SACC}, v{SACC+1}")
for i in range(2, 16): a(f"v_add_f32 v28, v28, v{SACC+i}")
a(f"""v_mov_b32 v40, v28
s_nop 1
v_permlane32_swap_b32 v28, v40
s_nop 1
v_add_f32 v28, v28, v40
ds_write_b32 v30, v28 offset:{MXL+512}
s_lshl_b32 s12, {sW}, 8
s_lshl_b32 s13, {sID}, 10
s_add_u32 s12, s12, s13
s_add_u32 s12, s12, {R4S}
v_lshlrev_b32 v22, 3, v24
s_waitcnt lgkmcnt(0)
s_barrier
ds_read_b128 {vr(36)}, v29 offset:{MXL+512}
v_mov_b32 v32, v27
s_waitcnt lgkmcnt(0)
v_add_f32 v36, v36, v37
v_add_f32 v38, v38, v39
v_add_f32 v33, v36, v38
s_mov_b32 exec_hi, 0
buffer_store_dwordx2 {vr(32,2)}, v22, {srd(WS)}, s12 offen sc1
s_mov_b64 exec, -1
""")
stamp(14)
a(f"""s_cmp_ge_u32 {sW}, 2
s_cbranch_scc1 L_S5
s_lshl_b32 s12, {sW}, 16
s_lshl_b32 s14, s73, 8
s_add_u32 s12, s12, s14
s_lshl_b32 s14, s72, 3
s_add_u32 s12, s12, s14
s_add_u32 s12, s12, {R4S}
v_lshlrev_b32 v21, 10, {vLane}
s_sleep {opt("stdelay", 6)}
""")
gather("L_S5stat", [f"buffer_load_dwordx2 {vr(32,2)}, v21, {srd(WS)}, s12 offen sc1"], [32, 33], "v28", sleep=1)
stamp(10)
a("v_mov_b32 v34, v32")
allreduce("v_max_f32", "v34", "v35")
a("v_sub_f32 v32, v32, v34\nv_exp_f32 v32, v32\ns_nop 0\nv_mul_f32 v33, v33, v32")
allreduce("v_add_f32", "v33", "v35")
a(f"""v_rcp_f32 v33, v33
s_nop 0
v_mul_f32 v32, v32, v33
v_cvt_pk_bf16_f32 v33, v32, v32
v_and_b32 v34, 0xffff0000, v33
v_sub_f32 v34, v32, v34
v_cvt_pk_bf16_f32 v34, v34, v34
v_and_b32 v27, 3, {vLane}
v_lshlrev_b32 v27, 2, v27
v_bfe_u32 v28, {vLane}, 2, 2
v_and_b32 v29, 48, {vLane}
v_add3_u32 v27, v27, v28, v29
v_lshlrev_b32 v27, 2, v27
s_lshl_b32 s12, {sW}, 8
v_add_u32 v27, s12, v27
ds_write_b32 v27, v33 offset:{WTL}
ds_write_b32 v27, v34 offset:{WTL+512+64}
s_waitcnt lgkmcnt(0)
s_branch L_S5
""")
a.label("L_A_pv")
PF = 192; ACC = [160, 176, 32, 48]
a(f"""v_mul_u32_u24 v31, 272, v24
v_lshl_add_u32 v31, v25, 4, v31
v_mul_u32_u24 v27, 144, v24
v_lshl_add_u32 v27, v25, 3, v27
s_mul_i32 s13, {sW}, 4608
s_add_u32 s13, s13, 16384
v_add_u32 v27, s13, v27
v_lshrrev_b32 v28, 3, {vLane}
v_mul_u32_u24 v28, 144, v28
v_and_b32 v29, 7, {vLane}
v_lshl_add_u32 v28, v29, 4, v28
v_add_u32 v28, s13, v28
s_and_b32 s12, {sW}, 3
s_lshl_b32 s8, s73, 7
s_lshl_b32 s13, s12, 5
s_add_u32 s8, s8, s13
v_lshl_add_u32 v20, {vKg}, 2, s8
v_lshlrev_b32 v20, 13, v20
v_lshl_add_u32 v20, {vN}, 4, v20
s_lshl_b32 s75, s72, 8
s_lshl_b32 s12, s12, 13
s_add_u32 s12, s12, 98304
""")
for k in range(8):
    g, u = divmod(k, 4)
    a(f"s_add_u32 s13, s12, {k*1024}\ns_mov_b32 m0, s13\ns_add_u32 s13, s75, {(16*g+u)*8192}\nbuffer_load_dwordx4 v20, {srd(SB)}, s13 offen nt lds")
a("""s_barrier
s_barrier
""")
stamp(12)
for t in range(8):
    a(f"ds_read_b128 {vr(PF+4*t)}, v31 offset:{PL+t*32}")
def pv_mfma(mt, t):
    o = ACC[mt]; d = 32 + (mt * 8 + t) * 4
    c = "0" if t == 0 else vr(o, 16)
    a(f"v_mfma_f32_32x32x16_bf16 {vr(o,16)}, {vr(d)}, {vr(PF+4*t)}, {c}")
def epi_w(rho, k):
    mtl, g = divmod(k, 4); o = ACC[2 * rho + mtl]; r = 224 + (k % 4) * 2
    a(f"v_cvt_pk_bf16_f32 v{r}, v{o+4*g}, v{o+4*g+1}\nv_cvt_pk_bf16_f32 v{r+1}, v{o+4*g+2}, v{o+4*g+3}")
    a(f"ds_write_b64 v27, {vr(r,2)} offset:{mtl*64+g*16}")
for t in range(8):
    a(f"s_waitcnt lgkmcnt({7-t})")
    pv_mfma(0, t); pv_mfma(1, t)
    if t == opt("b3bpos", 2): a("s_barrier")
for t in range(8):
    pv_mfma(2, t); pv_mfma(3, t)
    if t in (1, 2, 3, 4):
        epi_w(0, 2 * (t - 1)); epi_w(0, 2 * (t - 1) + 1)
    if t == 5:
        a("s_waitcnt lgkmcnt(0)")
        for i in range(4): a(f"ds_read_b128 {vr(232+4*i)}, v28 offset:{i*1152}")
    if t == 7:
        for i in range(4):
            a(f"s_waitcnt lgkmcnt({3-i})")
            for c in range(4): a(f"v_bfi_b32 v{232+4*i+c}, s79, v{248+c}, v{232+4*i+c}")
            a(f"buffer_store_dwordx4 {vr(232+4*i)}, v23, {srd(WS)}, s{68+i} offen sc1")
a("s_nop 3")
stamp(13)
for k in range(8): epi_w(1, k)
a("s_waitcnt lgkmcnt(0)")
for i in range(4): a(f"ds_read_b128 {vr(64+4*i)}, v28 offset:{i*1152}")
for i in range(4):
    a(f"s_waitcnt lgkmcnt({3-i})")
    for c in range(4): a(f"v_bfi_b32 v{64+4*i+c}, s79, v{248+c}, v{64+4*i+c}")
    a(f"buffer_store_dwordx4 {vr(64+4*i)}, v23, {srd(WS)}, s{68+i} offen offset:128 sc1")
stamp(7)
a.label("L_S5")
RED5 = 65536; RED5b = 81920
a(f"""s_mul_i32 s13, s74, {R4ST}
s_lshl_b32 s14, {sW}, 12
s_add_u32 s13, s13, s14
s_add_u32 s13, s13, {R4}
v_lshrrev_b32 v29, 3, {vN}
v_mul_u32_u24 v29, 576, v29
v_lshl_add_u32 v29, {vKg}, 4, v29
s_lshl_b32 s14, {sW}, 6
v_add_u32 v29, s14, v29
v_lshlrev_b32 v30, 4, v0
v_lshrrev_b32 v27, 3, {vN}
v_lshlrev_b32 v27, 12, v27
v_and_b32 v28, 3, {vN}
v_lshl_add_u32 v27, v28, 10, v27
v_bfe_u32 v28, {vN}, 2, 1
v_lshl_add_u32 v27, v28, 9, v27
v_and_b32 v28, 1, {vKg}
v_lshl_add_u32 v27, v28, 8, v27
v_lshrrev_b32 v28, 1, {vKg}
v_lshl_add_u32 v27, v28, 4, v27
s_add_u32 s14, s14, {RED5}
v_add_u32 v27, s14, v27
v_add_u32 v30, {RED5}, v30
""")
a(f"s_waitcnt vmcnt({0 if opt('ackwait', 0) else 8})")
a("s_barrier")
if opt("s5delay", 0): a(f"s_sleep {opt('s5delay', 0)}")
S5L = [f"buffer_load_dwordx4 {vr(96+4*u)}, v26, {srd(WS)}, s13 offen offset:{u*1024} sc1" for u in range(4)]
for l in S5L: a(l)
a(f"ds_read_b128 {vr(16)}, v29 offset:{WTL}")
a(f"s_and_b32 s12, {sW}, 3\ns_lshl_b32 s12, s12, 13\ns_add_u32 s12, s12, 98304\nv_add_u32 v31, s12, v26")
for k in range(8): a(f"ds_read_b128 {vr(192+4*k)}, v31 offset:{k*1024}")
a("s_waitcnt lgkmcnt(8)")
for u in range(4):
    for t in range(4):
        a(f"v_and_b32 v{80+4*u+t}, v{16+u}, v{MK[t]}")
a("s_mov_b32 s5, 0\ns_mov_b32 s6, 15")
a.label("L_S5chk")
a("s_waitcnt vmcnt(0)\ns_mov_b32 s7, 0")
for u in range(4):
    b = 96 + 4 * u
    a(f"""v_xor_b32 v28, v{b}, v248
    v_xor_b32 v31, v{b+1}, v249
    v_xor_b32 v21, v{b+2}, v250
    v_xor_b32 v22, v{b+3}, v251
    v_or3_b32 v28, v28, v31, v21
    v_or_b32 v28, v28, v22
    v_and_b32 v28, s79, v28
    v_cmp_ne_u32 vcc, 0, v28
    s_cbranch_vccz L_S5ok{u}
    {S5L[u]}
    s_mov_b32 s7, 1""")
    a.label(f"L_S5ok{u}")
a("""s_add_u32 s5, s5, 1
s_cmp_gt_u32 s5, 200000
s_cbranch_scc1 L_S5done
s_cmp_eq_u32 s7, 1
s_cbranch_scc1 L_S5chk""")
a.label("L_S5done")
stamp(8)
for u in range(4):
    c = "0" if u == 0 else vr(32)
    a(f"v_mfma_f32_16x16x32_bf16 {vr(32)}, {vr(80+4*u)}, {vr(96+4*u)}, {c}")
a(f"""s_nop 7
ds_write_b128 v30, {vr(32)}
s_waitcnt lgkmcnt(0)
s_barrier
s_cmp_ge_u32 {sW}, 4
s_cbranch_scc1 L_S5_b6
ds_read_b128 {vr(40)}, v27
ds_read_b128 {vr(44)}, v27 offset:32
s_waitcnt lgkmcnt(0)
""")
sum8(list(range(40, 48)))
for i in range(8): a(f"v_cvt_pk_bf16_f32 v{40+i}, v{40+i}, v{40+i}")
diag_mfma([(40 + k, 192 + 4 * k) for k in range(8)], 32)
a(f"s_nop 7\nds_write_b128 v30, {vr(32)} offset:{RED5b-RED5}\ns_waitcnt lgkmcnt(0)")
a.label("L_S5_b6")
a(f"s_barrier\ns_cmp_lg_u32 {sW}, 0\ns_cbranch_scc1 L_S9")
dlayout_off("v27", "v28", 256, 2)
a(f"s_lshl_b32 s12, s74, 9\ns_add_u32 s12, s12, {R5}")
reduce_b128("v30", 4, RED5b - RED5, 64, 32)
a(f"""v_cvt_pk_bf16_f32 v32, v32, v33
v_cvt_pk_bf16_f32 v33, v34, v35
buffer_store_dwordx2 {vr(32,2)}, v27, {srd(WS)}, s12 offen sc1
""")
stamp(9)
a.label("L_S9")
if opt("nolate", 0): a("s_branch L_fin")
a(f"s_cmp_ge_u32 {sID}, 80\ns_cbranch_scc1 L_fin\ns_cmp_lg_u32 {sW}, 1\ns_cbranch_scc1 L_fin")
mksrd(SC, pOUT, 2560)
a(f"""
s_mov_b32 s12, {sID}                ; unit
s_lshl_b32 s13, s12, 6
s_add_u32 s13, s13, {R7}
s_add_u32 s14, s13, {16*5120}
s_add_u32 s15, s13, {32*5120}
v_lshrrev_b32 v27, 2, {vLane}       ; pg
v_and_b32 v28, 3, {vLane}
v_mul_u32_u24 v29, 5120, v27
v_lshl_add_u32 v29, v28, 4, v29
v_add_u32 v30, {48*5120}, v29
v_cmp_gt_u32 vcc, {NFFN-48}, v27
v_mov_b32 v31, 0x7fffff00
s_nop 0
v_cndmask_b32 v30, v31, v30, vcc
s_mov_b64 exec, 1
""")
gather("L_S9gate", [f"buffer_load_dword v32, v29, {srd(WS)}, s13 offen sc1"], [32], "v31", sleep=2)
gather("L_S9data", [f"buffer_load_dwordx4 {vr(32)}, v29, {srd(WS)}, s13 offen sc1", f"buffer_load_dwordx4 {vr(36)}, v29, {srd(WS)}, s14 offen sc1",
                    f"buffer_load_dwordx4 {vr(40)}, v29, {srd(WS)}, s15 offen sc1", f"buffer_load_dwordx4 {vr(44)}, v30, {srd(WS)}, s13 offen sc1"],
       list(range(32, 48)), "v31", sleep=0)
stamp(13)
a("""v_pk_add_f32 v[32:33], v[32:33], v[36:37]
v_pk_add_f32 v[34:35], v[34:35], v[38:39]
v_pk_add_f32 v[40:41], v[40:41], v[44:45]
v_pk_add_f32 v[42:43], v[42:43], v[46:47]
v_pk_add_f32 v[32:33], v[32:33], v[40:41]
v_pk_add_f32 v[34:35], v[34:35], v[42:43]""")
for r in (4, 8):
    a("s_nop 1")
    for i in range(4):
        a(f"v_add_f32_dpp v{32+i}, v{32+i}, v{32+i} row_ror:{r} row_mask:0xf bank_mask:0xf")
for sw in ("v_permlane16_swap_b32", "v_permlane32_swap_b32"):
    for i in range(4): a(f"v_mov_b32 v{36+i}, v{32+i}")
    a("s_nop 0")
    for i in range(4): a(f"{sw} v{32+i}, v{36+i}")
    a("s_nop 0")
    for i in range(4): a(f"v_add_f32 v{32+i}, v{32+i}, v{36+i}")
a(f"""v_cvt_pk_bf16_f32 v32, v32, v33
v_cvt_pk_bf16_f32 v33, v34, v35
; L = 4*(u%16)+q4 : rgp = (u%16)>>2, n' = 4*(u&3)+q4 ; byte = b*1280 + nb*256 + n'*16 + (rgp&1)*8
s_lshr_b32 s13, s12, 4
s_lshl_b32 s13, s13, 8
s_bfe_u32 s14, s12, 0x10003
s_mul_i32 s14, s14, 1280
s_add_u32 s13, s13, s14
s_bfe_u32 s14, s12, 0x10002
s_lshl_b32 s14, s14, 3
s_add_u32 s13, s13, s14
s_and_b32 s14, s12, 3
s_lshl_b32 s14, s14, 6
s_add_u32 s13, s13, s14
v_lshlrev_b32 v28, 4, v28
s_mov_b64 exec, 15
buffer_store_dwordx2 {vr(32,2)}, v28, {srd(SC)}, s13 offen
s_cmp_lg_u32 s12, 0
s_cbranch_scc1 L_noep
s_mov_b64 exec, 1
v_mov_b32 v34, {sN}
v_mov_b32 v35, {EPOCH}
buffer_store_dword v34, v35, {srd(WS)}, 0 offen
""")
a.label("L_noep")
a("s_mov_b64 exec, -1\ns_branch L_fin")

a.label("L_F")
ACT = 0; RED = 8192; MISC = 16384; UKL = 32768
LO = f"s_cmp_ge_u32 s10, {F_S1B0+20}\ns_cbranch_scc1 L_fin\ns_branch L_late2" if LATEONLY else ""
mksrd(SA, pWQ, 640 * 8192)
mksrd(SB, pWUK, 512 * 8192)
a(f"""
s_sub_u32 s10, {sID}, 128           ; f
s_and_b32 s11, s10, 7
s_lshl_b32 s11, s11, 2
s_bfe_u32 s12, s10, 0x20003
s_add_u32 s11, s11, s12             ; h
s_lshr_b32 s12, s10, 5              ; r
s_lshl_b32 s14, s11, 8
{LO}
s_cmp_ge_u32 {sW}, 5
s_cbranch_scc1 L_F_b0
s_mul_i32 s13, s12, 160
s_lshl_b32 s15, {sW}, 5
s_add_u32 s13, s13, s15             ; rbase
v_lshl_add_u32 v24, {vKg}, 2, s13
v_lshlrev_b32 v25, 13, v24
v_lshl_add_u32 v25, {vN}, 4, v25
""")
for k in range(8):
    g, u = divmod(k, 4)
    a(f"s_add_u32 s15, s14, {(16*g+u)*8192}\nbuffer_load_dwordx4 {vr(64+4*k)}, v25, {srd(SA)}, s15 offen nt")
UKF = opt("ukfirst", 1)
def emit_uk():
    a(f"""s_sub_u32 s15, {sW}, 4
s_lshl_b32 s8, s15, 13
s_add_u32 s8, s8, {UKL}
s_lshl_b32 s9, s12, 7
s_lshl_b32 s15, s15, 5
s_add_u32 s9, s9, s15
s_lshl_b32 s9, s9, 13
s_add_u32 s9, s9, s14
v_xor_b32 v26, {vKg}, {vN}
v_lshlrev_b32 v26, 4, v26
v_lshl_add_u32 v26, {vKg}, 13, v26
""")
    for i in range(8):
        a(f"s_add_u32 s15, s8, {i*1024}\ns_mov_b32 m0, s15\nv_xor_b32 v{27+i%2}, {(4*(i&3))<<4}, v26\ns_add_u32 s15, s9, {i*4*8192}")
        a(f"buffer_load_dwordx4 v{27+i%2}, {srd(SB)}, s15 offen nt lds")

if UKF:
    a(f"s_cmp_lt_u32 {sW}, 4\ns_cbranch_scc1 L_F_h1")
    a.label("L_F_b0")
    emit_uk()
    a(f"s_cmp_eq_u32 {sW}, 4\ns_cbranch_scc1 L_F_h1")
    a(f"""s_mul_i32 s15, s10, 5120
    s_add_u32 s15, s15, {R5}
    s_min_u32 s15, s15, {SMALL1-5120}
    v_subrev_u32 v26, 320, v0
    v_lshlrev_b32 v26, 4, v26
    v_mov_b32 v32, -1
    v_mov_b32 v33, -1
    v_mov_b32 v34, -1
    v_mov_b32 v35, -1
    buffer_store_dwordx4 v[32:35], v26, {srd(WS)}, s15 offen sc1
    buffer_store_dwordx4 v[32:35], v26, {srd(WS)}, s15 offen offset:2048 sc1""")
    get_tag()
    if opt("hold2", 0):
        a(f"""s_cmp_lg_u32 {sW}, 7
        s_cbranch_scc1 L_nofl1
        s_lshl_b32 s15, s10, 6
        s_add_u32 s15, s15, {FL1}
        v_mov_b32 v26, s15
        v_mov_b32 v27, {sN}
        s_waitcnt vmcnt({opt("h2cnt", 6)})
        s_mov_b64 exec, 1
        buffer_store_dword v27, v26, {srd(WS)}, 0 offen sc1
        s_mov_b64 exec, -1""")
        a.label("L_nofl1")
    a("s_barrier\ns_branch L_F_s3")
a.label("L_F_h1")
get_tag()
H1S = 24576
a(f"""; lane -> p = kg (+4), b = vN>>3, piece = vN&7 ; addr = (p*2+b)*2560 + rbase*4 + piece*16
v_mul_u32_u24 v26, 5120, {vKg}
v_lshrrev_b32 v27, 3, {vN}
v_mul_u32_u24 v27, 2560, v27
v_and_b32 v28, 7, {vN}
v_lshlrev_b32 v28, 4, v28
v_add3_u32 v26, v26, v27, v28
s_lshl_b32 s15, s13, 2
s_add_u32 s15, s15, {R1}
s_add_u32 s9, s15, 20480
v_lshlrev_b32 v30, 4, v0
s_lshl_b32 s8, {sW}, 9
s_add_u32 s8, s8, {H1S}
v_lshlrev_b32 v27, 4, {vN}
v_add_u32 v27, s8, v27
v_lshrrev_b32 v31, 3, {vN}
v_lshlrev_b32 v31, 7, v31
v_lshl_add_u32 v31, {vKg}, 4, v31
v_add_u32 v31, s8, v31
s_waitcnt vmcnt({opt("h1wait", 1)})
""")
gather("L_H1", [f"buffer_load_dwordx4 {vr(32)}, v26, {srd(WS)}, s15 offen sc1", f"buffer_load_dwordx4 {vr(36)}, v26, {srd(WS)}, s9 offen sc1"],
       [33, 35, 37, 39], "v28", mode="tag", vt2="v29", sleep=1)
stamp(1)
a("""s_mov_b32 s8, 0x3f80
s_mov_b32 s9, 0x3f800000
v_lshlrev_b32 v40, 16, v32
v_and_b32 v41, 0xffff0000, v32
v_lshlrev_b32 v42, 16, v34
v_and_b32 v43, 0xffff0000, v34
v_dot2c_f32_bf16 v40, s8, v36
v_dot2c_f32_bf16 v41, s9, v36
v_dot2c_f32_bf16 v42, s8, v38
v_dot2c_f32_bf16 v43, s9, v38
s_nop 1""")
for sw in ("v_permlane16_swap_b32", "v_permlane32_swap_b32"):
    for i in range(4): a(f"v_mov_b32 v{44+i}, v{40+i}")
    a("s_nop 0")
    for i in range(4): a(f"{sw} v{40+i}, v{44+i}")
    a("s_nop 0")
    for i in range(4): a(f"v_add_f32 v{40+i}, v{40+i}, v{44+i}")
for i in range(4): a(f"v_cvt_pk_bf16_f32 v{40+i}, v{40+i}, v{40+i}")
a(f"""ds_write_b128 v27, {vr(40)}
s_waitcnt lgkmcnt(0)
ds_read_b128 {vr(40)}, v31
ds_read_b128 {vr(44)}, v31 offset:64
s_waitcnt lgkmcnt(0)""")
diag_mfma([(40 + k, 64 + 4 * k) for k in range(8)], 32)
a(f"s_nop 7\nds_write_b128 v30, {vr(32)} offset:{RED}")
if UKF:
    a(f"s_waitcnt lgkmcnt(0)\ns_barrier")
else:
    a(f"s_waitcnt lgkmcnt(0)\ns_barrier\ns_cmp_lg_u32 {sW}, 4\ns_cbranch_scc1 L_F_bar1\ns_branch L_F_uk")
    a.label("L_F_b0")
    get_tag()
    a("s_barrier")
    a.label("L_F_uk")
    emit_uk()
    a(f"s_cmp_eq_u32 {sW}, 4\ns_cbranch_scc1 L_F_s3\ns_barrier\ns_branch L_F_s3")
    a.label("L_F_bar1")
a(f"s_cmp_lg_u32 {sW}, 0\ns_cbranch_scc1 L_F_s3")
dlayout_off("v27", "v28", 512, 4)
a(f"""s_lshl_b32 s15, s11, 2
s_add_u32 s15, s15, s12
s_lshl_b32 s15, s15, 10
s_add_u32 s15, s15, {R2}
v_mov_b32 v37, {sN}
v_mov_b32 v39, {sN}""")
reduce_b128("v30", 5, RED, 64, 32)
a(f"""v_cvt_pk_bf16_f32 v36, v32, v33
v_cvt_pk_bf16_f32 v38, v34, v35
buffer_store_dwordx4 {vr(36)}, v27, {srd(WS)}, s15 offen sc1
""")
stamp(2)
a.label("L_F_s3")
a(f"s_cmp_lt_u32 {sW}, 4\ns_cbranch_scc1 L_S3_h2")
a(f"""v_lshrrev_b32 v24, 2, {vN}
v_lshlrev_b32 v24, 3, v24
v_and_b32 v25, 3, {vN}
v_add_u32 v24, v24, v25
v_and_b32 v25, 15, v24
v_xor_b32 v25, v25, {vKg}
v_lshlrev_b32 v25, 4, v25
v_lshl_add_u32 v25, v24, 8, v25
s_sub_u32 s8, {sW}, 4
s_lshl_b32 s8, s8, 13
s_add_u32 s8, s8, {UKL}
v_add_u32 v25, s8, v25
s_waitcnt vmcnt(0)
""")
for t in range(2):
    for s in range(4):
        k = t * 4 + s
        a(f"v_xor_b32 v26, {((4*s) ^ (4*t)) << 4}, v25\nds_read_b128 {vr(64+4*k)}, v26 offset:{t*1024}")
a(f"""v_and_b32 v26, 1, {vN}
v_mul_u32_u24 v27, 320, v26
v_lshl_add_u32 v27, {vKg}, 4, v27
v_lshlrev_b32 v28, 15, v26
v_lshl_add_u32 v28, {vKg}, 4, v28
s_lshl_b32 s14, s11, 10
s_lshl_b32 s15, s12, 8
s_add_u32 s14, s14, s15
s_sub_u32 s15, {sW}, 4
s_lshl_b32 s15, s15, 6
s_add_u32 s14, s14, s15
s_add_u32 s14, s14, {R3}
s_mov_b32 s15, 0x{f2u(128 ** -0.5 * LOG2E):08x}
s_mov_b32 s8, 0x00030003
s_mov_b32 s9, 0x00030003
s_waitcnt lgkmcnt(0)
s_barrier
""")
for s in range(4):
    a(f"ds_read_b128 {vr(40+4*s)}, v27 offset:{ACT+64*s}")
for s in range(4):
    a(f"s_waitcnt lgkmcnt({3-s})")
    for t in range(2):
        k = t * 4 + s
        c = "0" if s == 0 else vr(32 + 4 * t)
        a(f"v_mfma_f32_16x16x32_bf16 {vr(32+4*t)}, {vr(64+4*k)}, {vr(40+4*s)}, {c}")
a("s_nop 6")
for i in range(8): a(f"v_mul_f32 v{32+i}, s15, v{32+i}")
for i in range(4): a(f"v_cvt_pk_bf16_f32 v{32+i}, v{32+2*i}, v{33+2*i}")
a(f"""s_mov_b64 exec, s[8:9]
buffer_store_dwordx4 {vr(32)}, v28, {srd(WS)}, s14 offen sc1
s_mov_b64 exec, -1
""")
stamp(4)
a("s_branch L_F_late")
a.label("L_S3_h2")
a(f"""s_cmp_lg_u32 {sW}, 1
s_cbranch_scc1 L_S3_bar
v_lshlrev_b32 v26, 4, {vLane}
s_lshl_b32 s14, s11, 12
s_add_u32 s14, s14, {R2}
v_lshrrev_b32 v27, 5, {vLane}
v_mul_u32_u24 v27, 320, v27
v_and_b32 v28, 31, {vLane}
v_lshl_add_u32 v27, v28, 3, v27
s_mov_b32 s8, 0x3f80
s_mov_b32 s9, 0x3f800000
""")
if opt("h2p", 0):
    pgather("L_H2", lambda b: [f"buffer_load_dwordx4 {vr(b+4*r)}, v26, {srd(WS)}, s14 offen offset:{r*1024} sc1" for r in range(4)],
        16, [160, 176], 32, [1 + 2 * i for i in range(8)], "v28", mode="tag", vt2="v29", gap=3)
else:
    gather("L_H2", [f"buffer_load_dwordx4 {vr(32+4*r)}, v26, {srd(WS)}, s14 offen offset:{r*1024} sc1" for r in range(4)],
       [33 + 2 * i for i in range(8)], "v28", mode="tag", vt2="v29", sleep=0)
stamp(3)
a("v_lshlrev_b32 v48, 16, v32\nv_and_b32 v49, 0xffff0000, v32\nv_lshlrev_b32 v50, 16, v34\nv_and_b32 v51, 0xffff0000, v34")
for r in range(1, 4):
    a(f"v_dot2c_f32_bf16 v48, s8, v{32+4*r}\nv_dot2c_f32_bf16 v49, s9, v{32+4*r}\nv_dot2c_f32_bf16 v50, s8, v{34+4*r}\nv_dot2c_f32_bf16 v51, s9, v{34+4*r}")
a(f"""s_nop 2
v_cvt_pk_bf16_f32 v48, v48, v49
v_cvt_pk_bf16_f32 v49, v50, v51
ds_write_b64 v27, {vr(48,2)} offset:{ACT}
s_waitcnt lgkmcnt(0)
""")
a.label("L_S3_bar")
a("s_barrier")
a.label("L_F_late")
if opt("nolate", 0): a("s_branch L_fin")
a(f"""s_cmp_ge_u32 s10, {F_S1B0+20}
s_cbranch_scc1 L_fin
s_barrier
s_cmp_ge_u32 s10, {opt("notrig", F_S1B0)}
s_cbranch_scc1 L_late2
s_cmp_lg_u32 {sW}, 0
s_cbranch_scc1 L_trig_x
s_lshl_b32 s15, s10, 6
s_add_u32 s15, s15, {FL2}
v_mov_b32 v26, s15
s_mov_b64 exec, 1""")
gather("L_trig", [f"buffer_load_dword v27, v26, {srd(WS)}, 0 offen sc1"], [27], "v27", mode="tag", sleep=4)
a("s_barrier")
a.label("L_late2")
stamp(6)
a(f"s_cmp_ge_u32 s10, {F_S1B0}\ns_cbranch_scc1 L_S1b\ns_cmp_ge_u32 s10, {F_FFN0}\ns_cbranch_scc1 L_FFN")
mksrd(SA, pWO, 4096 * 1280)
a(f"""
s_and_b32 s11, s10, 7               ; g
s_lshr_b32 s12, s10, 3              ; nb
s_lshl_b32 s13, s11, 9
s_lshl_b32 s14, {sW}, 6
s_add_u32 s13, s13, s14
v_lshl_add_u32 v24, {vKg}, 2, s13
v_mul_u32_u24 v24, 1280, v24
v_lshl_add_u32 v24, {vN}, 4, v24
s_lshl_b32 s14, s12, 8
""")
for g in range(4):
    for u in range(4):
        k = g * 4 + u
        a(f"buffer_load_dwordx4 {vr(128+4*k)}, v24, {srd(SA)}, s14 offen offset:{u*1280} nt")
    if g < 3: a("s_add_u32 s14, s14, 20480")
a(f"""v_lshrrev_b32 v26, 7, v0
v_lshlrev_b32 v27, 11, v26
v_and_b32 v28, 127, v0
v_lshl_add_u32 v27, v28, 2, v27
s_lshl_b32 s14, s11, 13
s_add_u32 s14, s14, {R5}
v_bfe_u32 v28, v0, 6, 1
v_mul_u32_u24 v28, 2112, v28
v_lshl_add_u32 v28, v26, 9, v28
v_lshl_add_u32 v28, {vLane}, 3, v28
v_lshrrev_b32 v26, 3, {vN}
v_mul_u32_u24 v26, 2112, v26
s_lshl_b32 s15, {sW}, 8
v_add_u32 v26, s15, v26
v_lshl_add_u32 v26, {vKg}, 4, v26
v_lshlrev_b32 v30, 4, v0
s_mov_b32 s8, 0x3f80
s_mov_b32 s9, 0x3f800000
s_waitcnt vmcnt(0)
""")
stamp(7)
if LATEONLY: a("s_branch L_fin")
a(f"""s_lshl_b32 s15, s10, 6
s_add_u32 s15, s15, {FL2+32}
v_mov_b32 v31, s15
s_mov_b64 exec, 1""")
gather("L_w3a", [f"buffer_load_dword v32, v31, {srd(WS)}, 0 offen sc1"], [32], "v32", mode="tag", sleep=4)
a("s_mov_b64 exec, 1")
gather("L_H5gate", [f"buffer_load_dword v32, v27, {srd(WS)}, s14 offen sc1"], [32], "v31", sleep=2)
gather("L_H5", [f"buffer_load_dword v{32+c}, v27, {srd(WS)}, s14 offen offset:{c*512} sc1" for c in range(4)], [32, 33, 34, 35], "v29", sleep=0)
stamp(8)
a("v_lshlrev_b32 v36, 16, v32\nv_and_b32 v37, 0xffff0000, v32")
for c in range(1, 4):
    a(f"v_dot2c_f32_bf16 v36, s8, v{32+c}\nv_dot2c_f32_bf16 v37, s9, v{32+c}")
a(f"""s_nop 2
v_cvt_pk_bf16_f32 v36, v36, v36
v_cvt_pk_bf16_f32 v37, v37, v37
ds_write_b64 v28, {vr(36,2)} offset:{ACT}
s_waitcnt lgkmcnt(0)
s_barrier
""")
for g in range(4): a(f"ds_read_b128 {vr(40+4*g)}, v26 offset:{ACT+64*g}")
a("s_waitcnt lgkmcnt(3)")
diag_mfma([(40 + k, 128 + 4 * k) for k in range(16)], 32,
          waits=[("s_waitcnt lgkmcnt(%d)" % (2 - k // 4)) if (k % 4 == 2 and k < 12) else None for k in range(16)])
a(f"""s_nop 7
ds_write_b128 v30, {vr(32)} offset:{RED}
s_waitcnt lgkmcnt(0)
s_barrier
s_cmp_lg_u32 {sW}, 0
s_cbranch_scc1 L_fin
""")
a(f"v_lshlrev_b32 v27, 3, {vLane}")
a(f"""s_mul_i32 s14, s11, 2560
s_lshl_b32 s15, s12, 9
s_add_u32 s14, s14, s15
s_add_u32 s14, s14, {R6}""")
reduce_b128("v30", 8, RED, 64, 32)
a(f"""v_cvt_pk_bf16_f32 v32, v32, v33
v_cvt_pk_bf16_f32 v33, v34, v35
buffer_store_dwordx2 {vr(32,2)}, v27, {srd(WS)}, s14 offen sc1
""")
stamp(9)
a("s_branch L_fin")
a.label("L_S1b")
mksrd(SA, pWM, 640 * 7680)
mksrd(SB, pC, 2560)
a(f"""
s_sub_u32 s11, s10, {F_S1B0}        ; q
s_mul_i32 s13, {sW}, 80
v_lshl_add_u32 v24, {vKg}, 2, s13
v_lshrrev_b32 v25, 3, {vN}
v_mul_u32_u24 v26, 1280, v25
v_lshl_add_u32 v26, v24, 1, v26
v_mul_u32_u24 v27, 7680, v24
v_lshl_add_u32 v27, {vN}, 4, v27
s_lshl_b32 s14, s11, 8
s_add_u32 s14, s14, 2560
""")
for g in range(5):
    a(f"buffer_load_dwordx2 {vr(40+2*g,2)}, v26, {srd(SB)}, 0 offen offset:{g*32}")
for k in range(20):
    g, u = divmod(k, 4)
    a(f"s_add_u32 s15, s14, {(g*16+u)*7680}\nbuffer_load_dwordx4 {vr(128+4*k)}, v27, {srd(SA)}, s15 offen nt")
a("s_waitcnt vmcnt(20)")
for g in range(5): silu_c4(40 + 2 * g, 64 + 4 * g, "v24")
a("v_lshlrev_b32 v30, 4, v0")
diag_mfma([(64 + k, 128 + 4 * k) for k in range(20)], 32, waits=[f"s_waitcnt vmcnt({19-k})" for k in range(20)])
a(f"""s_nop 7
ds_write_b128 v30, {vr(32)} offset:{RED}
s_waitcnt lgkmcnt(0)
s_barrier
s_cmp_lg_u32 {sW}, 0
s_cbranch_scc1 L_fin
""")
a(f"""s_lshl_b32 s15, s10, 6
s_add_u32 s15, s15, {FL2+32}
v_mov_b32 v31, s15
s_mov_b64 exec, 1""")
gather("L_w3b", [f"buffer_load_dword v32, v31, {srd(WS)}, 0 offen sc1"], [32], "v32", mode="tag", sleep=4)
a(f"v_lshlrev_b32 v27, 4, {vLane}\ns_lshl_b32 s14, s11, 10\ns_add_u32 s14, s14, {R8}")
reduce_b128("v30", 8, RED, 64, 32)
a(f"buffer_store_dwordx4 {vr(32)}, v27, {srd(WS)}, s14 offen sc1")
stamp(9)
a("s_branch L_fin")
a.label("L_FFN")
mksrd(SA, pWG, 640 * 3456)
mksrd(SB, pWU, 640 * 3456)
mksrd(SC, pWD, 1728 * 1280)
mksrd(SD, pX, 2560)
GW = 64
DW = 104
M2 = [16, 17]
AST = 2624
PRE = 32768
X1L = MISC; STL = MISC + 5120; ACT2 = MISC + 6144
a(f"""
s_sub_u32 s11, s10, {F_FFN0}        ; fb
s_mul_i32 s13, {sW}, 80
v_lshl_add_u32 v24, {vKg}, 2, s13
v_lshrrev_b32 v25, 3, {vN}
v_add_u32 v24, v24, v25             ; row (e=0,q=0)
v_mul_u32_u24 v24, 3456, v24
v_and_b32 v25, 3, {vN}
v_lshl_add_u32 v24, v25, 4, v24
s_lshl_b32 s14, s11, 6
s_mov_b32 s8, 0x0f0f0f0f
s_mov_b32 s9, 0x0f0f0f0f
s_mov_b64 exec, s[8:9]
""")
for half, sr in ((0, SA), (1, SB)):
    if half: a("s_not_b64 exec, exec")
    for k in range(10):
        q, e = divmod(k, 2)
        a(f"s_add_u32 s15, s14, {(16*q+2*e)*3456}\nbuffer_load_dwordx4 {vr(GW+4*k)}, v24, {srd(sr)}, s15 offen nt")
a(f"""s_mov_b64 exec, -1
v_and_b32 v24, 1, {vN}
v_lshlrev_b32 v24, 4, v24
v_mov_b32 v25, 0xffff
v_lshlrev_b32 v24, v24, v25
v_and_b32 v25, 2, {vN}
v_cmp_eq_u32 vcc, 0, v25
s_nop 1
v_cndmask_b32 v{M2[0]}, 0, v24, vcc
v_cndmask_b32 v{M2[1]}, v24, 0, vcc
v_lshlrev_b32 v20, 3, v0
s_cmp_ge_u32 {sW}, 5
s_cbranch_scc1 L_FFN_x1
s_lshl_b32 s13, s11, 5
v_lshl_add_u32 v24, {vKg}, 2, s13
v_mul_u32_u24 v24, 1280, v24
v_lshl_add_u32 v24, {vN}, 4, v24
s_lshl_b32 s14, {sW}, 8
s_add_u32 s15, s14, 20480
""")
for k in range(8):
    g, u = divmod(k, 4)
    a(f"buffer_load_dwordx4 {vr(DW+4*k)}, v24, {srd(SC)}, s{14+g} offen offset:{u*1280} nt")
dlayout_off("v18", "v19", 1280, 2)
dlayout_off("v21", "v19", AST, 4)
a(f"""s_lshl_b32 s14, {sW}, 8
buffer_load_dwordx2 {vr(48,2)}, v18, {srd(SD)}, s14 offen
s_lshl_b32 s14, {sW}, 9
v_add_u32 v21, s14, v21
v_lshlrev_b32 v28, 4, v0
s_mov_b32 s13, {R8}
s_mov_b32 s12, {R8+5120}
s_mov_b32 s14, {R8+10240}
s_mov_b32 s9, {R8+15360}
s_waitcnt vmcnt(0)
""")
stamp(5)
if LATEONLY: a("s_branch L_fin")
a(f"""s_lshl_b32 s15, s10, 6
s_add_u32 s15, s15, {FL2+32}
v_mov_b32 v31, s15
s_mov_b64 exec, 1""")
gather("L_w3c", [f"buffer_load_dword v32, v31, {srd(WS)}, 0 offen sc1"], [32], "v32", mode="tag", sleep=4)
R8L = [f"buffer_load_dwordx4 {vr(208)}, v28, {srd(WS)}, s13 offen sc1",
    f"buffer_load_dwordx4 {vr(212)}, v28, {srd(WS)}, s12 offen sc1",
    f"buffer_load_dwordx4 {vr(216)}, v28, {srd(WS)}, s14 offen sc1",
    f"buffer_load_dwordx4 {vr(220)}, v28, {srd(WS)}, s9 offen sc1"]
a("s_mov_b64 exec, 1")
gather("L_R8g", R8L, list(range(208, 224)), "v31", sleep=3)
gather("L_R8", R8L, list(range(208, 224)), "v31", sleep=1)
a(f"""v_lshlrev_b32 v50, 16, v48
v_and_b32 v51, 0xffff0000, v48
v_lshlrev_b32 v52, 16, v49
v_and_b32 v53, 0xffff0000, v49""")
for i in range(4):
    a(f"v_add_f32 v{216+i}, 1.0, v{216+i}")
for i in range(4):
    a(f"v_cvt_pk_bf16_f32 v{32+i}, v{216+i}, v{216+i}\nv_cvt_pk_bf16_f32 v{36+i}, v{212+i}, v{212+i}")
for i in range(4):
    a(f"v_and_b32 v{216+i}, 0xffff0000, v{32+i}")
a(f"ds_write_b128 v21, {vr(32)} offset:{PRE}\nds_write_b128 v21, {vr(36)} offset:{PRE+2*AST}")
a.label("L_FFN_x1")
a("s_waitcnt vmcnt(0)")
if LATEONLY:
    stamp(5)
    a("s_branch L_fin")
for k in range(10):
    d = GW + 4 * k
    a(f"""v_mov_b32 v24, v{d+2}
    v_mov_b32 v25, v{d+3}
    v_mov_b32_dpp v{d+2}, v{d} row_ror:8 row_mask:0xf bank_mask:0x3
    v_mov_b32_dpp v{d+3}, v{d+1} row_ror:8 row_mask:0xf bank_mask:0x3
    v_mov_b32_dpp v{d}, v24 row_ror:8 row_mask:0xf bank_mask:0xc
    v_mov_b32_dpp v{d+1}, v25 row_ror:8 row_mask:0xf bank_mask:0xc""")
a(f"""v_lshrrev_b32 v22, 2, {vN}
v_and_b32 v23, 1, v22
v_mul_u32_u24 v22, {AST}, v22
v_mul_u32_u24 v23, {AST}, v23
s_mul_i32 s15, {sW}, 320
v_lshl_add_u32 v24, {vKg}, 4, s15
v_add_u32 v22, v22, v24
v_add_u32 v23, v23, v24
v_lshlrev_b32 v30, 4, v0
v_lshrrev_b32 v29, 5, {vLane}
v_lshlrev_b32 v28, 8, v29
v_bfe_u32 v24, {vLane}, 2, 1
v_lshl_add_u32 v28, v24, 7, v28
v_bfe_u32 v24, {vLane}, 3, 2
v_lshl_add_u32 v28, v24, 4, v28
v_and_b32 v24, 3, {vLane}
v_lshl_add_u32 v28, v24, 2, v28
v_add_u32 v28, {RED}, v28
s_waitcnt lgkmcnt(0)
s_barrier
""")
def gu_pass(addr, base):
    for q in range(5): a(f"ds_read_b128 {vr(224+4*q)}, {addr} offset:{base+64*q}")
    a("s_waitcnt lgkmcnt(4)")
    diag_mfma([((224 + 2 * k, 225 + 2 * k), GW + 4 * k) for k in range(10)], 32, masks=M2,
              waits=[("s_waitcnt lgkmcnt(%d)" % (3 - k // 2)) if (k % 2 == 0 and k < 8) else None for k in range(10)])
    a(f"s_nop 7\nds_write_b128 v30, {vr(32)} offset:{RED}\ns_waitcnt lgkmcnt(0)\ns_barrier")
gu_pass("v22", PRE)
a(f"s_cmp_lg_u32 {sW}, 0\ns_cbranch_scc1 L_FFN_pre2")
def red_gu(off, dst):
    for w in range(8):
        a(f"ds_read2_b32 {vr(136+2*w,2)}, v28 offset0:{(off)//4} offset1:{(off+64)//4}" if False else
          f"ds_read_b32 v{136+2*w}, v28 offset:{w*1024+off}\nds_read_b32 v{137+2*w}, v28 offset:{w*1024+off+64}")
    a(f"""s_waitcnt lgkmcnt(0)
    v_pk_add_f32 v[136:137], v[136:137], v[138:139]
    v_pk_add_f32 v[140:141], v[140:141], v[142:143]
    v_pk_add_f32 v[144:145], v[144:145], v[146:147]
    v_pk_add_f32 v[148:149], v[148:149], v[150:151]
    v_pk_add_f32 v[136:137], v[136:137], v[140:141]
    v_pk_add_f32 v[144:145], v[144:145], v[148:149]
    v_pk_add_f32 {vr(dst,2)}, v[136:137], v[144:145]""")
red_gu(0, 200)
red_gu(512, 202)
a.label("L_FFN_pre2")
stamp(7)
a(f"""s_cmp_ge_u32 {sW}, 5
s_cbranch_scc1 L_FFN_b1
s_mov_b32 s8, 0x3f80
s_mov_b32 s9, 0x3f800000
s_mov_b32 s13, {R6}
s_mov_b32 s12, {R6+4*2560}
s_mov_b64 exec, 1
""")
gather("L_H6gate", [f"buffer_load_dword v32, v20, {srd(WS)}, s13 offen sc1"], [32], "v33", sleep=2)
def H6L(b):
    r = []
    for g in range(8):
        if g % 4 < 2: r.append(f"buffer_load_dwordx2 {vr(b+2*g,2)}, v20, {srd(WS)}, s{13 if g < 4 else 12} offen offset:{(g%4)*2560} sc1")
        else: r.append(f"buffer_load_dwordx2 {vr(b+2*g,2)}, v27, {srd(WS)}, s{13 if g < 4 else 12} offen offset:{(g%4-2)*2560} sc1")
    return r
a("v_add_u32 v27, 5120, v20")
gather("L_H6", H6L(32), list(range(32, 48)), "v31", sleep=0)
stamp(8)
a("v_lshlrev_b32 v54, 16, v32\nv_and_b32 v55, 0xffff0000, v32\nv_lshlrev_b32 v56, 16, v33\nv_and_b32 v57, 0xffff0000, v33")
for g in range(1, 8):
    a(f"v_dot2c_f32_bf16 v54, s8, v{32+2*g}\nv_dot2c_f32_bf16 v55, s9, v{32+2*g}\nv_dot2c_f32_bf16 v56, s8, v{33+2*g}\nv_dot2c_f32_bf16 v57, s9, v{33+2*g}")
a("s_nop 2")
for i in range(4): a(f"v_fmac_f32 v{50+i}, v{208+i}, v{54+i}")
for i in range(4): a(f"v_mul_f32 v{54+i}, v{50+i}, v{216+i}")
for i in range(4): a(f"v_cvt_pk_bf16_f32 v{54+i}, v{54+i}, v{54+i}")
a(f"""ds_write_b128 v21, {vr(54)} offset:{ACT}
s_waitcnt lgkmcnt(0)
s_barrier
v_add_f32 v40, v50, v51
v_add_f32 v41, v52, v53
v_add_f32 v40, v40, v41
v_mul_f32 v41, v50, v50
v_fmac_f32 v41, v51, v51
v_fmac_f32 v41, v52, v52
v_fmac_f32 v41, v53, v53
""")
for r in (8, 4, 2, 1):
    a(f"s_nop 0\nv_add_f32_dpp v40, v40, v40 row_ror:{r} row_mask:0xf bank_mask:0xf\nv_add_f32_dpp v41, v41, v41 row_ror:{r} row_mask:0xf bank_mask:0xf")
a(f"""v_mov_b32 v42, v40
v_mov_b32 v43, v41
s_nop 0
v_permlane16_swap_b32 v40, v42
v_permlane16_swap_b32 v41, v43
s_nop 0
v_add_f32 v40, v40, v42
v_add_f32 v41, v41, v43
v_lshrrev_b32 v42, 5, v0
v_lshlrev_b32 v42, 3, v42
ds_write_b64 v42, {vr(40,2)} offset:{STL}
s_branch L_FFN_main
""")
a.label("L_FFN_b1")
a("s_barrier")
a.label("L_FFN_main")
a("s_waitcnt lgkmcnt(0)")
gu_pass("v23", ACT)
a(f"""s_cmp_lg_u32 {sW}, 0
s_cbranch_scc1 L_FFN_b3
v_lshlrev_b32 v24, 3, v29
""")
for i in range(5): a(f"ds_read_b64 {vr(152+2*i,2)}, v24 offset:{STL+16*i}")
red_gu(0, 32)
a(f"""v_pk_add_f32 v[152:153], v[152:153], v[154:155]
v_pk_add_f32 v[156:157], v[156:157], v[158:159]
v_pk_add_f32 v[152:153], v[152:153], v[160:161]
v_pk_add_f32 v[152:153], v[152:153], v[156:157]
v_mul_f32 v152, 0x{f2u(1.0/640):08x}, v152      ; mean
v_mul_f32 v153, 0x{f2u(1.0/640):08x}, v153
v_fma_f32 v153, -v152, v152, v153
v_max_f32 v153, 0, v153
v_add_f32 v153, 0x{f2u(1e-5):08x}, v153
v_rsq_f32 v153, v153
v_fma_f32 v32, -v152, v200, v32
v_fma_f32 v33, -v152, v201, v33
v_fma_f32 v32, v32, v153, v202
v_fma_f32 v33, v33, v153, v203
""")
silu("v32", "v34")
a(f"""v_mul_f32 v32, v32, v33
v_cvt_pk_bf16_f32 v32, v32, v32
v_mul_u32_u24 v24, 192, v29
v_and_b32 v25, 31, {vLane}
v_lshl_add_u32 v24, v25, 2, v24
ds_write_b32 v24, v32 offset:{ACT2}
s_waitcnt lgkmcnt(0)
""")
a.label("L_FFN_b3")
a(f"""v_lshrrev_b32 v24, 3, {vN}
v_mul_u32_u24 v24, 192, v24
v_lshl_add_u32 v24, {vKg}, 4, v24""")
a(f"""s_cmp_eq_u32 s11, 0
s_cselect_b32 s15, 1.0, 0
s_mul_i32 s14, s11, 5120
s_add_u32 s14, s14, {R7}
v_mul_f32 v50, s15, v50
v_mul_f32 v51, s15, v51
v_mul_f32 v52, s15, v52
v_mul_f32 v53, s15, v53
s_barrier
s_cmp_ge_u32 {sW}, 5
s_cbranch_scc1 L_fin
ds_read_b128 {vr(224)}, v24 offset:{ACT2}
ds_read_b128 {vr(228)}, v24 offset:{ACT2+64}
s_waitcnt lgkmcnt(1)
""")
diag_mfma([(224 + k, DW + 4 * k) for k in range(8)], 32, waits=[None, None, "s_waitcnt lgkmcnt(0)"] + [None] * 5)
a("s_nop 7")
for i in range(4): a(f"v_fmac_f32 v{50+i}, v{32+i}, v{220+i}")
a("v_mov_b32 v36, v50\nv_mov_b32 v37, v51\nv_mov_b32 v38, v52\nv_mov_b32 v39, v53")
a(f"buffer_store_dwordx4 {vr(36)}, v30, {srd(WS)}, s14 offen sc1")
stamp(9)

a.label("L_fin")
if STAMPS:
    stamp(15)
    a(f"""s_lshl_b32 s12, {sID}, 3
    s_add_u32 s12, s12, {sW}
    s_lshl_b32 s12, s12, 6
    s_add_u32 s12, s12, {STMP}
    v_lshlrev_b32 v24, 2, {vLane}
    s_mov_b64 exec, 0xffff
    buffer_store_dword {vST}, v24, {srd(WS)}, s12 offen""")
a.label("L_end")
a("s_endpgm")
a.label("L_code_end")

header = open("adaLN_cond__compressed_kv_cla__swiglu_ffn__decode.s.ref").read().split("; Override launch")[0]
open(OUT, "w").write(wrap(a.text(), 256, 512, 163840, header=header))
```

```python
import sys, math, struct
from asmgen import Asm, wrap

STAMPS = "--stamps" in sys.argv
OUT = [x for x in sys.argv[1:] if not x.startswith("--")]
OUT = OUT[0] if OUT else "k.s"
def opt(name, default):
    for x in sys.argv:
        if x.startswith("--" + name + "="): return int(x.split("=")[1])
    return default

EPOCH = 0x800
R1   = 0x600000
R2   = 0x10000
SMALL0 = 0x30000
R3   = 0x30000
R4S  = 0xAC000
R5   = 0x48000
R6   = 0xCC000
R8   = 0x60000
R7   = 0x68000
SMALL1 = 0xF4000
FL2  = 0xF8000
R2L  = 0x680000
R5L  = 0x6C0000
R4   = 0x100000
R4ST = 32768 + 256
STMP = 0x800000
WS_SIZE = 268435456
NFFN = 54
NC6 = opt('nc6', 8)
NC1 = opt('nc1', 4)
F_FFN0 = 64
R8B  = R8 + 20480
LOG2E = 1.4426950408889634
def f2u(x): return struct.unpack("<I", struct.pack("<f", x))[0]

a = Asm()
sID, sW, sN = "s2", "s3", "s4"
pX, pCKV, pWQ, pWUK, pWUV, pWO, pWG, pWU, pWD, pC, pWM, pOUT, pDBG, pWS = 16, 18, 20, 22, 24, 26, 30, 32, 34, 36, 38, 40, 42, 44
WS, SA, SB, SC, SD = 48, 52, 56, 60, 64
def srd(n): return "s[%d:%d]" % (n, n + 3)
vLane, vN, vKg = "v1", "v2", "v3"
MK = [4, 5, 6, 7]
ASET = [8, 12]
vST = "v255"
def vr(b, n=4): return f"v[{b}:{b+n-1}]"

def mksrd(n, p, size):
    a(f"s_mov_b32 s{n}, s{p}\ns_mov_b32 s{n+1}, s{p+1}\ns_mov_b32 s{n+2}, {size}\ns_mov_b32 s{n+3}, 0x00020000")

def stamp(k):
    if STAMPS:
        a(f"s_memrealtime s[90:91]\ns_waitcnt lgkmcnt(0)\nv_writelane_b32 {vST}, s90, {k}")

def get_tag():
    a(f"s_waitcnt lgkmcnt(0)\ns_mul_i32 {sN}, s46, 1664525\ns_add_u32 {sN}, {sN}, 1013904223")

def timeout(L):
    a(f"s_add_u32 s5, s5, 1\ns_cmp_gt_u32 s5, 200000\ns_cbranch_scc1 {L}_x")

def tree(op3, op2, dst, regs):
    r = list(regs)
    if len(r) == 1:
        a(f"v_mov_b32 {dst}, v{r[0]}"); return
    if len(r) == 2:
        a(f"{op2} {dst}, v{r[0]}, v{r[1]}"); return
    a(f"{op3} {dst}, v{r[0]}, v{r[1]}, v{r[2]}"); r = r[3:]
    while len(r) >= 2:
        a(f"{op3} {dst}, {dst}, v{r[0]}, v{r[1]}"); r = r[2:]
    if r: a(f"{op2} {dst}, {dst}, v{r[0]}")

DBGSLOT = {"L_H1": (11, 12), "L_H2": (13, 14), "L_S5stat": (1, 2), "L_H5": (11, 12), "L_H6": (11, 12), "L_H5gate": (13, 14), "L_H6gate": (13, 14)}
def gather(name, loads, regs, vt, mode="sent", vt2=None, first_issued=False, first_wait=0, sleep=1):
    if STAMPS and opt("polldbg", 0) and name in DBGSLOT and (opt("polldbg", 0) == 1) == (name in ("L_H1", "L_H2", "L_S5stat")):
        stamp(DBGSLOT[name][0])
    a("s_mov_b32 s5, 0")
    if first_issued:
        a(f"s_waitcnt vmcnt({first_wait})\ns_branch {name}_c")
    else:
        a(f"s_branch {name}_l")
    a.label(name)
    if sleep: a(f"s_sleep {sleep}")
    a.label(name + "_l")
    for l in loads: a(l)
    a("s_waitcnt vmcnt(0)")
    a.label(name + "_c")
    if mode == "sent":
        if len(regs) == 1:
            timeout(name)
            a(f"v_cmp_eq_u32 vcc, -1, v{regs[0]}")
        else:
            tree("v_max3_u32", "v_max_u32", vt, regs)
            timeout(name)
            a(f"v_cmp_eq_u32 vcc, -1, {vt}")
    else:
        if len(regs) == 1:
            timeout(name)
            a(f"v_cmp_ne_u32 vcc, {sN}, v{regs[0]}")
        else:
            tree("v_max3_u32", "v_max_u32", vt, regs); tree("v_min3_u32", "v_min_u32", vt2, regs)
            timeout(name)
            a(f"v_xor_b32 {vt}, {sN}, {vt}\nv_xor_b32 {vt2}, {sN}, {vt2}\nv_or_b32 {vt}, {vt}, {vt2}\nv_cmp_ne_u32 vcc, 0, {vt}")
    a(f"s_mov_b64 exec, vcc\ns_cbranch_execnz {name}")
    a.label(name + "_x")
    a("s_mov_b64 exec, -1")
    if STAMPS and opt("polldbg", 0) and name in DBGSLOT and (opt("polldbg", 0) == 1) == (name in ("L_H1", "L_H2", "L_S5stat")):
        a(f"v_writelane_b32 {vST}, s5, {DBGSLOT[name][1]}")

def pgather(name, loadfn, nregs, sets, dst, chk, vt, mode="sent", vt2=None, gap=2):
    n = len(sets); L = sum(1 for l in loadfn(sets[0]) if "buffer_load" in l)
    a("s_mov_b32 s5, 0")
    for i, b in enumerate(sets):
        for l in loadfn(b): a(l)
        if i < n - 1 and gap: a(f"s_sleep {gap}")
    a.label(name)
    for i, b in enumerate(sets):
        a(f"s_waitcnt vmcnt({L*(n-1)})")
        regs = [b + c for c in chk]
        if mode == "sent":
            if len(regs) == 1: a(f"v_cmp_eq_u32 vcc, -1, v{regs[0]}")
            else:
                tree("v_max3_u32", "v_max_u32", vt, regs)
                a(f"v_cmp_eq_u32 vcc, -1, {vt}")
        else:
            if len(regs) == 1: a(f"v_cmp_ne_u32 vcc, {sN}, v{regs[0]}")
            else:
                tree("v_max3_u32", "v_max_u32", vt, regs); tree("v_min3_u32", "v_min_u32", vt2, regs)
                a(f"v_xor_b32 {vt}, {sN}, {vt}\nv_xor_b32 {vt2}, {sN}, {vt2}\nv_or_b32 {vt}, {vt}, {vt2}\nv_cmp_ne_u32 vcc, 0, {vt}")
        a(f"s_cbranch_vccz {name}_d{i}")
        for l in loadfn(b): a(l)
    a(f"s_add_u32 s5, s5, 1\ns_cmp_lt_u32 s5, 100000\ns_cbranch_scc1 {name}")
    for i, b in enumerate(sets):
        a.label(f"{name}_d{i}")
        if dst is not None:
            for c in range(nregs): a(f"v_mov_b32 v{dst+c}, v{b+c}")
        if i < n - 1: a(f"s_branch {name}_x")
    a.label(name + "_x")
    a("s_mov_b64 exec, -1")

def dual_gather(name, loadsL, loadsG, regs, vt, vt2, every=4):
    a("s_mov_b32 s5, 0")
    a.label(name)
    a(f"s_add_u32 s5, s5, 1\ns_and_b32 s6, s5, {every-1}\ns_cmp_eq_u32 s6, 0\ns_cbranch_scc1 {name}_g")
    for l in loadsL: a(l)
    a(f"s_branch {name}_c")
    a.label(name + "_g")
    for l in loadsG: a(l)
    a.label(name + "_c")
    a("s_waitcnt vmcnt(0)")
    tree("v_max3_u32", "v_max_u32", vt, regs); tree("v_min3_u32", "v_min_u32", vt2, regs)
    a(f"s_cmp_gt_u32 s5, 200000\ns_cbranch_scc1 {name}_x")
    a(f"v_xor_b32 {vt}, {sN}, {vt}\nv_xor_b32 {vt2}, {sN}, {vt2}\nv_or_b32 {vt}, {vt}, {vt2}\nv_cmp_ne_u32 vcc, 0, {vt}\ns_cbranch_vccnz {name}")
    a.label(name + "_x")

def allreduce(op, v, t):
    for r in (8, 4, 2, 1):
        a(f"s_nop 1\n{op}_dpp {v}, {v}, {v} row_ror:{r} row_mask:0xf bank_mask:0xf")
    for sw in ("v_permlane16_swap_b32", "v_permlane32_swap_b32"):
        a(f"v_mov_b32 {t}, {v}\ns_nop 1\n{sw} {v}, {t}\ns_nop 1\n{op} {v}, {v}, {t}")

def sum8(regs):
    assert len(regs) >= 3
    for mode in ("quad_perm:[1,0,3,2]", "quad_perm:[2,3,0,1]", "row_half_mirror"):
        for r in regs:
            a(f"v_add_f32_dpp v{r}, v{r}, v{r} {mode} row_mask:0xf bank_mask:0xf")

def diag_mfma(items, acc, first=True, waits=None, masks=None):
    def ands(k):
        s = ASET[k % 2]; act = items[k][0]
        if isinstance(act, tuple):
            m = masks
            a(f"v_and_b32 v{s}, v{act[0]}, v{m[0]}\nv_and_b32 v{s+1}, v{act[0]}, v{m[1]}\nv_and_b32 v{s+2}, v{act[1]}, v{m[0]}\nv_and_b32 v{s+3}, v{act[1]}, v{m[1]}")
        else:
            for t in range(4):
                a(f"v_and_b32 v{s+t}, v{act}, v{MK[t]}")
    ands(0)
    for k in range(len(items)):
        if k + 1 < len(items): ands(k + 1)
        else: a("s_nop 1")
        if waits and waits[k]: a(waits[k])
        s = ASET[k % 2]; wv = items[k][1]
        c = "0" if (first and k == 0) else vr(acc)
        a(f"v_mfma_f32_16x16x32_bf16 {vr(acc)}, {vr(s)}, {vr(wv)}, {c}")

def silu(v, t):
    a(f"""v_mul_f32 {t}, 0x{f2u(-LOG2E):08x}, {v}
    v_exp_f32 {t}, {t}
    s_nop 0
    v_add_f32 {t}, 1.0, {t}
    v_rcp_f32 {t}, {t}
    s_nop 0
    v_mul_f32 {v}, {v}, {t}""")

def silu_c4(src, dst, t):
    a(f"""v_lshlrev_b32 v{dst}, 16, v{src}
    v_and_b32 v{dst+1}, 0xffff0000, v{src}
    v_lshlrev_b32 v{dst+2}, 16, v{src+1}
    v_and_b32 v{dst+3}, 0xffff0000, v{src+1}""")
    for i in range(4): silu(f"v{dst+i}", t)
    for i in range(4): a(f"v_cvt_pk_bf16_f32 v{dst+i}, v{dst+i}, v{dst+i}")

def reduce_b128(addr, n, base, tmp, dst, stride=1024):
    for i in range(n):
        a(f"ds_read_b128 {vr(tmp+4*i)}, {addr} offset:{base+i*stride}")
    cur = [tmp + 4 * i for i in range(n)]
    a(f"s_waitcnt lgkmcnt({n-2})")
    d = dst if n == 2 else cur[0]
    a(f"v_pk_add_f32 {vr(d,2)}, {vr(cur[0],2)}, {vr(cur[1],2)}\nv_pk_add_f32 {vr(d+2,2)}, {vr(cur[0]+2,2)}, {vr(cur[1]+2,2)}")
    for i in range(2, n):
        a(f"s_waitcnt lgkmcnt({n-1-i})")
        d = dst if i == n - 1 else cur[0]
        a(f"v_pk_add_f32 {vr(d,2)}, {vr(cur[0],2)}, {vr(cur[i],2)}\nv_pk_add_f32 {vr(d+2,2)}, {vr(cur[0]+2,2)}, {vr(cur[i]+2,2)}")

def dlayout_off(dst, t, bstride, esz):
    sh = {2: 1, 4: 2}[esz]
    a(f"""v_lshrrev_b32 {dst}, 1, {vKg}
    v_mul_u32_u24 {dst}, {bstride}, {dst}
    v_lshl_add_u32 {dst}, {vN}, {3+sh}, {dst}
    v_and_b32 {t}, 1, {vKg}
    v_lshl_add_u32 {dst}, {t}, {2+sh}, {dst}""")

def fsw(k): return ((k & 3) << 2) | ((k >> 2) & 3)

a.label("L_code_start")
a(f"""
s_getpc_b64 s[6:7]
s_cmp_ge_u32 {sID}, 256
s_cbranch_scc1 L_end
s_load_dwordx16 s[16:31], s[0:1], 0
s_load_dwordx8 s[32:39], s[0:1], 64
s_load_dwordx4 s[40:43], s[0:1], 96
s_load_dwordx2 s[44:45], s[0:1], 112
""")
if STAMPS: a("s_memrealtime s[8:9]")
a(f"""
v_and_b32 {vLane}, 63, v0
v_lshrrev_b32 v24, 6, v0
v_and_b32 {vN}, 15, v0
v_readfirstlane_b32 {sW}, v24
v_bfe_u32 {vKg}, v0, 4, 2
s_cmp_lt_u32 {sW}, 7
s_cbranch_scc1 L_nopf
s_bfe_u32 s5, {sID}, 0x50003
s_lshl_b32 s5, s5, 10
v_lshlrev_b32 v25, 4, {vLane}
v_add_u32 v25, s5, v25
v_min_u32 v25, L_code_end-L_code_start-32, v25
global_load_dwordx4 v[244:247], v25, s[6:7]
""")
a.label("L_nopf")
if STAMPS: a(f"v_mov_b32 {vST}, 0")
a(f"""
v_mov_b32 v20, 0
v_mov_b32 v29, 0
v_and_b32 v24, 1, {vN}
v_lshlrev_b32 v24, 4, v24
v_mov_b32 v26, 0xffff
v_lshlrev_b32 v24, v24, v26
v_bfe_u32 v26, {vN}, 1, 2""")
for t in range(4):
    a(f"v_cmp_eq_u32 vcc, {t}, v26\ns_nop 1\nv_cndmask_b32 v{MK[t]}, 0, v24, vcc")
a("s_waitcnt lgkmcnt(0)")
if STAMPS: a(f"v_writelane_b32 {vST}, s8, 0")
a(f"s_load_dword s46, s[{pWS}:{pWS+1}], {EPOCH}")
mksrd(WS, pWS, WS_SIZE)
a(f"s_cmp_ge_u32 {sID}, 128\ns_cbranch_scc1 L_F")

LATEONLY = False
QB = 131072
NE = opt("early", 0)
mksrd(SD, pCKV, 16777216)
def dma_setup():
    a(f"""s_bfe_u32 s89, {sID}, 0x20003
    s_lshl_b32 s89, s89, {8 if opt("rot", 1) else 31}
    s_and_b32 s89, s89, 0x300
    s_lshl_b32 s80, {sID}, 7
    s_lshl_b32 s81, {sW}, 4
    s_add_u32 s80, s80, s81
    s_lshl_b32 s80, s80, 10
    s_lshl_b32 s81, {sW}, 12
    v_lshlrev_b32 v240, 2, {vKg}
    v_xor_b32 v240, v240, {vN}
    v_lshlrev_b32 v240, 4, v240
    v_lshl_add_u32 v240, {vKg}, 10, v240
    v_xor_b32 v241, 16, v240
    v_add_u32 v241, 3072, v241
    v_xor_b32 v242, 32, v240
    v_add_u32 v242, 6144, v242
    v_xor_b32 v243, 48, v240
    v_add_u32 v243, 9216, v243""")
ROT = opt("rot", 1)
def dma_q(kq):
    a(f"s_add_u32 s82, s81, {kq*32768}\ns_mov_b32 m0, s82\ns_xor_b32 s83, s89, {kq*256}\ns_add_u32 s83, s80, s83")
    for i in range(4):
        a(f"buffer_load_dwordx4 v{240+i}, {srd(SD)}, s83 offen offset:{i*1024} nt lds")
def early():
    dma_setup()
    for kq in range(NE): dma_q(kq)
W7Q = opt("w7q", 0)
def w7_q0():
    for g in range(8):
        a(f"s_mov_b32 m0, {g*4096}\ns_sub_u32 s83, s80, {(7-g)*16384}")
        for i in range(4):
            a(f"buffer_load_dwordx4 v{240+i}, {srd(SD)}, s83 offen offset:{i*1024} nt lds")
a(f"s_cmp_ge_u32 {sID}, 80\ns_cbranch_scc1 L_A_hold")
RED1 = QB; XN = QB + 8192
a(f"""s_and_b32 s47, {sID}, 63
s_lshl_b32 s47, s47, 10
s_add_u32 s47, s47, {R3-7168}
v_lshlrev_b32 v36, 4, v0
v_mov_b32 v32, -1
v_mov_b32 v33, -1
v_mov_b32 v34, -1
v_mov_b32 v35, -1
s_mul_i32 s10, {sID}, 205
s_lshr_b32 s10, s10, 11            ; p
s_mul_i32 s11, s10, 10
s_sub_u32 s11, {sID}, s11          ; j
s_cmp_ge_u32 {sW}, 5
s_cbranch_scc1 L_S1_other
""")
mksrd(SA, pWM, 640 * 7680)
mksrd(SB, pC, 2560)
a(f"""
s_mul_i32 s12, s10, 80
s_lshl_b32 s13, {sW}, 4
s_add_u32 s12, s12, s13
v_lshl_add_u32 v24, {vKg}, 2, s12  ; row
v_lshrrev_b32 v25, 3, {vN}
v_mul_u32_u24 v26, 1280, v25
v_lshl_add_u32 v26, v24, 1, v26
buffer_load_dwordx2 {vr(28,2)}, v26, {srd(SB)}, 0 offen
v_mul_u32_u24 v27, 7680, v24
v_mul_u32_u24 v26, 1152, v25
v_lshl_add_u32 v26, {vN}, 4, v26
s_lshl_b32 s13, s11, 7
v_add3_u32 v27, v27, v26, s13
buffer_load_dwordx4 {vr(64)}, v27, {srd(SA)}, 0 offen nt
s_movk_i32 s13, 7680
buffer_load_dwordx4 {vr(68)}, v27, {srd(SA)}, s13 offen nt
s_movk_i32 s13, 15360
buffer_load_dwordx4 {vr(72)}, v27, {srd(SA)}, s13 offen nt
s_movk_i32 s13, 23040
buffer_load_dwordx4 {vr(76)}, v27, {srd(SA)}, s13 offen nt
v_add_u32 v36, {RED1}, v36
v_lshrrev_b32 v29+8, 1, {vKg}
""".replace("v29+8", "v37"))
a(f"""v_lshlrev_b32 v30, 8, v37
v_and_b32 v31, 7, {vN}
v_lshl_add_u32 v30, v31, 5, v30
v_and_b32 v24, 1, {vKg}
v_lshl_add_u32 v30, v24, 4, v30
v_add_u32 v30, {XN}, v30
v_mul_u32_u24 v37, 2560, v37
v_lshl_add_u32 v37, v31, 5, v37
v_lshl_add_u32 v37, v24, 4, v37
s_mul_i32 s12, s10, 5120
s_lshl_b32 s13, s11, 8
s_add_u32 s12, s12, s13
s_add_u32 s12, s12, {R1}
s_cmp_eq_u32 s10, 0
s_cselect_b32 s13, 1.0, 0
s_mov_b32 s8, 0x00ff00ff
s_mov_b32 s9, 0x00ff00ff
""")
early()
a(f"s_waitcnt vmcnt({4+4*NE})")
silu_c4(28, 16, "v24")
diag_mfma([(16 + u, 64 + 4 * u) for u in range(4)], 40, waits=[f"s_waitcnt vmcnt({3-u+4*NE})" for u in range(4)])
stamp(1)
a(f"s_nop 7\nds_write_b128 v36, {vr(40)}")
get_tag()
a(f"s_waitcnt vmcnt({4*NE})\ns_barrier\ns_cmp_lg_u32 {sW}, 0\ns_cbranch_scc1 L_S1_end")
a(f"ds_read_b128 {vr(44)}, v30\nv_mov_b32 v53, {sN}\nv_mov_b32 v55, {sN}")
reduce_b128("v36", 5, 0, 64, 40)
a("s_nop 1")
for i in range(4):
    a(f"v_mov_b32_dpp v{48+i}, v{40+i} row_ror:8 row_mask:0xf bank_mask:0xf")
for i in range(4):
    a(f"v_add_f32 v{48+i}, s13, v{48+i}")
for i in range(4):
    a(f"v_fmac_f32 v{40+i}, v{44+i}, v{48+i}")
a(f"""v_cvt_pk_bf16_f32 v52, v40, v41
v_cvt_pk_bf16_f32 v54, v42, v43
s_mov_b64 exec, s[8:9]
""")
for c in range(NC1):
    a(f"buffer_store_dwordx4 {vr(52)}, v37, {srd(WS)}, s12 offen sc1")
    if c < NC1 - 1: a("s_add_u32 s12, s12, 40960")
a("s_mov_b64 exec, -1")
stamp(2)
a("s_branch L_S1_end")
a.label("L_S1_other")
a(f"s_cmp_eq_u32 {sW}, 7\ns_cbranch_scc1 L_S1_w7")
mksrd(SC, pX, 2560)
a(f"""
s_sub_u32 s12, {sW}, 5
s_mul_i32 s13, s12, 1280
v_lshlrev_b32 v24, 2, {vLane}
buffer_load_dword v52, v24, {srd(SC)}, s13 offen
buffer_load_dword v53, v24, {srd(SC)}, s13 offen offset:256
buffer_load_dword v54, v24, {srd(SC)}, s13 offen offset:512
buffer_load_dword v55, v24, {srd(SC)}, s13 offen offset:768
buffer_load_dword v56, v24, {srd(SC)}, s13 offen offset:1024
s_lshl_b32 s14, s11, 7
s_add_u32 s13, s13, s14
v_lshlrev_b32 v25, 1, {vLane}
buffer_load_ushort v37, v25, {srd(SC)}, s13 offen
""")
early()
a(f"s_waitcnt vmcnt({4*NE})")
for i in range(5):
    a(f"v_lshlrev_b32 v{40+2*i}, 16, v{52+i}\nv_and_b32 v{41+2*i}, 0xffff0000, v{52+i}")
a("v_add_f32 v26, v40, v41")
for i in range(2, 10): a(f"v_add_f32 v26, v26, v{40+i}")
allreduce("v_add_f32", "v26", "v27")
a(f"v_mul_f32 v26, 0x{f2u(1.0/640):08x}, v26")
a("v_sub_f32 v40, v40, v26\nv_mul_f32 v28, v40, v40")
for i in range(1, 10):
    a(f"v_sub_f32 v{40+i}, v{40+i}, v26\nv_fmac_f32 v28, v{40+i}, v{40+i}")
allreduce("v_add_f32", "v28", "v27")
a(f"""
v_mov_b32 v27, 0x{f2u(1e-5):08x}
v_fmac_f32 v27, 0x{f2u(1.0/640):08x}, v28
v_rsq_f32 v27, v27
v_lshlrev_b32 v37, 16, v37
v_sub_f32 v37, v37, v26
v_mul_f32 v37, v37, v27
s_lshl_b32 s12, s12, 8
s_add_u32 s12, s12, {XN}
v_add_u32 v24, s12, v24
ds_write_b32 v24, v37
s_branch L_S1_bar
""")
a.label("L_S1_w7")
a(f"buffer_store_dwordx4 v[32:35], v36, {srd(WS)}, s47 offen sc1")
early()
if W7Q:
    a("s_waitcnt vmcnt(0) lgkmcnt(0)")
    if W7Q == 1:
        w7_q0()
        a("s_barrier")
    else:
        a("s_barrier")
        w7_q0()
    a("s_branch L_S1_end")
a.label("L_S1_bar")
a(f"s_waitcnt vmcnt({4*NE}) lgkmcnt(0)\ns_barrier")
a.label("L_S1_end")
a("s_barrier\ns_branch L_A_main")
a.label("L_A_hold")
early()
NH = opt("nh", 0)
if NH:
    get_tag()
    for kq in range(NH): dma_q(kq)
    a("s_mov_b32 s88, 1")
if W7Q:
    a(f"s_cmp_lg_u32 {sW}, 7\ns_cbranch_scc1 L_h7\ns_waitcnt vmcnt(0) lgkmcnt(0)")
    w7_q0()
    a.label("L_h7")
STG = opt("stage", 0)
if STG:
    mksrd(SA, pWG, 640 * 3456)
    mksrd(SB, pWU, 640 * 3456)
    a(f"""s_sub_u32 s12, {sID}, 80
    s_mul_i32 s12, s12, 46080
    v_lshlrev_b32 v26, 4, v0""")
    for k in range(6):
        a(f"buffer_load_dwordx4 {vr(64+8*k)}, v26, {srd(SA)}, s12 offen")
        if STG >= 2: a(f"buffer_load_dwordx4 {vr(68+8*k)}, v26, {srd(SB)}, s12 offen")
        a("s_add_u32 s12, s12, 8192")
if opt("hold", 1) and not STG:
    get_tag()
    a(f"""s_cmp_lg_u32 {sW}, 0
    s_cbranch_scc1 L_hold_x
    s_sub_u32 s12, {sID}, 80
    s_lshl_b32 s12, s12, 9
    s_add_u32 s12, s12, {R1+4}
    v_mov_b32 v26, s12
    s_mov_b64 exec, 1""")
    gather("L_hold", [f"buffer_load_dword v27, v26, {srd(WS)}, 0 offen sc1"], [27], "v27", mode="tag", sleep=2)
    a("s_barrier")

a.label("L_A_main")
FL1 = FL2 + 0x2000
if opt("hold2", 0):
    get_tag()
    a(f"""s_cmp_lg_u32 {sW}, 1
    s_cbranch_scc1 L_hold2_x
    s_lshl_b32 s12, {sID}, 6
    s_add_u32 s12, s12, {FL1}
    v_mov_b32 v26, s12
    s_mov_b64 exec, 1""")
    gather("L_hold2", [f"buffer_load_dword v27, v26, {srd(WS)}, 0 offen sc1"], [27], "v27", mode="tag", sleep=2)
    a("s_barrier")
mksrd(SB, pWUV, 512 * 8192)
a(f"""
s_lshr_b32 s10, {sID}, 6            ; b
s_and_b32 s11, {sID}, 63            ; chunk
v_and_b32 v24, 31, {vLane}
v_lshrrev_b32 v25, 5, {vLane}
v_lshlrev_b32 v26, 4, {vLane}
s_lshl_b32 s13, {sID}, 8
s_add_u32 s13, s13, {R4}
v_lshrrev_b32 v23, 3, {vLane}
v_mul_u32_u24 v23, {4*R4ST}, v23
v_and_b32 v27, 7, {vLane}
v_lshl_add_u32 v23, v27, 4, v23
""")
a(f"""s_and_b32 s12, {sW}, 3
s_lshr_b32 s14, s89, 8
s_xor_b32 s12, s12, s14
s_mul_i32 s12, s12, {R4ST}
s_add_u32 s68, s12, s13
s_add_u32 s69, s68, {32*R4ST}
s_add_u32 s70, s68, {64*R4ST}
s_add_u32 s71, s68, {96*R4ST}
v_and_b32 v22, 3, {vLane}
v_lshlrev_b32 v22, 10, v22
s_and_b32 s9, {sID}, 31
s_lshl_b32 s9, s9, 12
s_lshl_b32 s14, {sW}, 7
s_add_u32 s9, s9, s14
s_add_u32 s9, s9, {R2}
""")
if NH: a("s_cmp_ge_u32 s2, 80\ns_cbranch_scc1 L_skipq")
for kq in range(max(NE, 1 if W7Q else 0), 4):
    if NH and kq == NH: a.label("L_skipq")
    dma_q(kq)
    if kq == 2:
        a(f"buffer_load_dword v21, v22, {srd(WS)}, s9 offen offset:4 sc1")
stamp(3)
get_tag()
a(f"""v_and_b32 v27, 7, {vLane}
v_mul_u32_u24 v27, 37, v27
v_xor_b32 v27, {sN}, v27
s_mov_b32 s79, 0x00010001""")
for i in range(4):
    a(f"v_bfe_u32 v28, v27, {2*i}, 1\nv_bfe_u32 v29, v27, {2*i+1}, 1\nv_lshl_or_b32 v{248+i}, v29, 16, v28")
a(f"""s_and_b32 s72, {sID}, 7
s_lshl_b32 s72, s72, 2
s_bfe_u32 s73, {sID}, 0x20003
s_add_u32 s72, s72, s73             ; h
s_lshr_b32 s73, {sID}, 5            ; cq
s_lshl_b32 s74, s72, 2
s_add_u32 s74, s74, s73             ; ci
s_lshl_b32 s76, s10, 5
s_lshl_b32 s13, {sW}, 2
s_add_u32 s76, s76, s13
s_lshl_b32 s76, s76, 10
s_add_u32 s76, s76, {R3}
s_lshl_b32 s77, s13, 10
s_add_u32 s77, s77, {QB}
s_and_b32 s14, {sW}, 3
v_xor_b32 v16, s14, {vLane}
v_lshlrev_b32 v16, 4, v16
v_xor_b32 v16, s89, v16
v_xor_b32 v17, 64, v16
v_xor_b32 v18, 128, v16
v_xor_b32 v19, 192, v16
v_add_u32 v31, s77, v26
s_cmp_ge_u32 {sW}, 4
s_cbranch_scc1 L_A_pvprep
s_lshl_b32 s8, s73, 7
s_lshl_b32 s13, {sW}, 5
s_add_u32 s8, s8, s13
v_lshl_add_u32 v20, {vKg}, 2, s8
v_lshlrev_b32 v20, 13, v20
v_lshl_add_u32 v20, {vN}, 4, v20
s_lshl_b32 s75, s72, 8
v_and_b32 v27, 3, {vLane}
v_lshlrev_b32 v27, 2, v27
v_bfe_u32 v28, {vLane}, 2, 2
v_or_b32 v27, v27, v28
v_xor_b32 v27, v27, v25
v_lshlrev_b32 v27, 4, v27           ; x0
v_lshl_or_b32 v28, v24, 10, v27     ; Q: l31*1024 | x0
v_lshl_or_b32 v27, v24, 8, v27      ; C: l31*256 | x0
s_lshl_b32 s12, {sW}, 13
v_add_u32 v27, s12, v27
v_add_u32 v28, {QB}, v28
""")
for t8 in range(8):
    a(f"v_xor_b32 v{224+t8}, {t8<<5}, v27\nv_xor_b32 v{232+t8}, {t8<<5}, v28")
QF = "" if opt("qplain", 0) else "sc1"
def q_issue(tagl):
    a(f"v_cmp_ne_u32 vcc, {sN}, v21\ns_mov_b32 s78, 0\ns_cbranch_vccnz {tagl}\ns_mov_b32 m0, s77\ns_mov_b32 s78, 1")
    if not opt("qfirst", 1):
        a(f"s_mov_b32 s78, 0\ns_branch {tagl}")
    for u in range(4):
        a(f"buffer_load_dwordx4 v{16+u}, {srd(WS)}, s76 offen offset:{u*1024} {QF} lds")
    a.label(tagl)
QW = [13, 9, 4]
for kq in range(4):
    if kq < 3: a(f"s_waitcnt vmcnt({QW[kq]}) lgkmcnt(0)")
    if kq == 2: q_issue("L_qi0")
    if kq == 3:
        a("s_cmp_eq_u32 s78, 1\ns_cbranch_scc1 L_qw0\ns_waitcnt vmcnt(0)")
        a.label("L_qw0")
        a("s_waitcnt vmcnt(4) lgkmcnt(0)")
    a("s_barrier")
    if kq == 2:
        for t8 in range(8): a(f"v_add_u32 v{224+t8}, 0x10000, v{224+t8}")
    for t8 in range(8):
        a(f"ds_read_b128 {vr(32+4*(kq*8+t8))}, v{224+t8} offset:{(kq%2)*32768}")
a("s_branch L_A_q")
a.label("L_A_pvprep")
a(f"""v_lshrrev_b32 v27, 2, {vN}          ; r
v_lshrrev_b32 v28, 1, {vKg}         ; kg
v_and_b32 v29, 1, {vKg}
v_lshl_add_u32 v30, v28, 3, v27
v_lshlrev_b32 v30, 8, v30
v_bfe_u32 v20, {vN}, 1, 1
v_lshl_add_u32 v20, v29, 1, v20
v_lshlrev_b32 v27, 2, v27
v_lshl_or_b32 v27, v28, 1, v27
v_xor_b32 v20, v20, v27
v_lshlrev_b32 v20, 4, v20
v_and_b32 v27, 1, {vN}
v_lshlrev_b32 v27, 3, v27
v_add3_u32 v30, v30, v20, v27
s_and_b32 s12, {sW}, 3
s_lshl_b32 s13, s12, 15
v_add_u32 v30, s13, v30
s_lshl_b32 s14, {sID}, 6
s_add_u32 s14, s14, {FL2}
v_mov_b32 v28, {sN}
v_mov_b32 v29, s14
""")
for mt in range(4):
    for e in range(2):
        a(f"v_xor_b32 v{224+mt*2+e}, {(mt*64) ^ (e*16) ^ (e*1024)}, v30")
TRIGQ = opt("trigq", 2)
for kq in range(4):
    if kq < 3: a(f"s_waitcnt vmcnt({QW[kq]}) lgkmcnt(0)")
    if kq == 2: q_issue("L_qi1")
    if kq == 3:
        a("s_cmp_eq_u32 s78, 1\ns_cbranch_scc1 L_qw1\ns_waitcnt vmcnt(0)")
        a.label("L_qw1")
        a("s_waitcnt vmcnt(4) lgkmcnt(0)")
    a("s_barrier")
    if kq == TRIGQ:
        a(f"""s_cmp_lg_u32 {sW}, {4 if kq == 3 else 7}
        s_cbranch_scc1 L_notrig
        s_mov_b64 exec, 1
        buffer_store_dword v28, v29, {srd(WS)}, 0 offen sc1
        s_mov_b64 exec, -1""")
        a.label("L_notrig")
    a(f"s_cmp_lg_u32 s12, {kq}\ns_cbranch_scc1 L_trs{kq}")
    if kq == 0: a.label("L_trread")
    if kq == 0:
        for mt in range(4):
            for t in range(8):
                for e in range(2):
                    d = 32 + (mt * 8 + t) * 4 + e * 2
                    a(f"ds_read_b64_tr_b16 {vr(d,2)}, v{224+mt*2+e} offset:{t*4096}")
        for k2 in range(1, 4):
            a(f"s_cmp_eq_u32 s12, {k2}\ns_cbranch_scc1 L_trs{k2}")
    else:
        a("s_branch L_trread")
    a.label(f"L_trs{kq}")
a.label("L_A_q")
stamp(4)
a("s_cmp_eq_u32 s78, 1\ns_mov_b32 s5, 0\ns_cbranch_scc1 L_Qdma_w\ns_mov_b64 exec, 15")
gather("L_wit", [f"buffer_load_dword v21, v22, {srd(WS)}, s9 offen offset:4 sc1"], [21], "v21", mode="tag", sleep=2)
a(f"s_lshl_b32 s14, s11, 6\nv_mov_b32 v22, s14\ns_mov_b64 exec, 1")
pgather("L_Qgate", lambda b: [f"buffer_load_dword v{b}, v22, {srd(WS)}, s76 offen offset:60 sc1"], 1, [244, 245, 246], None, [0], "v21", gap=3)
a("s_mov_b32 s5, 0\ns_mov_b32 m0, s77\ns_nop 0")
for u in range(4):
    a(f"buffer_load_dwordx4 v{16+u}, {srd(WS)}, s76 offen offset:{u*1024} {QF} lds")
a("s_branch L_Qdma_w")
a.label("L_Qdma")
a(f"s_sleep {opt('qsleep', 2)}")
a.label("L_Qdma_l")
for u in range(4):
    a(f"buffer_load_dwordx4 v{16+u}, {srd(WS)}, s76 offen offset:{u*1024} sc1 lds")
a.label("L_Qdma_w")
a("s_waitcnt vmcnt(0)")
for u in range(4):
    a(f"ds_read_b128 {vr(176+4*u)}, v31 offset:{u*1024}")
a("s_waitcnt lgkmcnt(0)")
tree("v_max3_u32", "v_max_u32", "v21", list(range(176, 192)))
timeout("L_Qdma")
a("v_cmp_eq_u32 vcc, -1, v21\ns_mov_b64 exec, vcc\ns_cbranch_execnz L_Qdma")
a.label("L_Qdma_x")
a("s_mov_b64 exec, -1")
stamp(5)
MXL, PL, WTL = 0, 4096, 2048
a(f"""s_barrier
s_cmp_lg_u32 {sW}, 7
s_cbranch_scc1 L_nofl3
s_mov_b64 exec, 1
buffer_store_dword v28, v29, {srd(WS)}, 0 offen offset:32 sc1
s_mov_b64 exec, -1""")
a.label("L_nofl3")
stamp(11)
a(f"s_cmp_ge_u32 {sW}, 4\ns_cbranch_scc1 L_A_pv")
SACC, BF = 160, 176
def qk_read(t):
    a(f"ds_read_b128 {vr(BF+4*(t%4))}, v{232+t%8} offset:{(t//8)*256}")
for t in range(4): qk_read(t)
for t in range(32):
    a(f"s_waitcnt lgkmcnt({min(3, 31-t)})")
    c = "0" if t == 0 else vr(SACC, 16)
    a(f"v_mfma_f32_32x32x16_bf16 {vr(SACC,16)}, {vr(32+4*t)}, {vr(BF+4*(t%4))}, {c}")
    if t + 4 < 32: qk_read(t + 4)
a(f"""s_lshl_b32 s12, {sW}, 2
v_lshlrev_b32 v29, 4, v24           ; MX[head][4]
v_add_u32 v30, s12, v29
v_mul_u32_u24 v31, 272, v24
v_lshl_add_u32 v31, v25, 3, v31
s_lshl_b32 s12, {sW}, 6
v_add_u32 v31, s12, v31
s_lshl_b32 s12, {sID}, 3
s_add_u32 s12, s12, {R4S}
v_lshlrev_b32 v22, 10, v24
s_nop 1
""")
tree("v_max3_f32", "v_max_f32", "v27", list(range(SACC, SACC + 16)))
stamp(12)
a(f"""v_mov_b32 v28, v27
s_nop 1
v_permlane32_swap_b32 v27, v28
s_nop 1
v_max_f32 v27, v27, v28
ds_write_b32 v30, v27 offset:{MXL}
s_waitcnt lgkmcnt(0)
s_barrier
ds_read_b128 {vr(32)}, v29 offset:{MXL}
s_waitcnt lgkmcnt(0)
v_max3_f32 v27, v32, v33, v34
v_max_f32 v27, v27, v35
""")
for g in range(4):
    for i in range(4): a(f"v_sub_f32 v{SACC+4*g+i}, v{SACC+4*g+i}, v27")
    for i in range(4): a(f"v_exp_f32 v{SACC+4*g+i}, v{SACC+4*g+i}")
    a("s_nop 0")
    a(f"v_cvt_pk_bf16_f32 v{32+2*g}, v{SACC+4*g}, v{SACC+4*g+1}\nv_cvt_pk_bf16_f32 v{33+2*g}, v{SACC+4*g+2}, v{SACC+4*g+3}")
    a(f"ds_write_b64 v31, {vr(32+2*g,2)} offset:{PL+g*16}")
a("s_waitcnt lgkmcnt(0)\ns_barrier")
stamp(6)
a(f"v_add_f32 v28, v{SACC}, v{SACC+1}")
for i in range(2, 16): a(f"v_add_f32 v28, v28, v{SACC+i}")
a(f"""v_mov_b32 v40, v28
s_nop 1
v_permlane32_swap_b32 v28, v40
s_nop 1
v_add_f32 v28, v28, v40
ds_write_b32 v30, v28 offset:{MXL+512}
s_lshl_b32 s12, {sW}, 8
s_lshl_b32 s13, {sID}, 10
s_add_u32 s12, s12, s13
s_add_u32 s12, s12, {R4S}
v_lshlrev_b32 v22, 3, v24
s_waitcnt lgkmcnt(0)
s_barrier
ds_read_b128 {vr(36)}, v29 offset:{MXL+512}
v_mov_b32 v32, v27
s_waitcnt lgkmcnt(0)
v_add_f32 v36, v36, v37
v_add_f32 v38, v38, v39
v_add_f32 v33, v36, v38
s_mov_b32 exec_hi, 0
buffer_store_dwordx2 {vr(32,2)}, v22, {srd(WS)}, s12 offen sc1
s_mov_b64 exec, -1
""")
stamp(14)
a("s_branch L_S5")
a.label("L_A_pv")
PF = 192; ACC = [160, 176, 32, 48]
a(f"""v_mul_u32_u24 v31, 272, v24
v_lshl_add_u32 v31, v25, 4, v31
v_mul_u32_u24 v27, 144, v24
v_lshl_add_u32 v27, v25, 3, v27
s_mul_i32 s13, {sW}, 4608
s_add_u32 s13, s13, 16384
v_add_u32 v27, s13, v27
v_lshrrev_b32 v28, 3, {vLane}
v_mul_u32_u24 v28, 144, v28
v_and_b32 v29, 7, {vLane}
v_lshl_add_u32 v28, v29, 4, v28
v_add_u32 v28, s13, v28
s_and_b32 s12, {sW}, 3
s_lshl_b32 s8, s73, 7
s_lshl_b32 s13, s12, 5
s_add_u32 s8, s8, s13
v_lshl_add_u32 v20, {vKg}, 2, s8
v_lshlrev_b32 v20, 13, v20
v_lshl_add_u32 v20, {vN}, 4, v20
s_lshl_b32 s75, s72, 8
s_lshl_b32 s12, s12, 13
s_add_u32 s12, s12, 98304
""")
for k in range(8):
    g, u = divmod(k, 4)
    a(f"s_add_u32 s13, s12, {k*1024}\ns_mov_b32 m0, s13\ns_add_u32 s13, s75, {(16*g+u)*8192}\nbuffer_load_dwordx4 v20, {srd(SB)}, s13 offen nt lds")
a("""s_barrier
s_barrier
""")
stamp(12)
for t in range(8):
    a(f"ds_read_b128 {vr(PF+4*t)}, v31 offset:{PL+t*32}")
def pv_mfma(mt, t):
    o = ACC[mt]; d = 32 + (mt * 8 + t) * 4
    c = "0" if t == 0 else vr(o, 16)
    a(f"v_mfma_f32_32x32x16_bf16 {vr(o,16)}, {vr(d)}, {vr(PF+4*t)}, {c}")
def epi_w(rho, k):
    mtl, g = divmod(k, 4); o = ACC[2 * rho + mtl]; r = 224 + (k % 4) * 2
    a(f"v_cvt_pk_bf16_f32 v{r}, v{o+4*g}, v{o+4*g+1}\nv_cvt_pk_bf16_f32 v{r+1}, v{o+4*g+2}, v{o+4*g+3}")
    a(f"ds_write_b64 v27, {vr(r,2)} offset:{mtl*64+g*16}")
for t in range(8):
    a(f"s_waitcnt lgkmcnt({7-t})")
    pv_mfma(0, t); pv_mfma(1, t)
    if t == opt("b3bpos", 2): a("s_barrier")
for t in range(8):
    pv_mfma(2, t); pv_mfma(3, t)
    if t in (1, 2, 3, 4):
        epi_w(0, 2 * (t - 1)); epi_w(0, 2 * (t - 1) + 1)
    if t == 5:
        a("s_waitcnt lgkmcnt(0)")
        for i in range(4): a(f"ds_read_b128 {vr(232+4*i)}, v28 offset:{i*1152}")
    if t == 7:
        for i in range(4):
            a(f"s_waitcnt lgkmcnt({3-i})")
            for c in range(4): a(f"v_bfi_b32 v{232+4*i+c}, s79, v{248+c}, v{232+4*i+c}")
            a(f"buffer_store_dwordx4 {vr(232+4*i)}, v23, {srd(WS)}, s{68+i} offen sc1")
a("s_nop 3")
stamp(13)
for k in range(8): epi_w(1, k)
a("s_waitcnt lgkmcnt(0)")
for i in range(4): a(f"ds_read_b128 {vr(64+4*i)}, v28 offset:{i*1152}")
for i in range(4):
    a(f"s_waitcnt lgkmcnt({3-i})")
    for c in range(4): a(f"v_bfi_b32 v{64+4*i+c}, s79, v{248+c}, v{64+4*i+c}")
    a(f"buffer_store_dwordx4 {vr(64+4*i)}, v23, {srd(WS)}, s{68+i} offen offset:128 sc1")
stamp(7)
a.label("L_S5")
RED5 = 65536; RED5b = 81920
a(f"""s_mul_i32 s13, s74, {R4ST}
s_lshl_b32 s14, {sW}, 12
s_add_u32 s13, s13, s14
s_add_u32 s13, s13, {R4}
s_lshl_b32 s12, {sW}, 14
s_lshl_b32 s14, s73, 8
s_add_u32 s12, s12, s14
s_lshl_b32 s14, s72, 3
s_add_u32 s12, s12, s14
s_add_u32 s12, s12, {R4S}
v_lshlrev_b32 v21, 10, {vN}
v_lshlrev_b32 v22, 3, {vN}
s_lshl_b32 s14, {sW}, 7
s_add_u32 s14, s14, {WTL}
v_add_u32 v22, s14, v22
v_lshlrev_b32 v29, 3, {vLane}
s_lshr_b32 s14, {sW}, 2
s_lshl_b32 s14, s14, 9
v_add_u32 v29, s14, v29
s_and_b32 s14, {sW}, 3
s_lshl_b32 s14, s14, 4
v_add_u32 v35, s14, {vKg}
v_lshlrev_b32 v35, 2, v35
v_cmp_gt_u32 vcc, 8, {vN}
v_mov_b32 v36, 0x03020302
v_mov_b32 v37, 0x01000100
v_cndmask_b32 v36, v36, v37, vcc
s_lshl_b32 s14, {sW}, 6
v_lshlrev_b32 v30, 4, v0
v_lshrrev_b32 v27, 3, {vN}
v_lshlrev_b32 v27, 12, v27
v_and_b32 v28, 3, {vN}
v_lshl_add_u32 v27, v28, 10, v27
v_bfe_u32 v28, {vN}, 2, 1
v_lshl_add_u32 v27, v28, 9, v27
v_and_b32 v28, 1, {vKg}
v_lshl_add_u32 v27, v28, 8, v27
v_lshrrev_b32 v28, 1, {vKg}
v_lshl_add_u32 v27, v28, 4, v27
s_add_u32 s14, s14, {RED5}
v_add_u32 v27, s14, v27
v_add_u32 v30, {RED5}, v30
""")
a(f"s_waitcnt vmcnt({0 if opt('ackwait', 1) else 8})")
a("s_barrier")
if opt("s5delay", 0): a(f"s_sleep {opt('s5delay', 0)}")
S5L = [f"buffer_load_dwordx4 {vr(96+4*u)}, v26, {srd(WS)}, s13 offen offset:{u*1024} sc1" for u in range(4)]
STL5 = f"buffer_load_dwordx2 {vr(32,2)}, v21, {srd(WS)}, s12 offen sc1"
a(f"s_mov_b64 exec, 0xffff\n{STL5}\ns_mov_b64 exec, -1")
for l in S5L: a(l)
a(f"s_and_b32 s14, {sW}, 3\ns_lshl_b32 s14, s14, 13\ns_add_u32 s14, s14, 98304\nv_add_u32 v31, s14, v26")
for k in range(8): a(f"ds_read_b128 {vr(192+4*k)}, v31 offset:{k*1024}")
a("s_mov_b64 exec, 0xffff")
gather("L_S5stat", [STL5], [32, 33], "v28", first_issued=True, first_wait=4, sleep=0)
stamp(10)
a(f"""s_mov_b64 exec, 0xffff
ds_write_b64 v22, {vr(32,2)}
s_mov_b64 exec, -1
s_waitcnt lgkmcnt(0)
s_barrier
ds_read_b64 {vr(32,2)}, v29 offset:{WTL}
s_waitcnt lgkmcnt(0)
v_mov_b32 v34, v32""")
allreduce("v_max_f32", "v34", "v37")
a("v_sub_f32 v32, v32, v34\nv_exp_f32 v32, v32\ns_nop 0\nv_mul_f32 v33, v33, v32")
allreduce("v_add_f32", "v33", "v37")
a(f"""v_rcp_f32 v33, v33
s_nop 0
v_mul_f32 v32, v32, v33
v_cvt_pk_bf16_f32 v33, v32, v32
v_and_b32 v34, 0xffff0000, v33
v_sub_f32 v34, v32, v34
v_cvt_pk_bf16_f32 v33, v32, v34
s_nop 0
""")
for u in range(4): a(f"ds_bpermute_b32 v{16+u}, v35, v33 offset:{u*16}")
a("s_waitcnt lgkmcnt(0)")
for u in range(4): a(f"v_perm_b32 v{16+u}, v{16+u}, v{16+u}, v36")
for u in range(4):
    for t in range(4):
        a(f"v_and_b32 v{80+4*u+t}, v{16+u}, v{MK[t]}")
a("s_mov_b32 s5, 0\ns_mov_b32 s6, 15")
a.label("L_S5chk")
a("s_waitcnt vmcnt(0)\ns_mov_b32 s7, 0")
for u in range(4):
    b = 96 + 4 * u
    a(f"""v_xor_b32 v28, v{b}, v248
    v_xor_b32 v31, v{b+1}, v249
    v_xor_b32 v21, v{b+2}, v250
    v_xor_b32 v22, v{b+3}, v251
    v_or3_b32 v28, v28, v31, v21
    v_or_b32 v28, v28, v22
    v_and_b32 v28, s79, v28
    v_cmp_ne_u32 vcc, 0, v28
    s_cbranch_vccz L_S5ok{u}
    {S5L[u]}
    s_mov_b32 s7, 1""")
    a.label(f"L_S5ok{u}")
a("""s_add_u32 s5, s5, 1
s_cmp_gt_u32 s5, 200000
s_cbranch_scc1 L_S5done
s_cmp_eq_u32 s7, 1
s_cbranch_scc1 L_S5chk""")
a.label("L_S5done")
stamp(8)
for u in range(4):
    c = "0" if u == 0 else vr(32)
    a(f"v_mfma_f32_16x16x32_bf16 {vr(32)}, {vr(80+4*u)}, {vr(96+4*u)}, {c}")
a(f"""s_nop 7
ds_write_b128 v30, {vr(32)}
s_waitcnt lgkmcnt(0)
s_barrier
s_cmp_ge_u32 {sW}, 4
s_cbranch_scc1 L_S5_b6
ds_read_b128 {vr(40)}, v27
ds_read_b128 {vr(44)}, v27 offset:32
s_waitcnt lgkmcnt(0)
""")
sum8(list(range(40, 48)))
for i in range(8): a(f"v_cvt_pk_bf16_f32 v{40+i}, v{40+i}, v{40+i}")
diag_mfma([(40 + k, 192 + 4 * k) for k in range(8)], 32)
a(f"s_nop 7\nds_write_b128 v30, {vr(32)} offset:{RED5b-RED5}\ns_waitcnt lgkmcnt(0)")
a.label("L_S5_b6")
a(f"s_barrier\ns_cmp_lg_u32 {sW}, 0\ns_cbranch_scc1 L_S9")
dlayout_off("v27", "v28", 256, 2)
a(f"s_lshl_b32 s12, s74, 9\ns_add_u32 s12, s12, {R5}")
reduce_b128("v30", 4, RED5b - RED5, 64, 32)
a(f"""v_cvt_pk_bf16_f32 v32, v32, v33
v_cvt_pk_bf16_f32 v33, v34, v35
buffer_store_dwordx2 {vr(32,2)}, v27, {srd(WS)}, s12 offen sc1
""")
stamp(9)
a.label("L_S9")
if opt("nolate", 0): a("s_branch L_fin")
a(f"s_cmp_ge_u32 {sID}, 80\ns_cbranch_scc1 L_fin\ns_cmp_lg_u32 {sW}, 1\ns_cbranch_scc1 L_fin")
mksrd(SC, pOUT, 2560)
a(f"""
s_mov_b32 s12, {sID}                ; unit
s_lshl_b32 s13, s12, 6
s_add_u32 s13, s13, {R7}
s_add_u32 s14, s13, {16*5120}
s_add_u32 s15, s13, {32*5120}
v_lshrrev_b32 v27, 2, {vLane}       ; pg
v_and_b32 v28, 3, {vLane}
v_mul_u32_u24 v29, 5120, v27
v_lshl_add_u32 v29, v28, 4, v29
v_add_u32 v30, {48*5120}, v29
v_cmp_gt_u32 vcc, {NFFN-48}, v27
v_mov_b32 v31, 0x7fffff00
s_nop 0
v_cndmask_b32 v30, v31, v30, vcc
s_mov_b64 exec, 1
""")
gather("L_S9gate", [f"buffer_load_dword v32, v29, {srd(WS)}, s13 offen sc1"], [32], "v31", sleep=2)
gather("L_S9data", [f"buffer_load_dwordx4 {vr(32)}, v29, {srd(WS)}, s13 offen sc1", f"buffer_load_dwordx4 {vr(36)}, v29, {srd(WS)}, s14 offen sc1",
                    f"buffer_load_dwordx4 {vr(40)}, v29, {srd(WS)}, s15 offen sc1", f"buffer_load_dwordx4 {vr(44)}, v30, {srd(WS)}, s13 offen sc1"],
       list(range(32, 48)), "v31", sleep=0)
stamp(13)
a("""v_pk_add_f32 v[32:33], v[32:33], v[36:37]
v_pk_add_f32 v[34:35], v[34:35], v[38:39]
v_pk_add_f32 v[40:41], v[40:41], v[44:45]
v_pk_add_f32 v[42:43], v[42:43], v[46:47]
v_pk_add_f32 v[32:33], v[32:33], v[40:41]
v_pk_add_f32 v[34:35], v[34:35], v[42:43]""")
for r in (4, 8):
    a("s_nop 1")
    for i in range(4):
        a(f"v_add_f32_dpp v{32+i}, v{32+i}, v{32+i} row_ror:{r} row_mask:0xf bank_mask:0xf")
for sw in ("v_permlane16_swap_b32", "v_permlane32_swap_b32"):
    for i in range(4): a(f"v_mov_b32 v{36+i}, v{32+i}")
    a("s_nop 0")
    for i in range(4): a(f"{sw} v{32+i}, v{36+i}")
    a("s_nop 0")
    for i in range(4): a(f"v_add_f32 v{32+i}, v{32+i}, v{36+i}")
a(f"""v_cvt_pk_bf16_f32 v32, v32, v33
v_cvt_pk_bf16_f32 v33, v34, v35
; L = 4*(u%16)+q4 : rgp = (u%16)>>2, n' = 4*(u&3)+q4 ; byte = b*1280 + nb*256 + n'*16 + (rgp&1)*8
s_lshr_b32 s13, s12, 4
s_lshl_b32 s13, s13, 8
s_bfe_u32 s14, s12, 0x10003
s_mul_i32 s14, s14, 1280
s_add_u32 s13, s13, s14
s_bfe_u32 s14, s12, 0x10002
s_lshl_b32 s14, s14, 3
s_add_u32 s13, s13, s14
s_and_b32 s14, s12, 3
s_lshl_b32 s14, s14, 6
s_add_u32 s13, s13, s14
v_lshlrev_b32 v28, 4, v28
s_mov_b64 exec, 15
buffer_store_dwordx2 {vr(32,2)}, v28, {srd(SC)}, s13 offen
s_cmp_lg_u32 s12, 0
s_cbranch_scc1 L_noep
s_mov_b64 exec, 1
v_mov_b32 v34, {sN}
v_mov_b32 v35, {EPOCH}
buffer_store_dword v34, v35, {srd(WS)}, 0 offen
""")
a.label("L_noep")
a("s_mov_b64 exec, -1\ns_branch L_fin")

a.label("L_F")
ACT = 0; RED = 8192; MISC = 16384; UKL = 32768
FL1 = FL2 + 0x2000
a(f"s_sub_u32 s10, {sID}, 128")
a.label("L_F_s2")
if opt("fwait", 1) == 1: get_tag()
if opt("fwait", 1) == 2:
    a("s_bfe_u32 s12, s10, 0x20003\ns_cmp_eq_u32 s12, 1\ns_cbranch_scc1 L_nofw")
    get_tag()
    a.label("L_nofw")
mksrd(SA, pWQ, 640 * 8192)
mksrd(SB, pWUK, 512 * 8192)
a(f"""
s_and_b32 s11, s10, 7
s_lshl_b32 s11, s11, 2
s_bfe_u32 s12, s10, 0x20003
s_xor_b32 s12, s12, {opt("hx", 0)}
s_add_u32 s11, s11, s12             ; h
s_lshr_b32 s12, s10, 5              ; r
s_lshl_b32 s14, s11, 8
s_cmp_ge_u32 {sW}, 5
s_cbranch_scc1 L_F_b0
s_mul_i32 s13, s12, 160
s_lshl_b32 s15, {sW}, 5
s_add_u32 s13, s13, s15             ; rbase
v_lshl_add_u32 v24, {vKg}, 2, s13
v_lshlrev_b32 v25, 13, v24
v_lshl_add_u32 v25, {vN}, 4, v25
""")
for k in range(8):
    g, u = divmod(k, 4)
    a(f"s_add_u32 s15, s14, {(16*g+u)*8192}\nbuffer_load_dwordx4 {vr(64+4*k)}, v25, {srd(SA)}, s15 offen nt")
UKF = 1
S3X = opt("s3x", 2)
a("s_branch L_F_h1")
a.label("L_F_b0")
a(f"""s_sub_u32 s15, {sW}, 5
s_lshl_b32 s8, s15, 10
s_add_u32 s8, s8, {UKL}
s_lshl_b32 s9, s12, 20
s_lshl_b32 s13, s15, 15
s_add_u32 s9, s9, s13
s_xor_b32 s13, s14, {S3X*256}
s_add_u32 s9, s9, s13
v_xor_b32 v26, {vKg}, {vN}
v_lshlrev_b32 v26, 4, v26
v_lshl_add_u32 v26, {vKg}, 13, v26
""")
for k in range(11):
    if k == 10: a(f"s_cmp_eq_u32 {sW}, 7\ns_cbranch_scc1 L_F_ukd")
    a(f"""s_add_u32 s13, s15, {3*k}
    s_and_b32 s13, s13, 3
    s_lshl_b32 s13, s13, 6
    v_xor_b32 v{27+k%2}, s13, v26
    s_add_u32 s13, s8, {k*3072}
    s_mov_b32 m0, s13
    s_add_u32 s13, s9, {k*3*32768}
    buffer_load_dwordx4 v{27+k%2}, {srd(SB)}, s13 offen nt lds""")
a.label("L_F_ukd")
a(f"""s_mul_i32 s15, s10, 6144
s_add_u32 s15, s15, {R5}
s_min_u32 s15, s15, {SMALL1-6144}
v_subrev_u32 v26, 320, v0
v_lshlrev_b32 v26, 4, v26
v_mov_b32 v32, -1
v_mov_b32 v33, -1
v_mov_b32 v34, -1
v_mov_b32 v35, -1
buffer_store_dwordx4 v[32:35], v26, {srd(WS)}, s15 offen sc1
buffer_store_dwordx4 v[32:35], v26, {srd(WS)}, s15 offen offset:3072 sc1""")
get_tag()
a("s_barrier\ns_waitcnt vmcnt(0)\ns_branch L_F_s3")
a.label("L_F_h1")
get_tag()
if opt("h2l", 1):
    a(f"""s_cmp_lg_u32 {sW}, 0
    s_cbranch_scc1 L_nopw
    s_not_b32 s15, {sN}
    v_mov_b32 v32, s15
    v_mov_b32 v33, s15
    v_mov_b32 v34, s15
    v_mov_b32 v35, s15
    s_lshl_b32 s15, s11, 2
    s_add_u32 s15, s15, s12
    s_lshl_b32 s15, s15, 10
    s_add_u32 s15, s15, {R2L}
    v_lshlrev_b32 v26, 4, {vLane}
    buffer_store_dwordx4 v[32:35], v26, {srd(WS)}, s15 offen""")
    a.label("L_nopw")
H1S = 24576
a(f"""; lane -> p = kg (+4), b = vN>>3, piece = vN&7 ; addr = (p*2+b)*2560 + rbase*4 + piece*16
v_mul_u32_u24 v26, 5120, {vKg}
v_lshrrev_b32 v27, 3, {vN}
v_mul_u32_u24 v27, 2560, v27
v_and_b32 v28, 7, {vN}
v_lshlrev_b32 v28, 4, v28
v_add3_u32 v26, v26, v27, v28
s_lshl_b32 s15, s13, 2
s_add_u32 s15, s15, {R1}
s_and_b32 s9, s10, {NC1-1}
s_mul_i32 s9, s9, 40960
s_add_u32 s15, s15, s9
s_add_u32 s9, s15, 20480
v_lshlrev_b32 v30, 4, v0
s_lshl_b32 s8, {sW}, 9
s_add_u32 s8, s8, {H1S}
v_lshlrev_b32 v27, 4, {vN}
v_add_u32 v27, s8, v27
v_lshrrev_b32 v31, 3, {vN}
v_lshlrev_b32 v31, 7, v31
v_lshl_add_u32 v31, {vKg}, 4, v31
v_add_u32 v31, s8, v31
s_waitcnt vmcnt({opt("h1wait", 1)})
""")
gather("L_H1", [f"buffer_load_dwordx4 {vr(32)}, v26, {srd(WS)}, s15 offen sc1", f"buffer_load_dwordx4 {vr(36)}, v26, {srd(WS)}, s9 offen sc1"],
       [33, 35, 37, 39], "v28", mode="tag", vt2="v29", sleep=1)
stamp(11)
a("""s_mov_b32 s8, 0x3f80
s_mov_b32 s9, 0x3f800000
v_lshlrev_b32 v40, 16, v32
v_and_b32 v41, 0xffff0000, v32
v_lshlrev_b32 v42, 16, v34
v_and_b32 v43, 0xffff0000, v34
v_dot2c_f32_bf16 v40, s8, v36
v_dot2c_f32_bf16 v41, s9, v36
v_dot2c_f32_bf16 v42, s8, v38
v_dot2c_f32_bf16 v43, s9, v38
s_nop 1""")
for sw in ("v_permlane16_swap_b32", "v_permlane32_swap_b32"):
    for i in range(4): a(f"v_mov_b32 v{44+i}, v{40+i}")
    a("s_nop 0")
    for i in range(4): a(f"{sw} v{40+i}, v{44+i}")
    a("s_nop 0")
    for i in range(4): a(f"v_add_f32 v{40+i}, v{40+i}, v{44+i}")
for i in range(4): a(f"v_cvt_pk_bf16_f32 v{40+i}, v{40+i}, v{40+i}")
a(f"""ds_write_b128 v27, {vr(40)}
s_waitcnt lgkmcnt(0)
ds_read_b128 {vr(40)}, v31
ds_read_b128 {vr(44)}, v31 offset:64
s_waitcnt lgkmcnt(0)""")
diag_mfma([(40 + k, 64 + 4 * k) for k in range(8)], 32)
a(f"s_nop 7\nds_write_b128 v30, {vr(32)} offset:{RED}")
a(f"s_waitcnt lgkmcnt(0)\ns_barrier")
a(f"s_cmp_lg_u32 {sW}, 0\ns_cbranch_scc1 L_F_s3")
a(f"v_lshlrev_b32 v27, 4, {vLane}")
a(f"""s_lshl_b32 s15, s11, 2
s_add_u32 s15, s15, s12
s_lshl_b32 s15, s15, 10
s_add_u32 s15, s15, {R2}
v_mov_b32 v37, {sN}
v_mov_b32 v39, {sN}""")
reduce_b128("v30", 5, RED, 64, 32)
a(f"""v_cvt_pk_bf16_f32 v36, v32, v33
v_cvt_pk_bf16_f32 v38, v34, v35
""")
if opt("h2l", 1):
    a(f"s_add_u32 s13, s15, {R2L-R2}\nbuffer_store_dwordx4 {vr(36)}, v27, {srd(WS)}, s13 offen")
a(f"buffer_store_dwordx4 {vr(36)}, v27, {srd(WS)}, s15 offen sc1")
stamp(12)
a.label("L_F_s3")
a(f"s_xor_b32 s11, s11, {S3X}\ns_barrier\ns_cmp_lt_u32 {sW}, 4\ns_cbranch_scc1 L_S3_h2")
a(f"""v_lshrrev_b32 v24, 2, {vN}
v_lshlrev_b32 v24, 3, v24
v_and_b32 v25, 3, {vN}
v_add_u32 v24, v24, v25
v_and_b32 v25, 15, v24
v_xor_b32 v25, v25, {vKg}
v_lshlrev_b32 v25, 4, v25
v_lshl_add_u32 v25, v24, 8, v25
s_sub_u32 s8, {sW}, 4
s_lshl_b32 s8, s8, 13
s_add_u32 s8, s8, {UKL}
v_add_u32 v25, s8, v25
s_waitcnt vmcnt(0)
""")
for t in range(2):
    for s in range(4):
        k = t * 4 + s
        a(f"v_xor_b32 v26, {((4*s) ^ (4*t)) << 4}, v25\nds_read_b128 {vr(64+4*k)}, v26 offset:{t*1024}")
a(f"""v_and_b32 v26, 1, {vN}
v_mul_u32_u24 v27, 320, v26
v_lshl_add_u32 v27, {vKg}, 4, v27
v_lshlrev_b32 v28, 15, v26
v_lshl_add_u32 v28, {vKg}, 4, v28
s_lshl_b32 s14, s11, 10
s_lshl_b32 s15, s12, 8
s_add_u32 s14, s14, s15
s_sub_u32 s15, {sW}, 4
s_lshl_b32 s15, s15, 6
s_add_u32 s14, s14, s15
s_add_u32 s14, s14, {R3}
s_mov_b32 s15, 0x{f2u(128 ** -0.5 * LOG2E):08x}
s_mov_b32 s8, 0x00030003
s_mov_b32 s9, 0x00030003
s_waitcnt lgkmcnt(0)
s_barrier
""")
for s in range(4):
    a(f"ds_read_b128 {vr(40+4*s)}, v27 offset:{ACT+64*s}")
for s in range(4):
    a(f"s_waitcnt lgkmcnt({3-s})")
    for t in range(2):
        k = t * 4 + s
        c = "0" if s == 0 else vr(32 + 4 * t)
        a(f"v_mfma_f32_16x16x32_bf16 {vr(32+4*t)}, {vr(64+4*k)}, {vr(40+4*s)}, {c}")
a("s_nop 6")
for i in range(8): a(f"v_mul_f32 v{32+i}, s15, v{32+i}")
for i in range(4): a(f"v_cvt_pk_bf16_f32 v{32+i}, v{32+2*i}, v{33+2*i}")
a(f"""s_mov_b64 exec, s[8:9]
buffer_store_dwordx4 {vr(32)}, v28, {srd(WS)}, s14 offen sc1
s_mov_b64 exec, -1
""")
stamp(4)
a("s_branch L_F_late")
a.label("L_S3_h2")
a(f"""s_cmp_lg_u32 {sW}, 1
s_cbranch_scc1 L_S3_bar
v_lshlrev_b32 v26, 4, {vLane}
s_lshl_b32 s14, s11, 12
s_add_u32 s14, s14, {R2}
s_mov_b32 s8, 0x3f80
s_mov_b32 s9, 0x3f800000
""")
dlayout_off("v27", "v28", 320, 2)
if opt("h2l", 1):
    a(f"s_add_u32 s13, s14, {R2L-R2}")
    dual_gather("L_H2", [f"buffer_load_dwordx4 {vr(32+4*r)}, v26, {srd(WS)}, s13 offen offset:{r*1024} sc1" for r in range(4)],
        [f"buffer_load_dwordx4 {vr(32+4*r)}, v26, {srd(WS)}, s14 offen offset:{r*1024} sc1" for r in range(4)],
        [33 + 2 * i for i in range(8)], "v28", "v29", every=opt("every", 8))
else:
    gather("L_H2", [f"buffer_load_dwordx4 {vr(32+4*r)}, v26, {srd(WS)}, s14 offen offset:{r*1024} sc1" for r in range(4)],
       [33 + 2 * i for i in range(8)], "v28", mode="tag", vt2="v29", sleep=0)
stamp(3)
a("v_lshlrev_b32 v48, 16, v32\nv_and_b32 v49, 0xffff0000, v32\nv_lshlrev_b32 v50, 16, v34\nv_and_b32 v51, 0xffff0000, v34")
for r in range(1, 4):
    a(f"v_dot2c_f32_bf16 v48, s8, v{32+4*r}\nv_dot2c_f32_bf16 v49, s9, v{32+4*r}\nv_dot2c_f32_bf16 v50, s8, v{34+4*r}\nv_dot2c_f32_bf16 v51, s9, v{34+4*r}")
a(f"""s_nop 2
v_cvt_pk_bf16_f32 v48, v48, v49
v_cvt_pk_bf16_f32 v49, v50, v51
ds_write_b64 v27, {vr(48,2)} offset:{ACT}
s_waitcnt lgkmcnt(0)
""")
a.label("L_S3_bar")
a("s_barrier")
a.label("L_F_late")
if opt("nolate", 0): a("s_branch L_fin")
a(f"""s_sub_u32 s15, s10, 60
s_cmp_lt_u32 s15, 4
s_cbranch_scc1 L_fin
s_barrier""")
if opt("trig", 1):
    a(f"""s_cmp_ge_u32 s10, {opt("notrig", 64)}
    s_cbranch_scc1 L_late2
    s_cmp_lg_u32 {sW}, 0
    s_cbranch_scc1 L_trig_x
    s_lshl_b32 s15, s10, 6
    s_add_u32 s15, s15, {FL2}
    v_mov_b32 v26, s15
    s_mov_b64 exec, 1""")
    gather("L_trig", [f"buffer_load_dword v27, v26, {srd(WS)}, 0 offen sc1"], [27], "v27", mode="tag", sleep=4)
    a("s_barrier")
a.label("L_late2")
stamp(6)
a(f"s_cmp_ge_u32 s10, 118\ns_cbranch_scc1 L_S1bf\ns_cmp_ge_u32 s10, 64\ns_cbranch_scc1 L_FFN\ns_cmp_ge_u32 s10, 40\ns_cbranch_scc1 L_S1bh")
mksrd(SA, pWO, 4096 * 1280)
a(f"""
s_and_b32 s11, s10, 7               ; g
s_lshr_b32 s12, s10, 3              ; nb
s_lshl_b32 s13, s11, 9
s_lshl_b32 s14, {sW}, 6
s_add_u32 s13, s13, s14
v_lshl_add_u32 v24, {vKg}, 2, s13
v_mul_u32_u24 v24, 1280, v24
v_lshl_add_u32 v24, {vN}, 4, v24
s_lshl_b32 s14, s12, 8
""")
for g in range(4):
    for u in range(4):
        k = g * 4 + u
        a(f"buffer_load_dwordx4 {vr(128+4*k)}, v24, {srd(SA)}, s14 offen offset:{u*1280} nt")
    if g < 3: a("s_add_u32 s14, s14, 20480")
a(f"""v_lshrrev_b32 v26, 7, v0
v_lshlrev_b32 v27, 11, v26
v_and_b32 v28, 127, v0
v_lshl_add_u32 v27, v28, 2, v27
s_lshl_b32 s14, s11, 13
s_add_u32 s14, s14, {R5}
v_bfe_u32 v28, v0, 6, 1
v_mul_u32_u24 v28, 2112, v28
v_lshl_add_u32 v28, v26, 9, v28
v_lshl_add_u32 v28, {vLane}, 3, v28
v_lshrrev_b32 v26, 3, {vN}
v_mul_u32_u24 v26, 2112, v26
s_lshl_b32 s15, {sW}, 8
v_add_u32 v26, s15, v26
v_lshl_add_u32 v26, {vKg}, 4, v26
v_lshlrev_b32 v30, 4, v0
s_mov_b32 s8, 0x3f80
s_mov_b32 s9, 0x3f800000
s_waitcnt vmcnt(0)
""")
stamp(7)
if LATEONLY: a("s_branch L_fin")
a(f"""s_lshl_b32 s15, s10, 6
s_add_u32 s15, s15, {FL2+32}
v_mov_b32 v31, s15
s_mov_b64 exec, 1""")
gather("L_w3a", [f"buffer_load_dword v32, v31, {srd(WS)}, 0 offen sc1"], [32], "v32", mode="tag", sleep=4)
a("s_mov_b64 exec, 1")
gather("L_H5gate", [f"buffer_load_dword v32, v27, {srd(WS)}, s14 offen sc1"], [32], "v31", sleep=2)
gather("L_H5", [f"buffer_load_dword v{32+c}, v27, {srd(WS)}, s14 offen offset:{c*512} sc1" for c in range(4)], [32, 33, 34, 35], "v29", sleep=0)
stamp(8)
a("v_lshlrev_b32 v36, 16, v32\nv_and_b32 v37, 0xffff0000, v32")
for c in range(1, 4):
    a(f"v_dot2c_f32_bf16 v36, s8, v{32+c}\nv_dot2c_f32_bf16 v37, s9, v{32+c}")
a(f"""s_nop 2
v_cvt_pk_bf16_f32 v36, v36, v36
v_cvt_pk_bf16_f32 v37, v37, v37
ds_write_b64 v28, {vr(36,2)} offset:{ACT}
s_waitcnt lgkmcnt(0)
s_barrier
""")
for g in range(4): a(f"ds_read_b128 {vr(40+4*g)}, v26 offset:{ACT+64*g}")
a("s_waitcnt lgkmcnt(3)")
diag_mfma([(40 + k, 128 + 4 * k) for k in range(16)], 32,
          waits=[("s_waitcnt lgkmcnt(%d)" % (2 - k // 4)) if (k % 4 == 2 and k < 12) else None for k in range(16)])
a(f"""s_nop 7
ds_write_b128 v30, {vr(32)} offset:{RED}
s_waitcnt lgkmcnt(0)
s_barrier
s_cmp_lg_u32 {sW}, 0
s_cbranch_scc1 L_fin
""")
a(f"v_lshlrev_b32 v27, 3, {vLane}")
a(f"""s_mul_i32 s14, s11, 2560
s_lshl_b32 s15, s12, 9
s_add_u32 s14, s14, s15
s_add_u32 s14, s14, {R6}""")
reduce_b128("v30", 8, RED, 64, 32)
a(f"""v_cvt_pk_bf16_f32 v32, v32, v33
v_cvt_pk_bf16_f32 v33, v34, v35
""")
for c in range(NC6):
    a(f"buffer_store_dwordx2 {vr(32,2)}, v27, {srd(WS)}, s14 offen sc1")
    if c < NC6 - 1: a("s_add_u32 s14, s14, 20480")
stamp(9)
a("s_branch L_fin")
def s1b(ng, name):
    mksrd(SA, pWM, 640 * 7680)
    mksrd(SB, pC, 2560)
    a(f"""v_lshl_add_u32 v24, {vKg}, 2, s13
    v_lshrrev_b32 v25, 3, {vN}
    v_mul_u32_u24 v26, 1280, v25
    v_lshl_add_u32 v26, v24, 1, v26
    v_mul_u32_u24 v27, 7680, v24
    v_lshl_add_u32 v27, {vN}, 4, v27
    s_lshl_b32 s14, s11, 8
    s_add_u32 s14, s14, 2560
    """)
    for g in range(ng):
        a(f"buffer_load_dwordx2 {vr(40+2*g,2)}, v26, {srd(SB)}, 0 offen offset:{g*32}")
    for k in range(4 * ng):
        g, u = divmod(k, 4)
        a(f"s_add_u32 s15, s14, {(g*16+u)*7680}\nbuffer_load_dwordx4 {vr(128+4*k)}, v27, {srd(SA)}, s15 offen nt")
    a(f"s_waitcnt vmcnt({4*ng})")
    for g in range(ng): silu_c4(40 + 2 * g, 64 + 4 * g, "v24")
    a("v_lshlrev_b32 v30, 4, v0")
    diag_mfma([(64 + k, 128 + 4 * k) for k in range(4 * ng)], 32, waits=[f"s_waitcnt vmcnt({4*ng-1-k})" for k in range(4 * ng)])
    a(f"s_nop 7\nds_write_b128 v30, {vr(32)} offset:{RED}\ns_waitcnt lgkmcnt(0)")
a.label("L_S1bh")
a(f"""s_sub_u32 s11, s10, 40
s_and_b32 s12, s11, 1               ; kh
s_lshr_b32 s11, s11, 1
s_lshl_b32 s87, s11, 10
s_add_u32 s88, s87, {R8B}
s_add_u32 s87, s87, {R8+5120}
s_cmp_eq_u32 s12, 1
s_cselect_b32 s87, s88, s87
s_add_u32 s11, s11, 5               ; q
s_mul_i32 s13, s12, 320
s_lshl_b32 s15, {sW}, 6
s_add_u32 s13, s13, s15
v_lshlrev_b32 v30, 4, v0
s_cmp_ge_u32 {sW}, 5
s_cbranch_scc1 L_S1b_z
""")
s1b(4, "h")
a("s_branch L_S1b_fin")
a.label("L_S1b_z")
a(f"v_mov_b32 v32, 0\nv_mov_b32 v33, 0\nv_mov_b32 v34, 0\nv_mov_b32 v35, 0\nds_write_b128 v30, {vr(32)} offset:{RED}\ns_waitcnt lgkmcnt(0)\ns_branch L_S1b_fin")
a.label("L_S1bf")
a(f"""s_sub_u32 s11, s10, 118
s_add_u32 s12, s11, 10
s_cmp_lt_u32 s11, 5
s_cselect_b32 s11, s11, s12         ; q
s_lshl_b32 s87, s11, 10
s_add_u32 s87, s87, {R8}
s_mul_i32 s13, {sW}, 80
""")
s1b(5, "f")
a.label("L_S1b_fin")
a(f"""s_barrier
s_cmp_lg_u32 {sW}, 0
s_cbranch_scc1 L_fin
s_lshl_b32 s15, s10, 6
s_add_u32 s15, s15, {FL2+32}
v_mov_b32 v31, s15
s_mov_b64 exec, 1""")
gather("L_w3b", [f"buffer_load_dword v32, v31, {srd(WS)}, 0 offen sc1"], [32], "v32", mode="tag", sleep=4)
a(f"v_lshlrev_b32 v27, 4, {vLane}")
reduce_b128("v30", 8, RED, 64, 32)
a(f"buffer_store_dwordx4 {vr(32)}, v27, {srd(WS)}, s87 offen sc1")
stamp(9)
a("s_branch L_fin")
a.label("L_FFN")
mksrd(SA, pWG, 640 * 3456)
mksrd(SB, pWU, 640 * 3456)
mksrd(SC, pWD, 1728 * 1280)
mksrd(SD, pX, 2560)
GW = 64
DW = 104
M2 = [16, 17]
AST = 2624
STL = MISC + 5120; ACT2 = MISC + 6144
a(f"""
s_sub_u32 s11, s10, {F_FFN0}        ; fb
s_cmp_lg_u32 {sW}, 4
s_cbranch_scc1 L_FFN_np
s_setprio 2""")
a.label("L_FFN_np")
a(f"""s_mul_i32 s13, {sW}, 80
v_lshl_add_u32 v24, {vKg}, 2, s13
v_lshrrev_b32 v25, 3, {vN}
v_add_u32 v24, v24, v25             ; row (e=0,q=0)
v_mul_u32_u24 v24, 3456, v24
v_and_b32 v25, 3, {vN}
v_lshl_add_u32 v24, v25, 4, v24
s_lshl_b32 s14, s11, 6
s_mov_b32 s8, 0x0f0f0f0f
s_mov_b32 s9, 0x0f0f0f0f
s_mov_b64 exec, s[8:9]
""")
for half, sr in ((0, SA), (1, SB)):
    if half: a("s_not_b64 exec, exec")
    for k in range(10):
        q, e = divmod(k, 2)
        a(f"s_add_u32 s15, s14, {(16*q+2*e)*3456}\nbuffer_load_dwordx4 {vr(GW+4*k)}, v24, {srd(sr)}, s15 offen nt")
a(f"""s_mov_b64 exec, -1
v_and_b32 v24, 1, {vN}
v_lshlrev_b32 v24, 4, v24
v_mov_b32 v25, 0xffff
v_lshlrev_b32 v24, v24, v25
v_and_b32 v25, 2, {vN}
v_cmp_eq_u32 vcc, 0, v25
s_nop 1
v_cndmask_b32 v{M2[0]}, 0, v24, vcc
v_cndmask_b32 v{M2[1]}, v24, 0, vcc
v_lshlrev_b32 v20, 3, v0            ; R6 offset
v_add_u32 v27, 5120, v20
v_lshlrev_b32 v30, 4, v0
v_lshrrev_b32 v23, 2, {vN}
v_and_b32 v23, 1, v23
v_mul_u32_u24 v23, {AST}, v23
s_mul_i32 s15, {sW}, 320
v_lshl_add_u32 v24, {vKg}, 4, s15
v_add_u32 v23, v23, v24
v_lshrrev_b32 v29, 5, {vLane}       ; b (lane>>5)
v_lshlrev_b32 v28, 8, v29
v_bfe_u32 v24, {vLane}, 2, 1
v_lshl_add_u32 v28, v24, 7, v28
v_bfe_u32 v24, {vLane}, 3, 2
v_lshl_add_u32 v28, v24, 4, v28
v_and_b32 v24, 3, {vLane}
v_lshl_add_u32 v28, v24, 2, v28
v_add_u32 v28, {RED}, v28
v_mul_u32_u24 v22, 192, v29
v_and_b32 v25, 31, {vLane}
v_lshl_add_u32 v22, v25, 2, v22
s_cmp_ge_u32 {sW}, 5
s_cbranch_scc1 L_FFN_x1
s_lshl_b32 s13, s11, 5
v_lshl_add_u32 v24, {vKg}, 2, s13
v_mul_u32_u24 v24, 1280, v24
v_lshl_add_u32 v24, {vN}, 4, v24
s_lshl_b32 s14, {sW}, 8
s_add_u32 s15, s14, 20480
""")
for k in range(8):
    g, u = divmod(k, 4)
    a(f"buffer_load_dwordx4 {vr(DW+4*k)}, v24, {srd(SC)}, s{14+g} offen offset:{u*1280} nt")
dlayout_off("v18", "v19", 1280, 2)
dlayout_off("v21", "v19", AST, 4)
a(f"""buffer_load_dwordx2 {vr(48,2)}, v18, {srd(SD)}, s14 offen
s_lshl_b32 s14, {sW}, 9
v_add_u32 v21, s14, v21
s_setprio 0
""")
a.label("L_FFN_x1")
def exch():
    for k in range(10):
        d = GW + 4 * k
        a(f"""v_mov_b32 v24, v{d+2}
        v_mov_b32 v25, v{d+3}
        v_mov_b32_dpp v{d+2}, v{d} row_ror:8 row_mask:0xf bank_mask:0x3
        v_mov_b32_dpp v{d+3}, v{d+1} row_ror:8 row_mask:0xf bank_mask:0x3
        v_mov_b32_dpp v{d}, v24 row_ror:8 row_mask:0xf bank_mask:0xc
        v_mov_b32_dpp v{d+1}, v25 row_ror:8 row_mask:0xf bank_mask:0xc""")
a("s_waitcnt vmcnt(0)")
stamp(5)
exch()
a(f"""s_cmp_ge_u32 {sW}, 5
s_cbranch_scc1 L_FFN_b1
s_lshl_b32 s15, s10, 6
s_add_u32 s15, s15, {FL2+32}
v_mov_b32 v31, s15
s_mov_b32 s13, {R8}
s_mov_b32 s12, {R8+5120}
s_mov_b32 s14, {R8+10240}
s_mov_b32 s9, {R8+15360}
s_mov_b32 s8, {R8B}
s_mov_b32 s15, {R8B+5120}
s_mov_b64 exec, 1""")
gather("L_w3c", [f"buffer_load_dword v32, v31, {srd(WS)}, 0 offen sc1"], [32], "v32", mode="tag", sleep=4)
R8L = [f"buffer_load_dwordx4 {vr(208)}, v30, {srd(WS)}, s13 offen sc1",
    f"buffer_load_dwordx4 {vr(212)}, v30, {srd(WS)}, s12 offen sc1",
    f"buffer_load_dwordx4 {vr(216)}, v30, {srd(WS)}, s14 offen sc1",
    f"buffer_load_dwordx4 {vr(220)}, v30, {srd(WS)}, s9 offen sc1",
    f"buffer_load_dwordx4 {vr(224)}, v30, {srd(WS)}, s8 offen sc1",
    f"buffer_load_dwordx4 {vr(228)}, v30, {srd(WS)}, s15 offen sc1"]
gather("L_R8", R8L, list(range(208, 232)), "v31", sleep=6)
for i in range(8): a(f"v_add_f32 v{212+i}, v{212+i}, v{224+i}")
a(f"""v_lshlrev_b32 v52, 16, v48
v_and_b32 v53, 0xffff0000, v48
v_lshlrev_b32 v54, 16, v49
v_and_b32 v55, 0xffff0000, v49""")
for i in range(4): a(f"v_add_f32 v{216+i}, 1.0, v{216+i}")
stamp(7)
a(f"""s_mov_b32 s8, 0x3f80
s_mov_b32 s9, 0x3f800000
s_and_b32 s13, s11, {NC6-1}
s_mul_i32 s13, s13, 20480
s_add_u32 s13, s13, {R6}
s_add_u32 s12, s13, {4*2560}
v_lshrrev_b32 v19, 5, v0
v_lshlrev_b32 v19, 3, v19
v_lshlrev_b32 v18, 3, v29
s_mov_b64 exec, 1
""")
gather("L_H6gate", [f"buffer_load_dword v32, v20, {srd(WS)}, s13 offen sc1"], [32], "v33", sleep=2)
def H6L(b):
    r = []
    for g in range(8):
        if g % 4 < 2: r.append(f"buffer_load_dwordx2 {vr(b+2*g,2)}, v20, {srd(WS)}, s{13 if g < 4 else 12} offen offset:{(g%4)*2560} sc1")
        else: r.append(f"buffer_load_dwordx2 {vr(b+2*g,2)}, v27, {srd(WS)}, s{13 if g < 4 else 12} offen offset:{(g%4-2)*2560} sc1")
    return r
gather("L_H6", H6L(32), list(range(32, 48)), "v31", sleep=0)
stamp(8)
a("v_lshlrev_b32 v56, 16, v32\nv_and_b32 v57, 0xffff0000, v32\nv_lshlrev_b32 v58, 16, v33\nv_and_b32 v59, 0xffff0000, v33")
for g in range(1, 8):
    a(f"v_dot2c_f32_bf16 v56, s8, v{32+2*g}\nv_dot2c_f32_bf16 v57, s9, v{32+2*g}\nv_dot2c_f32_bf16 v58, s8, v{33+2*g}\nv_dot2c_f32_bf16 v59, s9, v{33+2*g}")
a("s_nop 2")
for i in range(4): a(f"v_fmac_f32 v{52+i}, v{208+i}, v{56+i}")
a("""v_add_f32 v40, v52, v53
v_mul_f32 v41, v52, v52
v_add_f32 v42, v54, v55
v_fmac_f32 v41, v53, v53
v_add_f32 v40, v40, v42
v_fmac_f32 v41, v54, v54
v_fmac_f32 v41, v55, v55
""")
for r in (8, 4, 2, 1):
    a(f"s_nop 0\nv_add_f32_dpp v40, v40, v40 row_ror:{r} row_mask:0xf bank_mask:0xf\nv_add_f32_dpp v41, v41, v41 row_ror:{r} row_mask:0xf bank_mask:0xf")
a(f"""v_mov_b32 v42, v40
v_mov_b32 v43, v41
s_nop 0
v_permlane16_swap_b32 v40, v42
v_permlane16_swap_b32 v41, v43
s_nop 0
v_add_f32 v40, v40, v42
v_add_f32 v41, v41, v43
ds_write_b64 v19, {vr(40,2)} offset:{STL}
s_waitcnt lgkmcnt(0)
s_barrier""")
for i in range(5): a(f"ds_read_b64 {vr(152+2*i,2)}, v18 offset:{STL+16*i}")
a(f"""s_waitcnt lgkmcnt(0)
v_pk_add_f32 v[152:153], v[152:153], v[154:155]
v_pk_add_f32 v[156:157], v[156:157], v[158:159]
v_pk_add_f32 v[152:153], v[152:153], v[160:161]
v_pk_add_f32 v[152:153], v[152:153], v[156:157]
v_mul_f32 v152, 0x{f2u(1.0/640):08x}, v152      ; mean
v_mul_f32 v153, 0x{f2u(1.0/640):08x}, v153
v_fma_f32 v153, -v152, v152, v153
v_max_f32 v153, 0, v153
v_add_f32 v153, 0x{f2u(1e-5):08x}, v153
v_rsq_f32 v153, v153""")
for i in range(4): a(f"v_sub_f32 v{56+i}, v{52+i}, v152")
for i in range(4): a(f"v_mul_f32 v{56+i}, v{56+i}, v153")
for i in range(4): a(f"v_fma_f32 v{56+i}, v{56+i}, v{216+i}, v{212+i}")
for i in range(4): a(f"v_cvt_pk_bf16_f32 v{56+i}, v{56+i}, v{56+i}")
a(f"ds_write_b128 v21, {vr(56)} offset:{ACT}\ns_waitcnt lgkmcnt(0)\ns_branch L_FFN_main")
a.label("L_FFN_b1")
a("s_barrier")
a.label("L_FFN_main")
a("s_barrier")
for q in range(5): a(f"ds_read_b128 {vr(224+4*q)}, v23 offset:{ACT+64*q}")
a("s_waitcnt lgkmcnt(4)")
diag_mfma([((224 + 2 * k, 225 + 2 * k), GW + 4 * k) for k in range(10)], 32, masks=M2,
          waits=[("s_waitcnt lgkmcnt(%d)" % (3 - k // 2)) if (k % 2 == 0 and k < 8) else None for k in range(10)])
a(f"""v_lshrrev_b32 v24, 3, {vN}
v_mul_u32_u24 v24, 192, v24
v_lshl_add_u32 v24, {vKg}, 4, v24
s_cmp_eq_u32 s11, 0
s_cselect_b32 s15, 1.0, 0
s_mul_i32 s14, s11, 5120
s_add_u32 s14, s14, {R7}
s_nop 0
ds_write_b128 v30, {vr(32)} offset:{RED}
v_mul_f32 v52, s15, v52
v_mul_f32 v53, s15, v53
v_mul_f32 v54, s15, v54
v_mul_f32 v55, s15, v55
s_waitcnt lgkmcnt(0)
s_barrier
s_cmp_lg_u32 {sW}, 7
s_cbranch_scc1 L_FFN_b3
""")
for w in range(8):
    a(f"ds_read_b32 v{136+2*w}, v28 offset:{w*1024}\nds_read_b32 v{137+2*w}, v28 offset:{w*1024+64}")
a(f"""s_waitcnt lgkmcnt(8)
v_pk_add_f32 v[136:137], v[136:137], v[138:139]
v_pk_add_f32 v[140:141], v[140:141], v[142:143]
v_pk_add_f32 v[136:137], v[136:137], v[140:141]
s_waitcnt lgkmcnt(0)
v_pk_add_f32 v[144:145], v[144:145], v[146:147]
v_pk_add_f32 v[148:149], v[148:149], v[150:151]
v_pk_add_f32 v[144:145], v[144:145], v[148:149]
v_pk_add_f32 v[32:33], v[136:137], v[144:145]""")
silu("v32", "v34")
a(f"""v_mul_f32 v32, v32, v33
v_cvt_pk_bf16_f32 v32, v32, v32
ds_write_b32 v22, v32 offset:{ACT2}
s_waitcnt lgkmcnt(0)
""")
a.label("L_FFN_b3")
a(f"""s_barrier
s_cmp_ge_u32 {sW}, 5
s_cbranch_scc1 L_fin
ds_read_b128 {vr(224)}, v24 offset:{ACT2}
ds_read_b128 {vr(228)}, v24 offset:{ACT2+64}
s_waitcnt lgkmcnt(1)
""")
diag_mfma([(224 + k, DW + 4 * k) for k in range(8)], 32, waits=[None, None, "s_waitcnt lgkmcnt(0)"] + [None] * 5)
a("s_nop 7")
for i in range(4): a(f"v_fmac_f32 v{52+i}, v{32+i}, v{220+i}")
a(f"buffer_store_dwordx4 {vr(52)}, v30, {srd(WS)}, s14 offen sc1")
stamp(9)

a.label("L_fin")
if STAMPS:
    stamp(15)
    a(f"""s_lshl_b32 s12, {sID}, 3
    s_add_u32 s12, s12, {sW}
    s_lshl_b32 s12, s12, 6
    s_add_u32 s12, s12, {STMP}
    v_lshlrev_b32 v24, 2, {vLane}
    s_mov_b64 exec, 0xffff
    buffer_store_dword {vST}, v24, {srd(WS)}, s12 offen""")
a.label("L_end")
a("s_endpgm")
a.label("L_code_end")

header = open("adaLN_cond__compressed_kv_cla__swiglu_ffn__decode.s.ref").read().split("; Override launch")[0]
open(OUT, "w").write(wrap(a.text(), 256, 512, 163840, header=header))
```

```python
import sys, math, struct
from asmgen import Asm, wrap

STAMPS = "--stamps" in sys.argv
OUT = [x for x in sys.argv[1:] if not x.startswith("--")]
OUT = OUT[0] if OUT else "k.s"
def opt(name, default):
    for x in sys.argv:
        if x.startswith("--" + name + "="): return int(x.split("=")[1])
    return default

EPOCH = 0x800
R1   = 0x600000
R2   = 0x10000
SMALL0 = 0x30000
R3   = 0x30000
R4S  = 0xAC000
R5   = 0x48000
R6   = 0xCC000
R8   = 0x60000
R7   = 0x68000
SMALL1 = 0xF4000
FL2  = 0xF8000
R2L  = 0x680000
R5L  = 0x6C0000
R4   = 0x100000
R4ST = 32768 + 256
STMP = 0x800000
WS_SIZE = 268435456
NFFN = 54
NC6 = opt('nc6', 8)
NC1 = opt('nc1', 4)
F_FFN0 = 64
R8B  = R8 + 20480
LOG2E = 1.4426950408889634
def f2u(x): return struct.unpack("<I", struct.pack("<f", x))[0]

a = Asm()
sID, sW, sN = "s2", "s3", "s4"
pX, pCKV, pWQ, pWUK, pWUV, pWO, pWG, pWU, pWD, pC, pWM, pOUT, pDBG, pWS = 16, 18, 20, 22, 24, 26, 30, 32, 34, 36, 38, 40, 42, 44
WS, SA, SB, SC, SD = 48, 52, 56, 60, 64
def srd(n): return "s[%d:%d]" % (n, n + 3)
vLane, vN, vKg = "v1", "v2", "v3"
MK = [4, 5, 6, 7]
ASET = [8, 12]
vST = "v255"
def vr(b, n=4): return f"v[{b}:{b+n-1}]"

def mksrd(n, p, size):
    a(f"s_mov_b32 s{n}, s{p}\ns_mov_b32 s{n+1}, s{p+1}\ns_mov_b32 s{n+2}, {size}\ns_mov_b32 s{n+3}, 0x00020000")

def stamp(k):
    if STAMPS:
        a(f"s_memrealtime s[90:91]\ns_waitcnt lgkmcnt(0)\nv_writelane_b32 {vST}, s90, {k}")

def get_tag():
    a(f"s_waitcnt lgkmcnt(0)\ns_mul_i32 {sN}, s46, 1664525\ns_add_u32 {sN}, {sN}, 1013904223")

def timeout(L):
    a(f"s_add_u32 s5, s5, 1\ns_cmp_gt_u32 s5, 200000\ns_cbranch_scc1 {L}_x")

def tree(op3, op2, dst, regs):
    r = list(regs)
    if len(r) == 1:
        a(f"v_mov_b32 {dst}, v{r[0]}"); return
    if len(r) == 2:
        a(f"{op2} {dst}, v{r[0]}, v{r[1]}"); return
    a(f"{op3} {dst}, v{r[0]}, v{r[1]}, v{r[2]}"); r = r[3:]
    while len(r) >= 2:
        a(f"{op3} {dst}, {dst}, v{r[0]}, v{r[1]}"); r = r[2:]
    if r: a(f"{op2} {dst}, {dst}, v{r[0]}")

DBGSLOT = {"L_H1": (11, 12), "L_H2": (13, 14), "L_S5stat": (1, 2), "L_H5": (11, 12), "L_H6": (11, 12), "L_H5gate": (13, 14), "L_H6gate": (13, 14)}
def gather(name, loads, regs, vt, mode="sent", vt2=None, first_issued=False, first_wait=0, sleep=1):
    if STAMPS and opt("polldbg", 0) and name in DBGSLOT and (opt("polldbg", 0) == 1) == (name in ("L_H1", "L_H2", "L_S5stat")):
        stamp(DBGSLOT[name][0])
    a("s_mov_b32 s5, 0")
    if first_issued:
        a(f"s_waitcnt vmcnt({first_wait})\ns_branch {name}_c")
    else:
        a(f"s_branch {name}_l")
    a.label(name)
    if sleep: a(f"s_sleep {sleep}")
    a.label(name + "_l")
    for l in loads: a(l)
    a("s_waitcnt vmcnt(0)")
    a.label(name + "_c")
    if mode == "sent":
        if len(regs) == 1:
            timeout(name)
            a(f"v_cmp_eq_u32 vcc, -1, v{regs[0]}")
        else:
            tree("v_max3_u32", "v_max_u32", vt, regs)
            timeout(name)
            a(f"v_cmp_eq_u32 vcc, -1, {vt}")
    else:
        if len(regs) == 1:
            timeout(name)
            a(f"v_cmp_ne_u32 vcc, {sN}, v{regs[0]}")
        else:
            tree("v_max3_u32", "v_max_u32", vt, regs); tree("v_min3_u32", "v_min_u32", vt2, regs)
            timeout(name)
            a(f"v_xor_b32 {vt}, {sN}, {vt}\nv_xor_b32 {vt2}, {sN}, {vt2}\nv_or_b32 {vt}, {vt}, {vt2}\nv_cmp_ne_u32 vcc, 0, {vt}")
    a(f"s_mov_b64 exec, vcc\ns_cbranch_execnz {name}")
    a.label(name + "_x")
    a("s_mov_b64 exec, -1")
    if STAMPS and opt("polldbg", 0) and name in DBGSLOT and (opt("polldbg", 0) == 1) == (name in ("L_H1", "L_H2", "L_S5stat")):
        a(f"v_writelane_b32 {vST}, s5, {DBGSLOT[name][1]}")

def pgather(name, loadfn, nregs, sets, dst, chk, vt, mode="sent", vt2=None, gap=2):
    n = len(sets); L = sum(1 for l in loadfn(sets[0]) if "buffer_load" in l)
    a("s_mov_b32 s5, 0")
    for i, b in enumerate(sets):
        for l in loadfn(b): a(l)
        if i < n - 1 and gap: a(f"s_sleep {gap}")
    a.label(name)
    for i, b in enumerate(sets):
        a(f"s_waitcnt vmcnt({L*(n-1)})")
        regs = [b + c for c in chk]
        if mode == "sent":
            if len(regs) == 1: a(f"v_cmp_eq_u32 vcc, -1, v{regs[0]}")
            else:
                tree("v_max3_u32", "v_max_u32", vt, regs)
                a(f"v_cmp_eq_u32 vcc, -1, {vt}")
        else:
            if len(regs) == 1: a(f"v_cmp_ne_u32 vcc, {sN}, v{regs[0]}")
            else:
                tree("v_max3_u32", "v_max_u32", vt, regs); tree("v_min3_u32", "v_min_u32", vt2, regs)
                a(f"v_xor_b32 {vt}, {sN}, {vt}\nv_xor_b32 {vt2}, {sN}, {vt2}\nv_or_b32 {vt}, {vt}, {vt2}\nv_cmp_ne_u32 vcc, 0, {vt}")
        a(f"s_cbranch_vccz {name}_d{i}")
        for l in loadfn(b): a(l)
    a(f"s_add_u32 s5, s5, 1\ns_cmp_lt_u32 s5, 100000\ns_cbranch_scc1 {name}")
    for i, b in enumerate(sets):
        a.label(f"{name}_d{i}")
        if dst is not None:
            for c in range(nregs): a(f"v_mov_b32 v{dst+c}, v{b+c}")
        if i < n - 1: a(f"s_branch {name}_x")
    a.label(name + "_x")
    a("s_mov_b64 exec, -1")

def dual_gather(name, loadsL, loadsG, regs, vt, vt2, every=4):
    a("s_mov_b32 s5, 0")
    a.label(name)
    a(f"s_add_u32 s5, s5, 1\ns_and_b32 s6, s5, {every-1}\ns_cmp_eq_u32 s6, 0\ns_cbranch_scc1 {name}_g")
    for l in loadsL: a(l)
    a(f"s_branch {name}_c")
    a.label(name + "_g")
    for l in loadsG: a(l)
    a.label(name + "_c")
    a("s_waitcnt vmcnt(0)")
    tree("v_max3_u32", "v_max_u32", vt, regs); tree("v_min3_u32", "v_min_u32", vt2, regs)
    a(f"s_cmp_gt_u32 s5, 200000\ns_cbranch_scc1 {name}_x")
    a(f"v_xor_b32 {vt}, {sN}, {vt}\nv_xor_b32 {vt2}, {sN}, {vt2}\nv_or_b32 {vt}, {vt}, {vt2}\nv_cmp_ne_u32 vcc, 0, {vt}\ns_cbranch_vccnz {name}")
    a.label(name + "_x")

def allreduce(op, v, t):
    for r in (8, 4, 2, 1):
        a(f"s_nop 1\n{op}_dpp {v}, {v}, {v} row_ror:{r} row_mask:0xf bank_mask:0xf")
    for sw in ("v_permlane16_swap_b32", "v_permlane32_swap_b32"):
        a(f"v_mov_b32 {t}, {v}\ns_nop 1\n{sw} {v}, {t}\ns_nop 1\n{op} {v}, {v}, {t}")

def sum8(regs):
    assert len(regs) >= 3
    for mode in ("quad_perm:[1,0,3,2]", "quad_perm:[2,3,0,1]", "row_half_mirror"):
        for r in regs:
            a(f"v_add_f32_dpp v{r}, v{r}, v{r} {mode} row_mask:0xf bank_mask:0xf")

def diag_mfma(items, acc, first=True, waits=None, masks=None):
    def ands(k):
        s = ASET[k % 2]; act = items[k][0]
        if isinstance(act, tuple):
            m = masks
            a(f"v_and_b32 v{s}, v{act[0]}, v{m[0]}\nv_and_b32 v{s+1}, v{act[0]}, v{m[1]}\nv_and_b32 v{s+2}, v{act[1]}, v{m[0]}\nv_and_b32 v{s+3}, v{act[1]}, v{m[1]}")
        else:
            for t in range(4):
                a(f"v_and_b32 v{s+t}, v{act}, v{MK[t]}")
    ands(0)
    for k in range(len(items)):
        if k + 1 < len(items): ands(k + 1)
        else: a("s_nop 1")
        if waits and waits[k]: a(waits[k])
        s = ASET[k % 2]; wv = items[k][1]
        c = "0" if (first and k == 0) else vr(acc)
        a(f"v_mfma_f32_16x16x32_bf16 {vr(acc)}, {vr(s)}, {vr(wv)}, {c}")

def silu(v, t):
    a(f"""v_mul_f32 {t}, 0x{f2u(-LOG2E):08x}, {v}
    v_exp_f32 {t}, {t}
    s_nop 0
    v_add_f32 {t}, 1.0, {t}
    v_rcp_f32 {t}, {t}
    s_nop 0
    v_mul_f32 {v}, {v}, {t}""")

def silu_c4(src, dst, t):
    a(f"""v_lshlrev_b32 v{dst}, 16, v{src}
    v_and_b32 v{dst+1}, 0xffff0000, v{src}
    v_lshlrev_b32 v{dst+2}, 16, v{src+1}
    v_and_b32 v{dst+3}, 0xffff0000, v{src+1}""")
    for i in range(4): silu(f"v{dst+i}", t)
    for i in range(4): a(f"v_cvt_pk_bf16_f32 v{dst+i}, v{dst+i}, v{dst+i}")

def reduce_b128(addr, n, base, tmp, dst, stride=1024):
    for i in range(n):
        a(f"ds_read_b128 {vr(tmp+4*i)}, {addr} offset:{base+i*stride}")
    cur = [tmp + 4 * i for i in range(n)]
    a(f"s_waitcnt lgkmcnt({n-2})")
    d = dst if n == 2 else cur[0]
    a(f"v_pk_add_f32 {vr(d,2)}, {vr(cur[0],2)}, {vr(cur[1],2)}\nv_pk_add_f32 {vr(d+2,2)}, {vr(cur[0]+2,2)}, {vr(cur[1]+2,2)}")
    for i in range(2, n):
        a(f"s_waitcnt lgkmcnt({n-1-i})")
        d = dst if i == n - 1 else cur[0]
        a(f"v_pk_add_f32 {vr(d,2)}, {vr(cur[0],2)}, {vr(cur[i],2)}\nv_pk_add_f32 {vr(d+2,2)}, {vr(cur[0]+2,2)}, {vr(cur[i]+2,2)}")

def dlayout_off(dst, t, bstride, esz):
    sh = {2: 1, 4: 2}[esz]
    a(f"""v_lshrrev_b32 {dst}, 1, {vKg}
    v_mul_u32_u24 {dst}, {bstride}, {dst}
    v_lshl_add_u32 {dst}, {vN}, {3+sh}, {dst}
    v_and_b32 {t}, 1, {vKg}
    v_lshl_add_u32 {dst}, {t}, {2+sh}, {dst}""")

def fsw(k): return ((k & 3) << 2) | ((k >> 2) & 3)

a.label("L_code_start")
a(f"""
s_getpc_b64 s[6:7]
s_cmp_ge_u32 {sID}, 256
s_cbranch_scc1 L_end
s_load_dwordx16 s[16:31], s[0:1], 0
s_load_dwordx8 s[32:39], s[0:1], 64
s_load_dwordx4 s[40:43], s[0:1], 96
s_load_dwordx2 s[44:45], s[0:1], 112
""")
if STAMPS: a("s_memrealtime s[8:9]")
a(f"""
v_and_b32 {vLane}, 63, v0
v_lshrrev_b32 v24, 6, v0
v_and_b32 {vN}, 15, v0
v_readfirstlane_b32 {sW}, v24
v_bfe_u32 {vKg}, v0, 4, 2
s_cmp_lt_u32 {sW}, 7
s_cbranch_scc1 L_nopf
s_bfe_u32 s5, {sID}, 0x50003
s_lshl_b32 s5, s5, 10
v_lshlrev_b32 v25, 4, {vLane}
v_add_u32 v25, s5, v25
v_min_u32 v25, L_code_end-L_code_start-32, v25
global_load_dwordx4 v[244:247], v25, s[6:7]
""")
a.label("L_nopf")
if STAMPS: a(f"v_mov_b32 {vST}, 0")
a(f"""
v_mov_b32 v20, 0
v_mov_b32 v29, 0
v_and_b32 v24, 1, {vN}
v_lshlrev_b32 v24, 4, v24
v_mov_b32 v26, 0xffff
v_lshlrev_b32 v24, v24, v26
v_bfe_u32 v26, {vN}, 1, 2""")
for t in range(4):
    a(f"v_cmp_eq_u32 vcc, {t}, v26\ns_nop 1\nv_cndmask_b32 v{MK[t]}, 0, v24, vcc")
a("s_waitcnt lgkmcnt(0)")
if STAMPS: a(f"v_writelane_b32 {vST}, s8, 0")
a(f"s_load_dword s46, s[{pWS}:{pWS+1}], {EPOCH}")
mksrd(WS, pWS, WS_SIZE)
a(f"s_cmp_ge_u32 {sID}, 128\ns_cbranch_scc1 L_F")

LATEONLY = False
QB = 131072
NE = opt("early", 0)
mksrd(SD, pCKV, 16777216)
def dma_setup():
    a(f"""s_bfe_u32 s89, {sID}, 0x20003
    s_lshl_b32 s89, s89, {8 if opt("rot", 1) else 31}
    s_and_b32 s89, s89, 0x300
    s_lshl_b32 s80, {sID}, 7
    s_lshl_b32 s81, {sW}, 4
    s_add_u32 s80, s80, s81
    s_lshl_b32 s80, s80, 10
    s_lshl_b32 s81, {sW}, 12
    v_lshlrev_b32 v240, 2, {vKg}
    v_xor_b32 v240, v240, {vN}
    v_lshlrev_b32 v240, 4, v240
    v_lshl_add_u32 v240, {vKg}, 10, v240
    v_xor_b32 v241, 16, v240
    v_add_u32 v241, 3072, v241
    v_xor_b32 v242, 32, v240
    v_add_u32 v242, 6144, v242
    v_xor_b32 v243, 48, v240
    v_add_u32 v243, 9216, v243""")
ROT = opt("rot", 1)
def dma_q(kq):
    a(f"s_add_u32 s82, s81, {kq*32768}\ns_mov_b32 m0, s82\ns_xor_b32 s83, s89, {kq*256}\ns_add_u32 s83, s80, s83")
    for i in range(4):
        a(f"buffer_load_dwordx4 v{240+i}, {srd(SD)}, s83 offen offset:{i*1024} nt lds")
def early():
    dma_setup()
    for kq in range(NE): dma_q(kq)
W7Q = opt("w7q", 0)
def w7_q0():
    for g in range(8):
        a(f"s_mov_b32 m0, {g*4096}\ns_sub_u32 s83, s80, {(7-g)*16384}\ns_add_u32 s83, s83, s89")
        for i in range(4):
            a(f"buffer_load_dwordx4 v{240+i}, {srd(SD)}, s83 offen offset:{i*1024} nt lds")
a(f"s_cmp_ge_u32 {sID}, 80\ns_cbranch_scc1 L_A_hold")
RED1 = QB; XN = QB + 8192
a(f"""s_and_b32 s47, {sID}, 63
s_lshl_b32 s47, s47, 10
s_add_u32 s47, s47, {R3-7168}
v_lshlrev_b32 v36, 4, v0
v_mov_b32 v32, -1
v_mov_b32 v33, -1
v_mov_b32 v34, -1
v_mov_b32 v35, -1
s_mul_i32 s10, {sID}, 205
s_lshr_b32 s10, s10, 11            ; p
s_mul_i32 s11, s10, 10
s_sub_u32 s11, {sID}, s11          ; j
s_cmp_ge_u32 {sW}, 5
s_cbranch_scc1 L_S1_other
""")
mksrd(SA, pWM, 640 * 7680)
mksrd(SB, pC, 2560)
a(f"""
s_mul_i32 s12, s10, 80
s_lshl_b32 s13, {sW}, 4
s_add_u32 s12, s12, s13
v_lshl_add_u32 v24, {vKg}, 2, s12  ; row
v_lshrrev_b32 v25, 3, {vN}
v_mul_u32_u24 v26, 1280, v25
v_lshl_add_u32 v26, v24, 1, v26
buffer_load_dwordx2 {vr(28,2)}, v26, {srd(SB)}, 0 offen
v_mul_u32_u24 v27, 7680, v24
v_mul_u32_u24 v26, 1152, v25
v_lshl_add_u32 v26, {vN}, 4, v26
s_lshl_b32 s13, s11, 7
v_add3_u32 v27, v27, v26, s13
buffer_load_dwordx4 {vr(64)}, v27, {srd(SA)}, 0 offen nt
s_movk_i32 s13, 7680
buffer_load_dwordx4 {vr(68)}, v27, {srd(SA)}, s13 offen nt
s_movk_i32 s13, 15360
buffer_load_dwordx4 {vr(72)}, v27, {srd(SA)}, s13 offen nt
s_movk_i32 s13, 23040
buffer_load_dwordx4 {vr(76)}, v27, {srd(SA)}, s13 offen nt
v_add_u32 v36, {RED1}, v36
v_lshrrev_b32 v29+8, 1, {vKg}
""".replace("v29+8", "v37"))
a(f"""v_lshlrev_b32 v30, 8, v37
v_and_b32 v31, 7, {vN}
v_lshl_add_u32 v30, v31, 5, v30
v_and_b32 v24, 1, {vKg}
v_lshl_add_u32 v30, v24, 4, v30
v_add_u32 v30, {XN}, v30
v_mul_u32_u24 v37, 2560, v37
v_lshl_add_u32 v37, v31, 5, v37
v_lshl_add_u32 v37, v24, 4, v37
s_mul_i32 s12, s10, 5120
s_lshl_b32 s13, s11, 8
s_add_u32 s12, s12, s13
s_add_u32 s12, s12, {R1}
s_cmp_eq_u32 s10, 0
s_cselect_b32 s13, 1.0, 0
s_mov_b32 s8, 0x00ff00ff
s_mov_b32 s9, 0x00ff00ff
""")
early()
a(f"s_waitcnt vmcnt({4+4*NE})")
silu_c4(28, 16, "v24")
diag_mfma([(16 + u, 64 + 4 * u) for u in range(4)], 40, waits=[f"s_waitcnt vmcnt({3-u+4*NE})" for u in range(4)])
stamp(1)
a(f"s_nop 7\nds_write_b128 v36, {vr(40)}")
get_tag()
a(f"s_waitcnt vmcnt({4*NE})\ns_barrier\ns_cmp_lg_u32 {sW}, 0\ns_cbranch_scc1 L_S1_end")
a(f"ds_read_b128 {vr(44)}, v30\nv_mov_b32 v53, {sN}\nv_mov_b32 v55, {sN}")
reduce_b128("v36", 5, 0, 64, 40)
a("s_nop 1")
for i in range(4):
    a(f"v_mov_b32_dpp v{48+i}, v{40+i} row_ror:8 row_mask:0xf bank_mask:0xf")
for i in range(4):
    a(f"v_add_f32 v{48+i}, s13, v{48+i}")
for i in range(4):
    a(f"v_fmac_f32 v{40+i}, v{44+i}, v{48+i}")
a(f"""v_cvt_pk_bf16_f32 v52, v40, v41
v_cvt_pk_bf16_f32 v54, v42, v43
s_mov_b64 exec, s[8:9]
""")
for c in range(NC1):
    a(f"buffer_store_dwordx4 {vr(52)}, v37, {srd(WS)}, s12 offen sc1")
    if c < NC1 - 1: a("s_add_u32 s12, s12, 40960")
a("s_mov_b64 exec, -1")
stamp(2)
a("s_branch L_S1_end")
a.label("L_S1_other")
a(f"s_cmp_eq_u32 {sW}, 7\ns_cbranch_scc1 L_S1_w7")
mksrd(SC, pX, 2560)
a(f"""
s_sub_u32 s12, {sW}, 5
s_mul_i32 s13, s12, 1280
v_lshlrev_b32 v24, 2, {vLane}
buffer_load_dword v52, v24, {srd(SC)}, s13 offen
buffer_load_dword v53, v24, {srd(SC)}, s13 offen offset:256
buffer_load_dword v54, v24, {srd(SC)}, s13 offen offset:512
buffer_load_dword v55, v24, {srd(SC)}, s13 offen offset:768
buffer_load_dword v56, v24, {srd(SC)}, s13 offen offset:1024
s_lshl_b32 s14, s11, 7
s_add_u32 s13, s13, s14
v_lshlrev_b32 v25, 1, {vLane}
buffer_load_ushort v37, v25, {srd(SC)}, s13 offen
""")
early()
a(f"s_waitcnt vmcnt({4*NE})")
for i in range(5):
    a(f"v_lshlrev_b32 v{40+2*i}, 16, v{52+i}\nv_and_b32 v{41+2*i}, 0xffff0000, v{52+i}")
a("v_add_f32 v26, v40, v41")
for i in range(2, 10): a(f"v_add_f32 v26, v26, v{40+i}")
allreduce("v_add_f32", "v26", "v27")
a(f"v_mul_f32 v26, 0x{f2u(1.0/640):08x}, v26")
a("v_sub_f32 v40, v40, v26\nv_mul_f32 v28, v40, v40")
for i in range(1, 10):
    a(f"v_sub_f32 v{40+i}, v{40+i}, v26\nv_fmac_f32 v28, v{40+i}, v{40+i}")
allreduce("v_add_f32", "v28", "v27")
a(f"""
v_mov_b32 v27, 0x{f2u(1e-5):08x}
v_fmac_f32 v27, 0x{f2u(1.0/640):08x}, v28
v_rsq_f32 v27, v27
v_lshlrev_b32 v37, 16, v37
v_sub_f32 v37, v37, v26
v_mul_f32 v37, v37, v27
s_lshl_b32 s12, s12, 8
s_add_u32 s12, s12, {XN}
v_add_u32 v24, s12, v24
ds_write_b32 v24, v37
s_branch L_S1_bar
""")
a.label("L_S1_w7")
a(f"buffer_store_dwordx4 v[32:35], v36, {srd(WS)}, s47 offen sc1")
early()
if W7Q:
    a("s_waitcnt vmcnt(0) lgkmcnt(0)")
    if W7Q == 1:
        w7_q0()
        a("s_barrier")
    else:
        a("s_barrier")
        w7_q0()
    a("s_branch L_S1_end")
a.label("L_S1_bar")
a(f"s_waitcnt vmcnt({4*NE}) lgkmcnt(0)\ns_barrier")
a.label("L_S1_end")
a("s_barrier\ns_branch L_A_main")
a.label("L_A_hold")
early()
NH = opt("nh", 0)
if NH:
    get_tag()
    for kq in range(NH): dma_q(kq)
    a("s_mov_b32 s88, 1")
if W7Q:
    a(f"s_cmp_lg_u32 {sW}, 7\ns_cbranch_scc1 L_h7\ns_waitcnt vmcnt(0) lgkmcnt(0)")
    w7_q0()
    a.label("L_h7")
STG = opt("stage", 0)
if STG:
    mksrd(SA, pWG, 640 * 3456)
    mksrd(SB, pWU, 640 * 3456)
    a(f"""s_sub_u32 s12, {sID}, 80
    s_mul_i32 s12, s12, 46080
    v_lshlrev_b32 v26, 4, v0""")
    for k in range(6):
        a(f"buffer_load_dwordx4 {vr(64+8*k)}, v26, {srd(SA)}, s12 offen")
        if STG >= 2: a(f"buffer_load_dwordx4 {vr(68+8*k)}, v26, {srd(SB)}, s12 offen")
        a("s_add_u32 s12, s12, 8192")
if opt("hold", 2) and not STG:
    get_tag()
    a(f"""s_cmp_lg_u32 {sW}, 0
    s_cbranch_scc1 L_hold_x
    s_sub_u32 s12, {sID}, 80
    s_lshl_b32 s12, s12, 9
    s_add_u32 s12, s12, {R1+4}
    v_mov_b32 v26, s12
    s_mov_b64 exec, 1""")
    if opt("hold", 2) == 1:
        gather("L_hold", [f"buffer_load_dword v27, v26, {srd(WS)}, 0 offen sc1"], [27], "v27", mode="tag", sleep=2)
    else:
        for _ in range(opt("hold", 2) - 1):
            a(f"buffer_load_dword v27, v26, {srd(WS)}, 0 offen sc1\ns_waitcnt vmcnt(0)\nv_cmp_ne_u32 vcc, {sN}, v27\ns_cbranch_vccz L_hold_x")
        a.label("L_hold_x")
        a("s_mov_b64 exec, -1")
    a("s_barrier")

a.label("L_A_main")
FL1 = FL2 + 0x2000
if opt("hold2", 0):
    get_tag()
    a(f"""s_cmp_lg_u32 {sW}, 1
    s_cbranch_scc1 L_hold2_x
    s_lshl_b32 s12, {sID}, 6
    s_add_u32 s12, s12, {FL1}
    v_mov_b32 v26, s12
    s_mov_b64 exec, 1""")
    gather("L_hold2", [f"buffer_load_dword v27, v26, {srd(WS)}, 0 offen sc1"], [27], "v27", mode="tag", sleep=2)
    a("s_barrier")
mksrd(SB, pWUV, 512 * 8192)
a(f"""
s_lshr_b32 s10, {sID}, 6            ; b
s_and_b32 s11, {sID}, 63            ; chunk
v_and_b32 v24, 31, {vLane}
v_lshrrev_b32 v25, 5, {vLane}
v_lshlrev_b32 v26, 4, {vLane}
s_lshl_b32 s13, {sID}, 8
s_add_u32 s13, s13, {R4}
v_lshrrev_b32 v23, 3, {vLane}
v_mul_u32_u24 v23, {4*R4ST}, v23
v_and_b32 v27, 7, {vLane}
v_lshl_add_u32 v23, v27, 4, v23
""")
a(f"""s_and_b32 s12, {sW}, 3
s_lshr_b32 s14, s89, 8
s_xor_b32 s12, s12, s14
s_mul_i32 s12, s12, {R4ST}
s_add_u32 s68, s12, s13
s_add_u32 s69, s68, {32*R4ST}
s_add_u32 s70, s68, {64*R4ST}
s_add_u32 s71, s68, {96*R4ST}
v_and_b32 v22, 3, {vLane}
v_lshlrev_b32 v22, 10, v22
s_and_b32 s9, {sID}, 31
s_lshl_b32 s9, s9, 12
s_lshl_b32 s14, {sW}, 7
s_add_u32 s9, s9, s14
s_add_u32 s9, s9, {R2}
""")
if NH: a("s_cmp_ge_u32 s2, 80\ns_cbranch_scc1 L_skipq")
for kq in range(max(NE, 1 if W7Q else 0), 4):
    if NH and kq == NH: a.label("L_skipq")
    dma_q(kq)
    if kq == 2:
        a(f"buffer_load_dword v21, v22, {srd(WS)}, s9 offen offset:4 sc1")
stamp(3)
get_tag()
a(f"""v_and_b32 v27, 7, {vLane}
v_mul_u32_u24 v27, 37, v27
v_xor_b32 v27, {sN}, v27
s_mov_b32 s79, 0x00010001""")
for i in range(4):
    a(f"v_bfe_u32 v28, v27, {2*i}, 1\nv_bfe_u32 v29, v27, {2*i+1}, 1\nv_lshl_or_b32 v{248+i}, v29, 16, v28")
a(f"""s_and_b32 s72, {sID}, 7
s_lshl_b32 s72, s72, 2
s_bfe_u32 s73, {sID}, 0x20003
s_add_u32 s72, s72, s73             ; h
s_lshr_b32 s73, {sID}, 5            ; cq
s_lshl_b32 s74, s72, 2
s_add_u32 s74, s74, s73             ; ci
s_lshl_b32 s76, s10, 5
s_lshl_b32 s13, {sW}, 2
s_add_u32 s76, s76, s13
s_lshl_b32 s76, s76, 10
s_add_u32 s76, s76, {R3}
s_lshl_b32 s77, s13, 10
s_add_u32 s77, s77, {QB}
s_and_b32 s14, {sW}, 3
v_xor_b32 v16, s14, {vLane}
v_lshlrev_b32 v16, 4, v16
v_xor_b32 v16, s89, v16
v_xor_b32 v17, 64, v16
v_xor_b32 v18, 128, v16
v_xor_b32 v19, 192, v16
v_add_u32 v31, s77, v26
s_cmp_ge_u32 {sW}, 4
s_cbranch_scc1 L_A_pvprep
s_lshl_b32 s8, s73, 7
s_lshl_b32 s13, {sW}, 5
s_add_u32 s8, s8, s13
v_lshl_add_u32 v20, {vKg}, 2, s8
v_lshlrev_b32 v20, 13, v20
v_lshl_add_u32 v20, {vN}, 4, v20
s_lshl_b32 s75, s72, 8
v_and_b32 v27, 3, {vLane}
v_lshlrev_b32 v27, 2, v27
v_bfe_u32 v28, {vLane}, 2, 2
v_or_b32 v27, v27, v28
v_xor_b32 v27, v27, v25
v_lshlrev_b32 v27, 4, v27           ; x0
v_lshl_or_b32 v28, v24, 10, v27     ; Q: l31*1024 | x0
v_lshl_or_b32 v27, v24, 8, v27      ; C: l31*256 | x0
s_lshl_b32 s12, {sW}, 13
v_add_u32 v27, s12, v27
v_add_u32 v28, {QB}, v28
""")
for t8 in range(8):
    a(f"v_xor_b32 v{224+t8}, {t8<<5}, v27\nv_xor_b32 v{232+t8}, {t8<<5}, v28")
QF = "" if opt("qplain", 0) else "sc1"
def q_issue(tagl):
    a(f"v_cmp_ne_u32 vcc, {sN}, v21\ns_mov_b32 s78, 0\ns_cbranch_vccnz {tagl}\ns_mov_b32 m0, s77\ns_mov_b32 s78, 1")
    if not opt("qfirst", 1):
        a(f"s_mov_b32 s78, 0\ns_branch {tagl}")
    for u in range(4):
        a(f"buffer_load_dwordx4 v{16+u}, {srd(WS)}, s76 offen offset:{u*1024} {QF} lds")
    a.label(tagl)
QW = [13, 9, 4]
for kq in range(4):
    if kq < 3: a(f"s_waitcnt vmcnt({QW[kq]}) lgkmcnt(0)")
    if kq == 2: q_issue("L_qi0")
    if kq == 3:
        a("s_cmp_eq_u32 s78, 1\ns_cbranch_scc1 L_qw0\ns_waitcnt vmcnt(0)")
        a.label("L_qw0")
        a("s_waitcnt vmcnt(4) lgkmcnt(0)")
    a("s_barrier")
    if kq == 2:
        for t8 in range(8): a(f"v_add_u32 v{224+t8}, 0x10000, v{224+t8}")
    for t8 in range(8):
        a(f"ds_read_b128 {vr(32+4*(kq*8+t8))}, v{224+t8} offset:{(kq%2)*32768}")
a("s_branch L_A_q")
a.label("L_A_pvprep")
a(f"""v_lshrrev_b32 v27, 2, {vN}          ; r
v_lshrrev_b32 v28, 1, {vKg}         ; kg
v_and_b32 v29, 1, {vKg}
v_lshl_add_u32 v30, v28, 3, v27
v_lshlrev_b32 v30, 8, v30
v_bfe_u32 v20, {vN}, 1, 1
v_lshl_add_u32 v20, v29, 1, v20
v_lshlrev_b32 v27, 2, v27
v_lshl_or_b32 v27, v28, 1, v27
v_xor_b32 v20, v20, v27
v_lshlrev_b32 v20, 4, v20
v_and_b32 v27, 1, {vN}
v_lshlrev_b32 v27, 3, v27
v_add3_u32 v30, v30, v20, v27
s_and_b32 s12, {sW}, 3
s_lshl_b32 s13, s12, 15
v_add_u32 v30, s13, v30
s_lshl_b32 s14, {sID}, 6
s_add_u32 s14, s14, {FL2}
v_mov_b32 v28, {sN}
v_mov_b32 v29, s14
""")
for mt in range(4):
    for e in range(2):
        a(f"v_xor_b32 v{224+mt*2+e}, {(mt*64) ^ (e*16) ^ (e*1024)}, v30")
TRIGQ = opt("trigq", 2)
for kq in range(4):
    if kq < 3: a(f"s_waitcnt vmcnt({QW[kq]}) lgkmcnt(0)")
    if kq == 2: q_issue("L_qi1")
    if kq == 3:
        a("s_cmp_eq_u32 s78, 1\ns_cbranch_scc1 L_qw1\ns_waitcnt vmcnt(0)")
        a.label("L_qw1")
        a("s_waitcnt vmcnt(4) lgkmcnt(0)")
    a("s_barrier")
    if kq == TRIGQ:
        a(f"""s_cmp_lg_u32 {sW}, {4 if kq == 3 else 7}
        s_cbranch_scc1 L_notrig
        s_mov_b64 exec, 1
        buffer_store_dword v28, v29, {srd(WS)}, 0 offen sc1
        s_mov_b64 exec, -1""")
        a.label("L_notrig")
    a(f"s_cmp_lg_u32 s12, {kq}\ns_cbranch_scc1 L_trs{kq}")
    if kq == 0: a.label("L_trread")
    if kq == 0:
        for mt in range(4):
            for t in range(8):
                for e in range(2):
                    d = 32 + (mt * 8 + t) * 4 + e * 2
                    a(f"ds_read_b64_tr_b16 {vr(d,2)}, v{224+mt*2+e} offset:{t*4096}")
        for k2 in range(1, 4):
            a(f"s_cmp_eq_u32 s12, {k2}\ns_cbranch_scc1 L_trs{k2}")
    else:
        a("s_branch L_trread")
    a.label(f"L_trs{kq}")
a.label("L_A_q")
stamp(4)
a("s_cmp_eq_u32 s78, 1\ns_mov_b32 s5, 0\ns_cbranch_scc1 L_Qdma_w\ns_mov_b64 exec, 15")
gather("L_wit", [f"buffer_load_dword v21, v22, {srd(WS)}, s9 offen offset:4 sc1"], [21], "v21", mode="tag", sleep=2)
a(f"s_lshl_b32 s14, s11, 6\nv_mov_b32 v22, s14\ns_mov_b64 exec, 1")
pgather("L_Qgate", lambda b: [f"buffer_load_dword v{b}, v22, {srd(WS)}, s76 offen offset:60 sc1"], 1, [244, 245, 246], None, [0], "v21", gap=3)
a("s_mov_b32 s5, 0\ns_mov_b32 m0, s77\ns_nop 0")
for u in range(4):
    a(f"buffer_load_dwordx4 v{16+u}, {srd(WS)}, s76 offen offset:{u*1024} {QF} lds")
a("s_branch L_Qdma_w")
a.label("L_Qdma")
a(f"s_sleep {opt('qsleep', 2)}")
a.label("L_Qdma_l")
for u in range(4):
    a(f"buffer_load_dwordx4 v{16+u}, {srd(WS)}, s76 offen offset:{u*1024} sc1 lds")
a.label("L_Qdma_w")
a("s_waitcnt vmcnt(0)")
for u in range(4):
    a(f"ds_read_b128 {vr(176+4*u)}, v31 offset:{u*1024}")
a("s_waitcnt lgkmcnt(0)")
tree("v_max3_u32", "v_max_u32", "v21", list(range(176, 192)))
timeout("L_Qdma")
a("v_cmp_eq_u32 vcc, -1, v21\ns_mov_b64 exec, vcc\ns_cbranch_execnz L_Qdma")
a.label("L_Qdma_x")
a("s_mov_b64 exec, -1")
stamp(5)
MXL, PL, WTL = 0, 4096, 2048
a(f"""s_barrier
s_cmp_lg_u32 {sW}, 7
s_cbranch_scc1 L_nofl3
s_mov_b64 exec, 1
buffer_store_dword v28, v29, {srd(WS)}, 0 offen offset:32 sc1
s_mov_b64 exec, -1""")
a.label("L_nofl3")
stamp(11)
a(f"s_cmp_ge_u32 {sW}, 4\ns_cbranch_scc1 L_A_pv")
SACC, BF = 160, 176
def qk_read(t):
    a(f"ds_read_b128 {vr(BF+4*(t%4))}, v{232+t%8} offset:{(t//8)*256}")
for t in range(4): qk_read(t)
for t in range(32):
    a(f"s_waitcnt lgkmcnt({min(3, 31-t)})")
    c = "0" if t == 0 else vr(SACC, 16)
    a(f"v_mfma_f32_32x32x16_bf16 {vr(SACC,16)}, {vr(32+4*t)}, {vr(BF+4*(t%4))}, {c}")
    if t + 4 < 32: qk_read(t + 4)
a(f"""s_lshl_b32 s12, {sW}, 2
v_lshlrev_b32 v29, 4, v24           ; MX[head][4]
v_add_u32 v30, s12, v29
v_mul_u32_u24 v31, 272, v24
v_lshl_add_u32 v31, v25, 3, v31
s_lshl_b32 s12, {sW}, 6
v_add_u32 v31, s12, v31
s_lshl_b32 s12, {sID}, 3
s_add_u32 s12, s12, {R4S}
v_lshlrev_b32 v22, 10, v24
s_nop 1
""")
tree("v_max3_f32", "v_max_f32", "v27", list(range(SACC, SACC + 16)))
stamp(12)
a(f"""v_mov_b32 v28, v27
s_nop 1
v_permlane32_swap_b32 v27, v28
s_nop 1
v_max_f32 v27, v27, v28
ds_write_b32 v30, v27 offset:{MXL}
s_waitcnt lgkmcnt(0)
s_barrier
ds_read_b128 {vr(32)}, v29 offset:{MXL}
s_waitcnt lgkmcnt(0)
v_max3_f32 v27, v32, v33, v34
v_max_f32 v27, v27, v35
""")
for g in range(4):
    for i in range(4): a(f"v_sub_f32 v{SACC+4*g+i}, v{SACC+4*g+i}, v27")
    for i in range(4): a(f"v_exp_f32 v{SACC+4*g+i}, v{SACC+4*g+i}")
    a("s_nop 0")
    a(f"v_cvt_pk_bf16_f32 v{32+2*g}, v{SACC+4*g}, v{SACC+4*g+1}\nv_cvt_pk_bf16_f32 v{33+2*g}, v{SACC+4*g+2}, v{SACC+4*g+3}")
    a(f"ds_write_b64 v31, {vr(32+2*g,2)} offset:{PL+g*16}")
a("s_waitcnt lgkmcnt(0)\ns_barrier")
stamp(6)
a(f"v_add_f32 v28, v{SACC}, v{SACC+1}")
for i in range(2, 16): a(f"v_add_f32 v28, v28, v{SACC+i}")
a(f"""v_mov_b32 v40, v28
s_nop 1
v_permlane32_swap_b32 v28, v40
s_nop 1
v_add_f32 v28, v28, v40
ds_write_b32 v30, v28 offset:{MXL+512}
s_lshl_b32 s12, {sW}, 8
s_lshl_b32 s13, {sID}, 10
s_add_u32 s12, s12, s13
s_add_u32 s12, s12, {R4S}
v_lshlrev_b32 v22, 3, v24
s_waitcnt lgkmcnt(0)
s_barrier
ds_read_b128 {vr(36)}, v29 offset:{MXL+512}
v_mov_b32 v32, v27
s_waitcnt lgkmcnt(0)
v_add_f32 v36, v36, v37
v_add_f32 v38, v38, v39
v_add_f32 v33, v36, v38
s_mov_b32 exec_hi, 0
buffer_store_dwordx2 {vr(32,2)}, v22, {srd(WS)}, s12 offen sc1
s_mov_b64 exec, -1
""")
stamp(14)
a("s_branch L_S5")
a.label("L_A_pv")
PF = 192; ACC = [160, 176, 32, 48]
a(f"""v_mul_u32_u24 v31, 272, v24
v_lshl_add_u32 v31, v25, 4, v31
v_mul_u32_u24 v27, 144, v24
v_lshl_add_u32 v27, v25, 3, v27
s_mul_i32 s13, {sW}, 4608
s_add_u32 s13, s13, 16384
v_add_u32 v27, s13, v27
v_lshrrev_b32 v28, 3, {vLane}
v_mul_u32_u24 v28, 144, v28
v_and_b32 v29, 7, {vLane}
v_lshl_add_u32 v28, v29, 4, v28
v_add_u32 v28, s13, v28
s_and_b32 s12, {sW}, 3
s_lshl_b32 s8, s73, 7
s_lshl_b32 s13, s12, 5
s_add_u32 s8, s8, s13
v_lshl_add_u32 v20, {vKg}, 2, s8
v_lshlrev_b32 v20, 13, v20
v_lshl_add_u32 v20, {vN}, 4, v20
s_lshl_b32 s75, s72, 8
s_lshl_b32 s12, s12, 13
s_add_u32 s12, s12, 98304
""")
for k in range(8):
    g, u = divmod(k, 4)
    a(f"s_add_u32 s13, s12, {k*1024}\ns_mov_b32 m0, s13\ns_add_u32 s13, s75, {(16*g+u)*8192}\nbuffer_load_dwordx4 v20, {srd(SB)}, s13 offen nt lds")
a("""s_barrier
s_barrier
""")
stamp(12)
for t in range(8):
    a(f"ds_read_b128 {vr(PF+4*t)}, v31 offset:{PL+t*32}")
def pv_mfma(mt, t):
    o = ACC[mt]; d = 32 + (mt * 8 + t) * 4
    c = "0" if t == 0 else vr(o, 16)
    a(f"v_mfma_f32_32x32x16_bf16 {vr(o,16)}, {vr(d)}, {vr(PF+4*t)}, {c}")
def epi_w(rho, k):
    mtl, g = divmod(k, 4); o = ACC[2 * rho + mtl]; r = 224 + (k % 4) * 2
    a(f"v_cvt_pk_bf16_f32 v{r}, v{o+4*g}, v{o+4*g+1}\nv_cvt_pk_bf16_f32 v{r+1}, v{o+4*g+2}, v{o+4*g+3}")
    a(f"ds_write_b64 v27, {vr(r,2)} offset:{mtl*64+g*16}")
for t in range(8):
    a(f"s_waitcnt lgkmcnt({7-t})")
    pv_mfma(0, t); pv_mfma(1, t)
    if t == opt("b3bpos", 2): a("s_barrier")
for t in range(8):
    pv_mfma(2, t); pv_mfma(3, t)
    if t in (1, 2, 3, 4):
        epi_w(0, 2 * (t - 1)); epi_w(0, 2 * (t - 1) + 1)
    if t == 5:
        a("s_waitcnt lgkmcnt(0)")
        for i in range(4): a(f"ds_read_b128 {vr(232+4*i)}, v28 offset:{i*1152}")
    if t == 7:
        for i in range(4):
            a(f"s_waitcnt lgkmcnt({3-i})")
            for c in range(4): a(f"v_bfi_b32 v{232+4*i+c}, s79, v{248+c}, v{232+4*i+c}")
            a(f"buffer_store_dwordx4 {vr(232+4*i)}, v23, {srd(WS)}, s{68+i} offen sc1")
a("s_nop 3")
stamp(13)
for k in range(8): epi_w(1, k)
a("s_waitcnt lgkmcnt(0)")
for i in range(4): a(f"ds_read_b128 {vr(64+4*i)}, v28 offset:{i*1152}")
for i in range(4):
    a(f"s_waitcnt lgkmcnt({3-i})")
    for c in range(4): a(f"v_bfi_b32 v{64+4*i+c}, s79, v{248+c}, v{64+4*i+c}")
    a(f"buffer_store_dwordx4 {vr(64+4*i)}, v23, {srd(WS)}, s{68+i} offen offset:128 sc1")
stamp(7)
a.label("L_S5")
RED5 = 65536; RED5b = 81920
a(f"""s_mul_i32 s13, s74, {R4ST}
s_lshl_b32 s14, {sW}, 12
s_add_u32 s13, s13, s14
s_add_u32 s13, s13, {R4}
s_lshl_b32 s12, {sW}, 14
s_lshl_b32 s14, s73, 8
s_add_u32 s12, s12, s14
s_lshl_b32 s14, s72, 3
s_add_u32 s12, s12, s14
s_add_u32 s12, s12, {R4S}
v_lshlrev_b32 v21, 10, {vN}
v_lshlrev_b32 v22, 3, {vN}
s_lshl_b32 s14, {sW}, 7
s_add_u32 s14, s14, {WTL}
v_add_u32 v22, s14, v22
v_lshlrev_b32 v29, 3, {vLane}
s_lshr_b32 s14, {sW}, 2
s_lshl_b32 s14, s14, 9
v_add_u32 v29, s14, v29
s_and_b32 s14, {sW}, 3
s_lshl_b32 s14, s14, 4
v_add_u32 v35, s14, {vKg}
v_lshlrev_b32 v35, 2, v35
v_cmp_gt_u32 vcc, 8, {vN}
v_mov_b32 v36, 0x03020302
v_mov_b32 v37, 0x01000100
v_cndmask_b32 v36, v36, v37, vcc
s_lshl_b32 s14, {sW}, 6
v_lshlrev_b32 v30, 4, v0
v_lshrrev_b32 v27, 3, {vN}
v_lshlrev_b32 v27, 12, v27
v_and_b32 v28, 3, {vN}
v_lshl_add_u32 v27, v28, 10, v27
v_bfe_u32 v28, {vN}, 2, 1
v_lshl_add_u32 v27, v28, 9, v27
v_and_b32 v28, 1, {vKg}
v_lshl_add_u32 v27, v28, 8, v27
v_lshrrev_b32 v28, 1, {vKg}
v_lshl_add_u32 v27, v28, 4, v27
s_add_u32 s14, s14, {RED5}
v_add_u32 v27, s14, v27
v_add_u32 v30, {RED5}, v30
""")
a(f"s_waitcnt vmcnt({0 if opt('ackwait', 1) else 8})")
a("s_barrier")
if opt("s5delay", 0): a(f"s_sleep {opt('s5delay', 0)}")
S5L = [f"buffer_load_dwordx4 {vr(96+4*u)}, v26, {srd(WS)}, s13 offen offset:{u*1024} sc1" for u in range(4)]
STL5 = f"buffer_load_dwordx2 {vr(32,2)}, v21, {srd(WS)}, s12 offen sc1"
a(f"s_mov_b64 exec, 0xffff\n{STL5}\ns_mov_b64 exec, -1")
for l in S5L: a(l)
a(f"s_and_b32 s14, {sW}, 3\ns_lshl_b32 s14, s14, 13\ns_add_u32 s14, s14, 98304\nv_add_u32 v31, s14, v26")
for k in range(8): a(f"ds_read_b128 {vr(192+4*k)}, v31 offset:{k*1024}")
a("s_mov_b64 exec, 0xffff")
gather("L_S5stat", [STL5], [32, 33], "v28", first_issued=True, first_wait=4, sleep=0)
stamp(10)
a(f"""s_mov_b64 exec, 0xffff
ds_write_b64 v22, {vr(32,2)}
s_mov_b64 exec, -1
s_waitcnt lgkmcnt(0)
s_barrier
ds_read_b64 {vr(32,2)}, v29 offset:{WTL}
s_waitcnt lgkmcnt(0)
v_mov_b32 v34, v32""")
allreduce("v_max_f32", "v34", "v37")
a("v_sub_f32 v32, v32, v34\nv_exp_f32 v32, v32\ns_nop 0\nv_mul_f32 v33, v33, v32")
allreduce("v_add_f32", "v33", "v37")
a(f"""v_rcp_f32 v33, v33
s_nop 0
v_mul_f32 v32, v32, v33
v_cvt_pk_bf16_f32 v33, v32, v32
v_and_b32 v34, 0xffff0000, v33
v_sub_f32 v34, v32, v34
v_cvt_pk_bf16_f32 v33, v32, v34
s_nop 0
""")
for u in range(4): a(f"ds_bpermute_b32 v{16+u}, v35, v33 offset:{u*16}")
a("s_waitcnt lgkmcnt(0)")
for u in range(4): a(f"v_perm_b32 v{16+u}, v{16+u}, v{16+u}, v36")
for u in range(4):
    for t in range(4):
        a(f"v_and_b32 v{80+4*u+t}, v{16+u}, v{MK[t]}")
a("s_mov_b32 s5, 0\ns_mov_b32 s6, 15")
a.label("L_S5chk")
a("s_waitcnt vmcnt(0)\ns_mov_b32 s7, 0")
for u in range(4):
    b = 96 + 4 * u
    a(f"""v_xor_b32 v28, v{b}, v248
    v_xor_b32 v31, v{b+1}, v249
    v_xor_b32 v21, v{b+2}, v250
    v_xor_b32 v22, v{b+3}, v251
    v_or3_b32 v28, v28, v31, v21
    v_or_b32 v28, v28, v22
    v_and_b32 v28, s79, v28
    v_cmp_ne_u32 vcc, 0, v28
    s_cbranch_vccz L_S5ok{u}
    {S5L[u]}
    s_mov_b32 s7, 1""")
    a.label(f"L_S5ok{u}")
a("""s_add_u32 s5, s5, 1
s_cmp_gt_u32 s5, 200000
s_cbranch_scc1 L_S5done
s_cmp_eq_u32 s7, 1
s_cbranch_scc1 L_S5chk""")
a.label("L_S5done")
stamp(8)
for u in range(4):
    c = "0" if u == 0 else vr(32)
    a(f"v_mfma_f32_16x16x32_bf16 {vr(32)}, {vr(80+4*u)}, {vr(96+4*u)}, {c}")
a(f"""s_nop 7
ds_write_b128 v30, {vr(32)}
s_waitcnt lgkmcnt(0)
s_barrier
s_cmp_ge_u32 {sW}, 4
s_cbranch_scc1 L_S5_b6
ds_read_b128 {vr(40)}, v27
ds_read_b128 {vr(44)}, v27 offset:32
s_waitcnt lgkmcnt(0)
""")
sum8(list(range(40, 48)))
for i in range(8): a(f"v_cvt_pk_bf16_f32 v{40+i}, v{40+i}, v{40+i}")
diag_mfma([(40 + k, 192 + 4 * k) for k in range(8)], 32)
a(f"s_nop 7\nds_write_b128 v30, {vr(32)} offset:{RED5b-RED5}\ns_waitcnt lgkmcnt(0)")
a.label("L_S5_b6")
a(f"s_barrier\ns_cmp_lg_u32 {sW}, 0\ns_cbranch_scc1 L_S9")
dlayout_off("v27", "v28", 256, 2)
a(f"s_lshl_b32 s12, s74, 9\ns_add_u32 s12, s12, {R5}")
reduce_b128("v30", 4, RED5b - RED5, 64, 32)
a(f"""v_cvt_pk_bf16_f32 v32, v32, v33
v_cvt_pk_bf16_f32 v33, v34, v35
buffer_store_dwordx2 {vr(32,2)}, v27, {srd(WS)}, s12 offen sc1
""")
stamp(9)
a.label("L_S9")
if opt("nolate", 0): a("s_branch L_fin")
a(f"s_cmp_ge_u32 {sID}, 80\ns_cbranch_scc1 L_fin\ns_cmp_lg_u32 {sW}, 1\ns_cbranch_scc1 L_fin")
mksrd(SC, pOUT, 2560)
a(f"""
s_mov_b32 s12, {sID}                ; unit
s_lshl_b32 s13, s12, 6
s_add_u32 s13, s13, {R7}
s_add_u32 s14, s13, {16*5120}
s_add_u32 s15, s13, {32*5120}
v_lshrrev_b32 v27, 2, {vLane}       ; pg
v_and_b32 v28, 3, {vLane}
v_mul_u32_u24 v29, 5120, v27
v_lshl_add_u32 v29, v28, 4, v29
v_add_u32 v30, {48*5120}, v29
v_cmp_gt_u32 vcc, {NFFN-48}, v27
v_mov_b32 v31, 0x7fffff00
s_nop 0
v_cndmask_b32 v30, v31, v30, vcc
s_mov_b64 exec, 1
""")
gather("L_S9gate", [f"buffer_load_dword v32, v29, {srd(WS)}, s13 offen sc1"], [32], "v31", sleep=2)
gather("L_S9data", [f"buffer_load_dwordx4 {vr(32)}, v29, {srd(WS)}, s13 offen sc1", f"buffer_load_dwordx4 {vr(36)}, v29, {srd(WS)}, s14 offen sc1",
                    f"buffer_load_dwordx4 {vr(40)}, v29, {srd(WS)}, s15 offen sc1", f"buffer_load_dwordx4 {vr(44)}, v30, {srd(WS)}, s13 offen sc1"],
       list(range(32, 48)), "v31", sleep=0)
stamp(13)
a("""v_pk_add_f32 v[32:33], v[32:33], v[36:37]
v_pk_add_f32 v[34:35], v[34:35], v[38:39]
v_pk_add_f32 v[40:41], v[40:41], v[44:45]
v_pk_add_f32 v[42:43], v[42:43], v[46:47]
v_pk_add_f32 v[32:33], v[32:33], v[40:41]
v_pk_add_f32 v[34:35], v[34:35], v[42:43]""")
for r in (4, 8):
    a("s_nop 1")
    for i in range(4):
        a(f"v_add_f32_dpp v{32+i}, v{32+i}, v{32+i} row_ror:{r} row_mask:0xf bank_mask:0xf")
for sw in ("v_permlane16_swap_b32", "v_permlane32_swap_b32"):
    for i in range(4): a(f"v_mov_b32 v{36+i}, v{32+i}")
    a("s_nop 0")
    for i in range(4): a(f"{sw} v{32+i}, v{36+i}")
    a("s_nop 0")
    for i in range(4): a(f"v_add_f32 v{32+i}, v{32+i}, v{36+i}")
a(f"""v_cvt_pk_bf16_f32 v32, v32, v33
v_cvt_pk_bf16_f32 v33, v34, v35
; L = 4*(u%16)+q4 : rgp = (u%16)>>2, n' = 4*(u&3)+q4 ; byte = b*1280 + nb*256 + n'*16 + (rgp&1)*8
s_lshr_b32 s13, s12, 4
s_lshl_b32 s13, s13, 8
s_bfe_u32 s14, s12, 0x10003
s_mul_i32 s14, s14, 1280
s_add_u32 s13, s13, s14
s_bfe_u32 s14, s12, 0x10002
s_lshl_b32 s14, s14, 3
s_add_u32 s13, s13, s14
s_and_b32 s14, s12, 3
s_lshl_b32 s14, s14, 6
s_add_u32 s13, s13, s14
v_lshlrev_b32 v28, 4, v28
s_mov_b64 exec, 15
buffer_store_dwordx2 {vr(32,2)}, v28, {srd(SC)}, s13 offen
s_cmp_lg_u32 s12, 0
s_cbranch_scc1 L_noep
s_mov_b64 exec, 1
v_mov_b32 v34, {sN}
v_mov_b32 v35, {EPOCH}
buffer_store_dword v34, v35, {srd(WS)}, 0 offen
""")
a.label("L_noep")
a("s_mov_b64 exec, -1\ns_branch L_fin")

a.label("L_F")
ACT = 0; RED = 8192; MISC = 16384; UKL = 32768
FL1 = FL2 + 0x2000
a(f"s_sub_u32 s10, {sID}, 128")
a.label("L_F_s2")
if opt("fwait", 1) == 1: get_tag()
if opt("fwait", 1) == 2:
    a("s_bfe_u32 s12, s10, 0x20003\ns_cmp_eq_u32 s12, 1\ns_cbranch_scc1 L_nofw")
    get_tag()
    a.label("L_nofw")
mksrd(SA, pWQ, 640 * 8192)
mksrd(SB, pWUK, 512 * 8192)
a(f"""
s_and_b32 s11, s10, 7
s_lshl_b32 s11, s11, 2
s_bfe_u32 s12, s10, 0x20003
s_xor_b32 s12, s12, {opt("hx", 0)}
s_add_u32 s11, s11, s12             ; h
s_lshr_b32 s12, s10, 5              ; r
s_lshl_b32 s14, s11, 8
s_cmp_ge_u32 {sW}, 5
s_cbranch_scc1 L_F_b0
s_mul_i32 s13, s12, 160
s_lshl_b32 s15, {sW}, 5
s_add_u32 s13, s13, s15             ; rbase
v_lshl_add_u32 v24, {vKg}, 2, s13
v_lshlrev_b32 v25, 13, v24
v_lshl_add_u32 v25, {vN}, 4, v25
""")
for k in range(8):
    g, u = divmod(k, 4)
    a(f"s_add_u32 s15, s14, {(16*g+u)*8192}\nbuffer_load_dwordx4 {vr(64+4*k)}, v25, {srd(SA)}, s15 offen nt")
UKF = 1
S3X = opt("s3x", 2)
a("s_branch L_F_h1")
a.label("L_F_b0")
a(f"""s_sub_u32 s15, {sW}, 5
s_lshl_b32 s8, s15, 10
s_add_u32 s8, s8, {UKL}
s_lshl_b32 s9, s12, 20
s_lshl_b32 s13, s15, 15
s_add_u32 s9, s9, s13
s_xor_b32 s13, s14, {S3X*256}
s_add_u32 s9, s9, s13
v_xor_b32 v26, {vKg}, {vN}
v_lshlrev_b32 v26, 4, v26
v_lshl_add_u32 v26, {vKg}, 13, v26
""")
for k in range(11):
    if k == 10: a(f"s_cmp_eq_u32 {sW}, 7\ns_cbranch_scc1 L_F_ukd")
    a(f"""s_add_u32 s13, s15, {3*k}
    s_and_b32 s13, s13, 3
    s_lshl_b32 s13, s13, 6
    v_xor_b32 v{27+k%2}, s13, v26
    s_add_u32 s13, s8, {k*3072}
    s_mov_b32 m0, s13
    s_add_u32 s13, s9, {k*3*32768}
    buffer_load_dwordx4 v{27+k%2}, {srd(SB)}, s13 offen nt lds""")
a.label("L_F_ukd")
a(f"""s_mul_i32 s15, s10, 6144
s_add_u32 s15, s15, {R5}
s_min_u32 s15, s15, {SMALL1-6144}
v_subrev_u32 v26, 320, v0
v_lshlrev_b32 v26, 4, v26
v_mov_b32 v32, -1
v_mov_b32 v33, -1
v_mov_b32 v34, -1
v_mov_b32 v35, -1
buffer_store_dwordx4 v[32:35], v26, {srd(WS)}, s15 offen sc1
buffer_store_dwordx4 v[32:35], v26, {srd(WS)}, s15 offen offset:3072 sc1""")
get_tag()
a("s_barrier\ns_waitcnt vmcnt(0)\ns_branch L_F_s3")
a.label("L_F_h1")
get_tag()
if opt("h2l", 1):
    a(f"""s_cmp_lg_u32 {sW}, 0
    s_cbranch_scc1 L_nopw
    s_not_b32 s15, {sN}
    v_mov_b32 v32, s15
    v_mov_b32 v33, s15
    v_mov_b32 v34, s15
    v_mov_b32 v35, s15
    s_lshl_b32 s15, s11, 2
    s_add_u32 s15, s15, s12
    s_lshl_b32 s15, s15, 10
    s_add_u32 s15, s15, {R2L}
    v_lshlrev_b32 v26, 4, {vLane}
    buffer_store_dwordx4 v[32:35], v26, {srd(WS)}, s15 offen""")
    a.label("L_nopw")
H1S = 24576
a(f"""; lane -> p = kg (+4), b = vN>>3, piece = vN&7 ; addr = (p*2+b)*2560 + rbase*4 + piece*16
v_mul_u32_u24 v26, 5120, {vKg}
v_lshrrev_b32 v27, 3, {vN}
v_mul_u32_u24 v27, 2560, v27
v_and_b32 v28, 7, {vN}
v_lshlrev_b32 v28, 4, v28
v_add3_u32 v26, v26, v27, v28
s_lshl_b32 s15, s13, 2
s_add_u32 s15, s15, {R1}
s_and_b32 s9, s10, {NC1-1}
s_mul_i32 s9, s9, 40960
s_add_u32 s15, s15, s9
s_add_u32 s9, s15, 20480
v_lshlrev_b32 v30, 4, v0
s_lshl_b32 s8, {sW}, 9
s_add_u32 s8, s8, {H1S}
v_lshlrev_b32 v27, 4, {vN}
v_add_u32 v27, s8, v27
v_lshrrev_b32 v31, 3, {vN}
v_lshlrev_b32 v31, 7, v31
v_lshl_add_u32 v31, {vKg}, 4, v31
v_add_u32 v31, s8, v31
s_waitcnt vmcnt({opt("h1wait", 1)})
""")
gather("L_H1", [f"buffer_load_dwordx4 {vr(32)}, v26, {srd(WS)}, s15 offen sc1", f"buffer_load_dwordx4 {vr(36)}, v26, {srd(WS)}, s9 offen sc1"],
       [33, 35, 37, 39], "v28", mode="tag", vt2="v29", sleep=1)
stamp(11)
a("""s_mov_b32 s8, 0x3f80
s_mov_b32 s9, 0x3f800000
v_lshlrev_b32 v40, 16, v32
v_and_b32 v41, 0xffff0000, v32
v_lshlrev_b32 v42, 16, v34
v_and_b32 v43, 0xffff0000, v34
v_dot2c_f32_bf16 v40, s8, v36
v_dot2c_f32_bf16 v41, s9, v36
v_dot2c_f32_bf16 v42, s8, v38
v_dot2c_f32_bf16 v43, s9, v38
s_nop 1""")
for sw in ("v_permlane16_swap_b32", "v_permlane32_swap_b32"):
    for i in range(4): a(f"v_mov_b32 v{44+i}, v{40+i}")
    a("s_nop 0")
    for i in range(4): a(f"{sw} v{40+i}, v{44+i}")
    a("s_nop 0")
    for i in range(4): a(f"v_add_f32 v{40+i}, v{40+i}, v{44+i}")
for i in range(4): a(f"v_cvt_pk_bf16_f32 v{40+i}, v{40+i}, v{40+i}")
a(f"""ds_write_b128 v27, {vr(40)}
s_waitcnt lgkmcnt(0)
ds_read_b128 {vr(40)}, v31
ds_read_b128 {vr(44)}, v31 offset:64
s_waitcnt lgkmcnt(0)""")
diag_mfma([(40 + k, 64 + 4 * k) for k in range(8)], 32)
a(f"s_nop 7\nds_write_b128 v30, {vr(32)} offset:{RED}")
a(f"s_waitcnt lgkmcnt(0)\ns_barrier")
a(f"s_cmp_lg_u32 {sW}, 0\ns_cbranch_scc1 L_F_s3")
a(f"v_lshlrev_b32 v27, 4, {vLane}")
a(f"""s_lshl_b32 s15, s11, 2
s_add_u32 s15, s15, s12
s_lshl_b32 s15, s15, 10
s_add_u32 s15, s15, {R2}
v_mov_b32 v37, {sN}
v_mov_b32 v39, {sN}""")
reduce_b128("v30", 5, RED, 64, 32)
a(f"""v_cvt_pk_bf16_f32 v36, v32, v33
v_cvt_pk_bf16_f32 v38, v34, v35
""")
if opt("h2l", 1):
    a(f"s_add_u32 s13, s15, {R2L-R2}\nbuffer_store_dwordx4 {vr(36)}, v27, {srd(WS)}, s13 offen")
a(f"buffer_store_dwordx4 {vr(36)}, v27, {srd(WS)}, s15 offen sc1")
stamp(12)
a.label("L_F_s3")
a(f"s_xor_b32 s11, s11, {S3X}\ns_barrier\ns_cmp_lt_u32 {sW}, 4\ns_cbranch_scc1 L_S3_h2")
a(f"""v_lshrrev_b32 v24, 2, {vN}
v_lshlrev_b32 v24, 3, v24
v_and_b32 v25, 3, {vN}
v_add_u32 v24, v24, v25
v_and_b32 v25, 15, v24
v_xor_b32 v25, v25, {vKg}
v_lshlrev_b32 v25, 4, v25
v_lshl_add_u32 v25, v24, 8, v25
s_sub_u32 s8, {sW}, 4
s_lshl_b32 s8, s8, 13
s_add_u32 s8, s8, {UKL}
v_add_u32 v25, s8, v25
s_waitcnt vmcnt(0)
""")
for t in range(2):
    for s in range(4):
        k = t * 4 + s
        a(f"v_xor_b32 v26, {((4*s) ^ (4*t)) << 4}, v25\nds_read_b128 {vr(64+4*k)}, v26 offset:{t*1024}")
a(f"""v_and_b32 v26, 1, {vN}
v_mul_u32_u24 v27, 320, v26
v_lshl_add_u32 v27, {vKg}, 4, v27
v_lshlrev_b32 v28, 15, v26
v_lshl_add_u32 v28, {vKg}, 4, v28
s_lshl_b32 s14, s11, 10
s_lshl_b32 s15, s12, 8
s_add_u32 s14, s14, s15
s_sub_u32 s15, {sW}, 4
s_lshl_b32 s15, s15, 6
s_add_u32 s14, s14, s15
s_add_u32 s14, s14, {R3}
s_mov_b32 s15, 0x{f2u(128 ** -0.5 * LOG2E):08x}
s_mov_b32 s8, 0x00030003
s_mov_b32 s9, 0x00030003
s_waitcnt lgkmcnt(0)
s_barrier
""")
for s in range(4):
    a(f"ds_read_b128 {vr(40+4*s)}, v27 offset:{ACT+64*s}")
for s in range(4):
    a(f"s_waitcnt lgkmcnt({3-s})")
    for t in range(2):
        k = t * 4 + s
        c = "0" if s == 0 else vr(32 + 4 * t)
        a(f"v_mfma_f32_16x16x32_bf16 {vr(32+4*t)}, {vr(64+4*k)}, {vr(40+4*s)}, {c}")
a("s_nop 6")
for i in range(8): a(f"v_mul_f32 v{32+i}, s15, v{32+i}")
for i in range(4): a(f"v_cvt_pk_bf16_f32 v{32+i}, v{32+2*i}, v{33+2*i}")
a(f"""s_mov_b64 exec, s[8:9]
buffer_store_dwordx4 {vr(32)}, v28, {srd(WS)}, s14 offen sc1
s_mov_b64 exec, -1
""")
stamp(4)
a("s_branch L_F_late")
a.label("L_S3_h2")
a(f"""s_cmp_lg_u32 {sW}, 1
s_cbranch_scc1 L_S3_bar
v_lshlrev_b32 v26, 4, {vLane}
s_lshl_b32 s14, s11, 12
s_add_u32 s14, s14, {R2}
s_mov_b32 s8, 0x3f80
s_mov_b32 s9, 0x3f800000
""")
dlayout_off("v27", "v28", 320, 2)
if opt("h2l", 1):
    a(f"s_add_u32 s13, s14, {R2L-R2}")
    dual_gather("L_H2", [f"buffer_load_dwordx4 {vr(32+4*r)}, v26, {srd(WS)}, s13 offen offset:{r*1024} sc1" for r in range(4)],
        [f"buffer_load_dwordx4 {vr(32+4*r)}, v26, {srd(WS)}, s14 offen offset:{r*1024} sc1" for r in range(4)],
        [33 + 2 * i for i in range(8)], "v28", "v29", every=opt("every", 8))
else:
    gather("L_H2", [f"buffer_load_dwordx4 {vr(32+4*r)}, v26, {srd(WS)}, s14 offen offset:{r*1024} sc1" for r in range(4)],
       [33 + 2 * i for i in range(8)], "v28", mode="tag", vt2="v29", sleep=0)
stamp(3)
a("v_lshlrev_b32 v48, 16, v32\nv_and_b32 v49, 0xffff0000, v32\nv_lshlrev_b32 v50, 16, v34\nv_and_b32 v51, 0xffff0000, v34")
for r in range(1, 4):
    a(f"v_dot2c_f32_bf16 v48, s8, v{32+4*r}\nv_dot2c_f32_bf16 v49, s9, v{32+4*r}\nv_dot2c_f32_bf16 v50, s8, v{34+4*r}\nv_dot2c_f32_bf16 v51, s9, v{34+4*r}")
a(f"""s_nop 2
v_cvt_pk_bf16_f32 v48, v48, v49
v_cvt_pk_bf16_f32 v49, v50, v51
ds_write_b64 v27, {vr(48,2)} offset:{ACT}
s_waitcnt lgkmcnt(0)
""")
a.label("L_S3_bar")
a("s_barrier")
a.label("L_F_late")
if opt("nolate", 0): a("s_branch L_fin")
a(f"""s_sub_u32 s15, s10, 60
s_cmp_lt_u32 s15, 4
s_cbranch_scc1 L_fin
s_barrier""")
if opt("trig", 1):
    a(f"""s_cmp_ge_u32 s10, {opt("notrig", 64)}
    s_cbranch_scc1 L_late2
    s_cmp_lg_u32 {sW}, 0
    s_cbranch_scc1 L_trig_x
    s_lshl_b32 s15, s10, 6
    s_add_u32 s15, s15, {FL2}
    v_mov_b32 v26, s15
    s_mov_b64 exec, 1""")
    gather("L_trig", [f"buffer_load_dword v27, v26, {srd(WS)}, 0 offen sc1"], [27], "v27", mode="tag", sleep=4)
    a("s_barrier")
a.label("L_late2")
stamp(6)
a(f"s_cmp_ge_u32 s10, 118\ns_cbranch_scc1 L_S1bf\ns_cmp_ge_u32 s10, 64\ns_cbranch_scc1 L_FFN\ns_cmp_ge_u32 s10, 40\ns_cbranch_scc1 L_S1bh")
mksrd(SA, pWO, 4096 * 1280)
a(f"""
s_and_b32 s11, s10, 7               ; g
s_lshr_b32 s12, s10, 3              ; nb
s_lshl_b32 s13, s11, 9
s_lshl_b32 s14, {sW}, 6
s_add_u32 s13, s13, s14
v_lshl_add_u32 v24, {vKg}, 2, s13
v_mul_u32_u24 v24, 1280, v24
v_lshl_add_u32 v24, {vN}, 4, v24
s_lshl_b32 s14, s12, 8
""")
for g in range(4):
    for u in range(4):
        k = g * 4 + u
        a(f"buffer_load_dwordx4 {vr(128+4*k)}, v24, {srd(SA)}, s14 offen offset:{u*1280} nt")
    if g < 3: a("s_add_u32 s14, s14, 20480")
a(f"""v_lshrrev_b32 v26, 7, v0
v_lshlrev_b32 v27, 11, v26
v_and_b32 v28, 127, v0
v_lshl_add_u32 v27, v28, 2, v27
s_lshl_b32 s14, s11, 13
s_add_u32 s14, s14, {R5}
v_bfe_u32 v28, v0, 6, 1
v_mul_u32_u24 v28, 2112, v28
v_lshl_add_u32 v28, v26, 9, v28
v_lshl_add_u32 v28, {vLane}, 3, v28
v_lshrrev_b32 v26, 3, {vN}
v_mul_u32_u24 v26, 2112, v26
s_lshl_b32 s15, {sW}, 8
v_add_u32 v26, s15, v26
v_lshl_add_u32 v26, {vKg}, 4, v26
v_lshlrev_b32 v30, 4, v0
s_mov_b32 s8, 0x3f80
s_mov_b32 s9, 0x3f800000
s_waitcnt vmcnt(0)
""")
stamp(7)
if LATEONLY: a("s_branch L_fin")
a(f"""s_lshl_b32 s15, s10, 6
s_add_u32 s15, s15, {FL2+32}
v_mov_b32 v31, s15
s_mov_b64 exec, 1""")
gather("L_w3a", [f"buffer_load_dword v32, v31, {srd(WS)}, 0 offen sc1"], [32], "v32", mode="tag", sleep=4)
a("s_mov_b64 exec, 1")
gather("L_H5gate", [f"buffer_load_dword v32, v27, {srd(WS)}, s14 offen sc1"], [32], "v31", sleep=2)
gather("L_H5", [f"buffer_load_dword v{32+c}, v27, {srd(WS)}, s14 offen offset:{c*512} sc1" for c in range(4)], [32, 33, 34, 35], "v29", sleep=0)
stamp(8)
a("v_lshlrev_b32 v36, 16, v32\nv_and_b32 v37, 0xffff0000, v32")
for c in range(1, 4):
    a(f"v_dot2c_f32_bf16 v36, s8, v{32+c}\nv_dot2c_f32_bf16 v37, s9, v{32+c}")
a(f"""s_nop 2
v_cvt_pk_bf16_f32 v36, v36, v36
v_cvt_pk_bf16_f32 v37, v37, v37
ds_write_b64 v28, {vr(36,2)} offset:{ACT}
s_waitcnt lgkmcnt(0)
s_barrier
""")
for g in range(4): a(f"ds_read_b128 {vr(40+4*g)}, v26 offset:{ACT+64*g}")
a("s_waitcnt lgkmcnt(3)")
diag_mfma([(40 + k, 128 + 4 * k) for k in range(16)], 32,
          waits=[("s_waitcnt lgkmcnt(%d)" % (2 - k // 4)) if (k % 4 == 2 and k < 12) else None for k in range(16)])
a(f"""s_nop 7
ds_write_b128 v30, {vr(32)} offset:{RED}
s_waitcnt lgkmcnt(0)
s_barrier
s_cmp_lg_u32 {sW}, 0
s_cbranch_scc1 L_fin
""")
a(f"v_lshlrev_b32 v27, 3, {vLane}")
a(f"""s_mul_i32 s14, s11, 2560
s_lshl_b32 s15, s12, 9
s_add_u32 s14, s14, s15
s_add_u32 s14, s14, {R6}""")
reduce_b128("v30", 8, RED, 64, 32)
a(f"""v_cvt_pk_bf16_f32 v32, v32, v33
v_cvt_pk_bf16_f32 v33, v34, v35
""")
for c in range(NC6):
    a(f"buffer_store_dwordx2 {vr(32,2)}, v27, {srd(WS)}, s14 offen sc1")
    if c < NC6 - 1: a("s_add_u32 s14, s14, 20480")
stamp(9)
a("s_branch L_fin")
def s1b(ng, name):
    mksrd(SA, pWM, 640 * 7680)
    mksrd(SB, pC, 2560)
    a(f"""v_lshl_add_u32 v24, {vKg}, 2, s13
    v_lshrrev_b32 v25, 3, {vN}
    v_mul_u32_u24 v26, 1280, v25
    v_lshl_add_u32 v26, v24, 1, v26
    v_mul_u32_u24 v27, 7680, v24
    v_lshl_add_u32 v27, {vN}, 4, v27
    s_lshl_b32 s14, s11, 8
    s_add_u32 s14, s14, 2560
    """)
    for g in range(ng):
        a(f"buffer_load_dwordx2 {vr(40+2*g,2)}, v26, {srd(SB)}, 0 offen offset:{g*32}")
    for k in range(4 * ng):
        g, u = divmod(k, 4)
        a(f"s_add_u32 s15, s14, {(g*16+u)*7680}\nbuffer_load_dwordx4 {vr(128+4*k)}, v27, {srd(SA)}, s15 offen nt")
    a(f"s_waitcnt vmcnt({4*ng})")
    for g in range(ng): silu_c4(40 + 2 * g, 64 + 4 * g, "v24")
    a("v_lshlrev_b32 v30, 4, v0")
    diag_mfma([(64 + k, 128 + 4 * k) for k in range(4 * ng)], 32, waits=[f"s_waitcnt vmcnt({4*ng-1-k})" for k in range(4 * ng)])
    a(f"s_nop 7\nds_write_b128 v30, {vr(32)} offset:{RED}\ns_waitcnt lgkmcnt(0)")
a.label("L_S1bh")
a(f"""s_sub_u32 s11, s10, 40
s_and_b32 s12, s11, 1               ; kh
s_lshr_b32 s11, s11, 1
s_lshl_b32 s87, s11, 10
s_add_u32 s88, s87, {R8B}
s_add_u32 s87, s87, {R8+5120}
s_cmp_eq_u32 s12, 1
s_cselect_b32 s87, s88, s87
s_add_u32 s11, s11, 5               ; q
s_mul_i32 s13, s12, 320
s_lshl_b32 s15, {sW}, 6
s_add_u32 s13, s13, s15
v_lshlrev_b32 v30, 4, v0
s_cmp_ge_u32 {sW}, 5
s_cbranch_scc1 L_S1b_z
""")
s1b(4, "h")
a("s_branch L_S1b_fin")
a.label("L_S1b_z")
a(f"v_mov_b32 v32, 0\nv_mov_b32 v33, 0\nv_mov_b32 v34, 0\nv_mov_b32 v35, 0\nds_write_b128 v30, {vr(32)} offset:{RED}\ns_waitcnt lgkmcnt(0)\ns_branch L_S1b_fin")
a.label("L_S1bf")
a(f"""s_sub_u32 s11, s10, 118
s_add_u32 s12, s11, 10
s_cmp_lt_u32 s11, 5
s_cselect_b32 s11, s11, s12         ; q
s_lshl_b32 s87, s11, 10
s_add_u32 s87, s87, {R8}
s_mul_i32 s13, {sW}, 80
""")
s1b(5, "f")
a.label("L_S1b_fin")
a(f"""s_barrier
s_cmp_lg_u32 {sW}, 0
s_cbranch_scc1 L_fin
s_lshl_b32 s15, s10, 6
s_add_u32 s15, s15, {FL2+32}
v_mov_b32 v31, s15
s_mov_b64 exec, 1""")
gather("L_w3b", [f"buffer_load_dword v32, v31, {srd(WS)}, 0 offen sc1"], [32], "v32", mode="tag", sleep=4)
a(f"v_lshlrev_b32 v27, 4, {vLane}")
reduce_b128("v30", 8, RED, 64, 32)
a(f"buffer_store_dwordx4 {vr(32)}, v27, {srd(WS)}, s87 offen sc1")
stamp(9)
a("s_branch L_fin")
a.label("L_FFN")
mksrd(SA, pWG, 640 * 3456)
mksrd(SB, pWU, 640 * 3456)
mksrd(SC, pWD, 1728 * 1280)
mksrd(SD, pX, 2560)
GW = 64
DW = 104
M2 = [16, 17]
AST = 2624
STL = MISC + 5120; ACT2 = MISC + 6144
a(f"""
s_sub_u32 s11, s10, {F_FFN0}        ; fb
s_cmp_lg_u32 {sW}, 4
s_cbranch_scc1 L_FFN_np
s_setprio 2""")
a.label("L_FFN_np")
a(f"""s_mul_i32 s13, {sW}, 80
v_lshl_add_u32 v24, {vKg}, 2, s13
v_lshrrev_b32 v25, 3, {vN}
v_add_u32 v24, v24, v25             ; row (e=0,q=0)
v_mul_u32_u24 v24, 3456, v24
v_and_b32 v25, 3, {vN}
v_lshl_add_u32 v24, v25, 4, v24
s_lshl_b32 s14, s11, 6
s_mov_b32 s8, 0x0f0f0f0f
s_mov_b32 s9, 0x0f0f0f0f
s_mov_b64 exec, s[8:9]
""")
for half, sr in ((0, SA), (1, SB)):
    if half: a("s_not_b64 exec, exec")
    for k in range(10):
        q, e = divmod(k, 2)
        a(f"s_add_u32 s15, s14, {(16*q+2*e)*3456}\nbuffer_load_dwordx4 {vr(GW+4*k)}, v24, {srd(sr)}, s15 offen nt")
a(f"""s_mov_b64 exec, -1
v_and_b32 v24, 1, {vN}
v_lshlrev_b32 v24, 4, v24
v_mov_b32 v25, 0xffff
v_lshlrev_b32 v24, v24, v25
v_and_b32 v25, 2, {vN}
v_cmp_eq_u32 vcc, 0, v25
s_nop 1
v_cndmask_b32 v{M2[0]}, 0, v24, vcc
v_cndmask_b32 v{M2[1]}, v24, 0, vcc
v_lshlrev_b32 v20, 3, v0            ; R6 offset
v_add_u32 v27, 5120, v20
v_lshlrev_b32 v30, 4, v0
v_lshrrev_b32 v23, 2, {vN}
v_and_b32 v23, 1, v23
v_mul_u32_u24 v23, {AST}, v23
s_mul_i32 s15, {sW}, 320
v_lshl_add_u32 v24, {vKg}, 4, s15
v_add_u32 v23, v23, v24
v_lshrrev_b32 v29, 5, {vLane}       ; b (lane>>5)
v_lshlrev_b32 v28, 8, v29
v_bfe_u32 v24, {vLane}, 2, 1
v_lshl_add_u32 v28, v24, 7, v28
v_bfe_u32 v24, {vLane}, 3, 2
v_lshl_add_u32 v28, v24, 4, v28
v_and_b32 v24, 3, {vLane}
v_lshl_add_u32 v28, v24, 2, v28
v_add_u32 v28, {RED}, v28
v_mul_u32_u24 v22, 192, v29
v_and_b32 v25, 31, {vLane}
v_lshl_add_u32 v22, v25, 2, v22
s_cmp_ge_u32 {sW}, 5
s_cbranch_scc1 L_FFN_x1
s_lshl_b32 s13, s11, 5
v_lshl_add_u32 v24, {vKg}, 2, s13
v_mul_u32_u24 v24, 1280, v24
v_lshl_add_u32 v24, {vN}, 4, v24
s_lshl_b32 s14, {sW}, 8
s_add_u32 s15, s14, 20480
""")
for k in range(8):
    g, u = divmod(k, 4)
    a(f"buffer_load_dwordx4 {vr(DW+4*k)}, v24, {srd(SC)}, s{14+g} offen offset:{u*1280} nt")
dlayout_off("v18", "v19", 1280, 2)
dlayout_off("v21", "v19", AST, 4)
a(f"""buffer_load_dwordx2 {vr(48,2)}, v18, {srd(SD)}, s14 offen
s_lshl_b32 s14, {sW}, 9
v_add_u32 v21, s14, v21
s_setprio 0
""")
a.label("L_FFN_x1")
def exch():
    for k in range(10):
        d = GW + 4 * k
        a(f"""v_mov_b32 v24, v{d+2}
        v_mov_b32 v25, v{d+3}
        v_mov_b32_dpp v{d+2}, v{d} row_ror:8 row_mask:0xf bank_mask:0x3
        v_mov_b32_dpp v{d+3}, v{d+1} row_ror:8 row_mask:0xf bank_mask:0x3
        v_mov_b32_dpp v{d}, v24 row_ror:8 row_mask:0xf bank_mask:0xc
        v_mov_b32_dpp v{d+1}, v25 row_ror:8 row_mask:0xf bank_mask:0xc""")
a("s_waitcnt vmcnt(0)")
stamp(5)
exch()
a(f"""s_cmp_ge_u32 {sW}, 5
s_cbranch_scc1 L_FFN_b1
s_lshl_b32 s15, s10, 6
s_add_u32 s15, s15, {FL2+32}
v_mov_b32 v31, s15
s_mov_b32 s13, {R8}
s_mov_b32 s12, {R8+5120}
s_mov_b32 s14, {R8+10240}
s_mov_b32 s9, {R8+15360}
s_mov_b32 s8, {R8B}
s_mov_b32 s15, {R8B+5120}
s_mov_b64 exec, 1""")
gather("L_w3c", [f"buffer_load_dword v32, v31, {srd(WS)}, 0 offen sc1"], [32], "v32", mode="tag", sleep=4)
R8L = [f"buffer_load_dwordx4 {vr(208)}, v30, {srd(WS)}, s13 offen sc1",
    f"buffer_load_dwordx4 {vr(212)}, v30, {srd(WS)}, s12 offen sc1",
    f"buffer_load_dwordx4 {vr(216)}, v30, {srd(WS)}, s14 offen sc1",
    f"buffer_load_dwordx4 {vr(220)}, v30, {srd(WS)}, s9 offen sc1",
    f"buffer_load_dwordx4 {vr(224)}, v30, {srd(WS)}, s8 offen sc1",
    f"buffer_load_dwordx4 {vr(228)}, v30, {srd(WS)}, s15 offen sc1"]
gather("L_R8", R8L, list(range(208, 232)), "v31", sleep=6)
for i in range(8): a(f"v_add_f32 v{212+i}, v{212+i}, v{224+i}")
a(f"""v_lshlrev_b32 v52, 16, v48
v_and_b32 v53, 0xffff0000, v48
v_lshlrev_b32 v54, 16, v49
v_and_b32 v55, 0xffff0000, v49""")
for i in range(4): a(f"v_add_f32 v{216+i}, 1.0, v{216+i}")
stamp(7)
a(f"""s_mov_b32 s8, 0x3f80
s_mov_b32 s9, 0x3f800000
s_and_b32 s13, s11, {NC6-1}
s_mul_i32 s13, s13, 20480
s_add_u32 s13, s13, {R6}
s_add_u32 s12, s13, {4*2560}
v_lshrrev_b32 v19, 5, v0
v_lshlrev_b32 v19, 3, v19
v_lshlrev_b32 v18, 3, v29
s_mov_b64 exec, 1
""")
gather("L_H6gate", [f"buffer_load_dword v32, v20, {srd(WS)}, s13 offen sc1"], [32], "v33", sleep=2)
def H6L(b):
    r = []
    for g in range(8):
        if g % 4 < 2: r.append(f"buffer_load_dwordx2 {vr(b+2*g,2)}, v20, {srd(WS)}, s{13 if g < 4 else 12} offen offset:{(g%4)*2560} sc1")
        else: r.append(f"buffer_load_dwordx2 {vr(b+2*g,2)}, v27, {srd(WS)}, s{13 if g < 4 else 12} offen offset:{(g%4-2)*2560} sc1")
    return r
gather("L_H6", H6L(32), list(range(32, 48)), "v31", sleep=0)
stamp(8)
a("v_lshlrev_b32 v56, 16, v32\nv_and_b32 v57, 0xffff0000, v32\nv_lshlrev_b32 v58, 16, v33\nv_and_b32 v59, 0xffff0000, v33")
for g in range(1, 8):
    a(f"v_dot2c_f32_bf16 v56, s8, v{32+2*g}\nv_dot2c_f32_bf16 v57, s9, v{32+2*g}\nv_dot2c_f32_bf16 v58, s8, v{33+2*g}\nv_dot2c_f32_bf16 v59, s9, v{33+2*g}")
a("s_nop 2")
for i in range(4): a(f"v_fmac_f32 v{52+i}, v{208+i}, v{56+i}")
a("""v_add_f32 v40, v52, v53
v_mul_f32 v41, v52, v52
v_add_f32 v42, v54, v55
v_fmac_f32 v41, v53, v53
v_add_f32 v40, v40, v42
v_fmac_f32 v41, v54, v54
v_fmac_f32 v41, v55, v55
""")
for r in (8, 4, 2, 1):
    a(f"s_nop 0\nv_add_f32_dpp v40, v40, v40 row_ror:{r} row_mask:0xf bank_mask:0xf\nv_add_f32_dpp v41, v41, v41 row_ror:{r} row_mask:0xf bank_mask:0xf")
a(f"""v_mov_b32 v42, v40
v_mov_b32 v43, v41
s_nop 0
v_permlane16_swap_b32 v40, v42
v_permlane16_swap_b32 v41, v43
s_nop 0
v_add_f32 v40, v40, v42
v_add_f32 v41, v41, v43
ds_write_b64 v19, {vr(40,2)} offset:{STL}
s_waitcnt lgkmcnt(0)
s_barrier""")
for i in range(5): a(f"ds_read_b64 {vr(152+2*i,2)}, v18 offset:{STL+16*i}")
a(f"""s_waitcnt lgkmcnt(0)
v_pk_add_f32 v[152:153], v[152:153], v[154:155]
v_pk_add_f32 v[156:157], v[156:157], v[158:159]
v_pk_add_f32 v[152:153], v[152:153], v[160:161]
v_pk_add_f32 v[152:153], v[152:153], v[156:157]
v_mul_f32 v152, 0x{f2u(1.0/640):08x}, v152      ; mean
v_mul_f32 v153, 0x{f2u(1.0/640):08x}, v153
v_fma_f32 v153, -v152, v152, v153
v_max_f32 v153, 0, v153
v_add_f32 v153, 0x{f2u(1e-5):08x}, v153
v_rsq_f32 v153, v153""")
for i in range(4): a(f"v_sub_f32 v{56+i}, v{52+i}, v152")
for i in range(4): a(f"v_mul_f32 v{56+i}, v{56+i}, v153")
for i in range(4): a(f"v_fma_f32 v{56+i}, v{56+i}, v{216+i}, v{212+i}")
for i in range(4): a(f"v_cvt_pk_bf16_f32 v{56+i}, v{56+i}, v{56+i}")
a(f"ds_write_b128 v21, {vr(56)} offset:{ACT}\ns_waitcnt lgkmcnt(0)\ns_branch L_FFN_main")
a.label("L_FFN_b1")
a("s_barrier")
a.label("L_FFN_main")
a("s_barrier")
for q in range(5): a(f"ds_read_b128 {vr(224+4*q)}, v23 offset:{ACT+64*q}")
a("s_waitcnt lgkmcnt(4)")
diag_mfma([((224 + 2 * k, 225 + 2 * k), GW + 4 * k) for k in range(10)], 32, masks=M2,
          waits=[("s_waitcnt lgkmcnt(%d)" % (3 - k // 2)) if (k % 2 == 0 and k < 8) else None for k in range(10)])
a(f"""v_lshrrev_b32 v24, 3, {vN}
v_mul_u32_u24 v24, 192, v24
v_lshl_add_u32 v24, {vKg}, 4, v24
s_cmp_eq_u32 s11, 0
s_cselect_b32 s15, 1.0, 0
s_mul_i32 s14, s11, 5120
s_add_u32 s14, s14, {R7}
s_nop 0
ds_write_b128 v30, {vr(32)} offset:{RED}
v_mul_f32 v52, s15, v52
v_mul_f32 v53, s15, v53
v_mul_f32 v54, s15, v54
v_mul_f32 v55, s15, v55
s_waitcnt lgkmcnt(0)
s_barrier
s_cmp_lg_u32 {sW}, 7
s_cbranch_scc1 L_FFN_b3
""")
for w in range(8):
    a(f"ds_read_b32 v{136+2*w}, v28 offset:{w*1024}\nds_read_b32 v{137+2*w}, v28 offset:{w*1024+64}")
a(f"""s_waitcnt lgkmcnt(8)
v_pk_add_f32 v[136:137], v[136:137], v[138:139]
v_pk_add_f32 v[140:141], v[140:141], v[142:143]
v_pk_add_f32 v[136:137], v[136:137], v[140:141]
s_waitcnt lgkmcnt(0)
v_pk_add_f32 v[144:145], v[144:145], v[146:147]
v_pk_add_f32 v[148:149], v[148:149], v[150:151]
v_pk_add_f32 v[144:145], v[144:145], v[148:149]
v_pk_add_f32 v[32:33], v[136:137], v[144:145]""")
silu("v32", "v34")
a(f"""v_mul_f32 v32, v32, v33
v_cvt_pk_bf16_f32 v32, v32, v32
ds_write_b32 v22, v32 offset:{ACT2}
s_waitcnt lgkmcnt(0)
""")
a.label("L_FFN_b3")
a(f"""s_barrier
s_cmp_ge_u32 {sW}, 5
s_cbranch_scc1 L_fin
ds_read_b128 {vr(224)}, v24 offset:{ACT2}
ds_read_b128 {vr(228)}, v24 offset:{ACT2+64}
s_waitcnt lgkmcnt(1)
""")
diag_mfma([(224 + k, DW + 4 * k) for k in range(8)], 32, waits=[None, None, "s_waitcnt lgkmcnt(0)"] + [None] * 5)
a("s_nop 7")
for i in range(4): a(f"v_fmac_f32 v{52+i}, v{32+i}, v{220+i}")
a(f"buffer_store_dwordx4 {vr(52)}, v30, {srd(WS)}, s14 offen sc1")
stamp(9)

a.label("L_fin")
if STAMPS:
    stamp(15)
    a(f"""s_lshl_b32 s12, {sID}, 3
    s_add_u32 s12, s12, {sW}
    s_lshl_b32 s12, s12, 6
    s_add_u32 s12, s12, {STMP}
    v_lshlrev_b32 v24, 2, {vLane}
    s_mov_b64 exec, 0xffff
    buffer_store_dword {vST}, v24, {srd(WS)}, s12 offen""")
a.label("L_end")
a("s_endpgm")
a.label("L_code_end")

header = open("adaLN_cond__compressed_kv_cla__swiglu_ffn__decode.s.ref").read().split("; Override launch")[0]
open(OUT, "w").write(wrap(a.text(), 256, 512, 163840, header=header))
```

```python
import sys, math, struct
from asmgen import Asm, wrap

STAMPS = "--stamps" in sys.argv
OUT = [x for x in sys.argv[1:] if not x.startswith("--")]
OUT = OUT[0] if OUT else "k.s"
def opt(name, default):
    for x in sys.argv:
        if x.startswith("--" + name + "="): return int(x.split("=")[1])
    return default

EPOCH = 0x800
R1   = 0x600000
R2   = 0x10000
SMALL0 = 0x30000
R3   = 0x30000
R4S  = 0xAC000
R5   = 0x48000
R6   = 0xCC000
R8   = 0x60000
R7   = 0x68000
SMALL1 = 0xF4000
FL2  = 0xF8000
R2L  = 0x680000
R5L  = 0x6C0000
R4   = 0x100000
R4ST = 32768 + 256
STMP = 0x800000
WS_SIZE = 268435456
NFFN = 54
NC6 = opt('nc6', 8)
NC1 = opt('nc1', 4)
F_FFN0 = 64
R8B  = R8 + 20480
LOG2E = 1.4426950408889634
def f2u(x): return struct.unpack("<I", struct.pack("<f", x))[0]

a = Asm()
sID, sW, sN = "s2", "s3", "s4"
pX, pCKV, pWQ, pWUK, pWUV, pWO, pWG, pWU, pWD, pC, pWM, pOUT, pDBG, pWS = 16, 18, 20, 22, 24, 26, 30, 32, 34, 36, 38, 40, 42, 44
WS, SA, SB, SC, SD = 48, 52, 56, 60, 64
def srd(n): return "s[%d:%d]" % (n, n + 3)
vLane, vN, vKg = "v1", "v2", "v3"
MK = [4, 5, 6, 7]
ASET = [8, 12]
vST = "v255"
def vr(b, n=4): return f"v[{b}:{b+n-1}]"

def mksrd(n, p, size):
    a(f"s_mov_b32 s{n}, s{p}\ns_mov_b32 s{n+1}, s{p+1}\ns_mov_b32 s{n+2}, {size}\ns_mov_b32 s{n+3}, 0x00020000")

def stamp(k):
    if STAMPS:
        a(f"s_memrealtime s[90:91]\ns_waitcnt lgkmcnt(0)\nv_writelane_b32 {vST}, s90, {k}")

def get_tag():
    a(f"s_waitcnt lgkmcnt(0)\ns_mul_i32 {sN}, s46, 1664525\ns_add_u32 {sN}, {sN}, 1013904223")

def timeout(L):
    a(f"s_add_u32 s5, s5, 1\ns_cmp_gt_u32 s5, 200000\ns_cbranch_scc1 {L}_x")

def tree(op3, op2, dst, regs):
    r = list(regs)
    if len(r) == 1:
        a(f"v_mov_b32 {dst}, v{r[0]}"); return
    if len(r) == 2:
        a(f"{op2} {dst}, v{r[0]}, v{r[1]}"); return
    a(f"{op3} {dst}, v{r[0]}, v{r[1]}, v{r[2]}"); r = r[3:]
    while len(r) >= 2:
        a(f"{op3} {dst}, {dst}, v{r[0]}, v{r[1]}"); r = r[2:]
    if r: a(f"{op2} {dst}, {dst}, v{r[0]}")

DBGSLOT = {"L_H1": (11, 12), "L_H2": (13, 14), "L_S5stat": (1, 2), "L_H5": (11, 12), "L_H6": (11, 12), "L_H5gate": (13, 14), "L_H6gate": (13, 14)}
def gather(name, loads, regs, vt, mode="sent", vt2=None, first_issued=False, first_wait=0, sleep=1):
    if STAMPS and opt("polldbg", 0) and name in DBGSLOT and (opt("polldbg", 0) == 1) == (name in ("L_H1", "L_H2", "L_S5stat")):
        stamp(DBGSLOT[name][0])
    a("s_mov_b32 s5, 0")
    if first_issued:
        a(f"s_waitcnt vmcnt({first_wait})\ns_branch {name}_c")
    else:
        a(f"s_branch {name}_l")
    a.label(name)
    if sleep: a(f"s_sleep {sleep}")
    a.label(name + "_l")
    for l in loads: a(l)
    a("s_waitcnt vmcnt(0)")
    a.label(name + "_c")
    if mode == "sent":
        if len(regs) == 1:
            timeout(name)
            a(f"v_cmp_eq_u32 vcc, -1, v{regs[0]}")
        else:
            tree("v_max3_u32", "v_max_u32", vt, regs)
            timeout(name)
            a(f"v_cmp_eq_u32 vcc, -1, {vt}")
    else:
        if len(regs) == 1:
            timeout(name)
            a(f"v_cmp_ne_u32 vcc, {sN}, v{regs[0]}")
        else:
            tree("v_max3_u32", "v_max_u32", vt, regs); tree("v_min3_u32", "v_min_u32", vt2, regs)
            timeout(name)
            a(f"v_xor_b32 {vt}, {sN}, {vt}\nv_xor_b32 {vt2}, {sN}, {vt2}\nv_or_b32 {vt}, {vt}, {vt2}\nv_cmp_ne_u32 vcc, 0, {vt}")
    a(f"s_mov_b64 exec, vcc\ns_cbranch_execnz {name}")
    a.label(name + "_x")
    a("s_mov_b64 exec, -1")
    if STAMPS and opt("polldbg", 0) and name in DBGSLOT and (opt("polldbg", 0) == 1) == (name in ("L_H1", "L_H2", "L_S5stat")):
        a(f"v_writelane_b32 {vST}, s5, {DBGSLOT[name][1]}")

def pgather(name, loadfn, nregs, sets, dst, chk, vt, mode="sent", vt2=None, gap=2):
    n = len(sets); L = sum(1 for l in loadfn(sets[0]) if "buffer_load" in l)
    a("s_mov_b32 s5, 0")
    for i, b in enumerate(sets):
        for l in loadfn(b): a(l)
        if i < n - 1 and gap: a(f"s_sleep {gap}")
    a.label(name)
    for i, b in enumerate(sets):
        a(f"s_waitcnt vmcnt({L*(n-1)})")
        regs = [b + c for c in chk]
        if mode == "sent":
            if len(regs) == 1: a(f"v_cmp_eq_u32 vcc, -1, v{regs[0]}")
            else:
                tree("v_max3_u32", "v_max_u32", vt, regs)
                a(f"v_cmp_eq_u32 vcc, -1, {vt}")
        else:
            if len(regs) == 1: a(f"v_cmp_ne_u32 vcc, {sN}, v{regs[0]}")
            else:
                tree("v_max3_u32", "v_max_u32", vt, regs); tree("v_min3_u32", "v_min_u32", vt2, regs)
                a(f"v_xor_b32 {vt}, {sN}, {vt}\nv_xor_b32 {vt2}, {sN}, {vt2}\nv_or_b32 {vt}, {vt}, {vt2}\nv_cmp_ne_u32 vcc, 0, {vt}")
        a(f"s_cbranch_vccz {name}_d{i}")
        for l in loadfn(b): a(l)
    a(f"s_add_u32 s5, s5, 1\ns_cmp_lt_u32 s5, 100000\ns_cbranch_scc1 {name}")
    for i, b in enumerate(sets):
        a.label(f"{name}_d{i}")
        if dst is not None:
            for c in range(nregs): a(f"v_mov_b32 v{dst+c}, v{b+c}")
        if i < n - 1: a(f"s_branch {name}_x")
    a.label(name + "_x")
    a("s_mov_b64 exec, -1")

def dual_gather(name, loadsL, loadsG, regs, vt, vt2, every=4):
    a("s_mov_b32 s5, 0")
    a.label(name)
    a(f"s_add_u32 s5, s5, 1\ns_and_b32 s6, s5, {every-1}\ns_cmp_eq_u32 s6, 0\ns_cbranch_scc1 {name}_g")
    for l in loadsL: a(l)
    a(f"s_branch {name}_c")
    a.label(name + "_g")
    for l in loadsG: a(l)
    a.label(name + "_c")
    a("s_waitcnt vmcnt(0)")
    tree("v_max3_u32", "v_max_u32", vt, regs); tree("v_min3_u32", "v_min_u32", vt2, regs)
    a(f"s_cmp_gt_u32 s5, 200000\ns_cbranch_scc1 {name}_x")
    a(f"v_xor_b32 {vt}, {sN}, {vt}\nv_xor_b32 {vt2}, {sN}, {vt2}\nv_or_b32 {vt}, {vt}, {vt2}\nv_cmp_ne_u32 vcc, 0, {vt}\ns_cbranch_vccnz {name}")
    a.label(name + "_x")

def allreduce(op, v, t):
    for r in (8, 4, 2, 1):
        a(f"s_nop 1\n{op}_dpp {v}, {v}, {v} row_ror:{r} row_mask:0xf bank_mask:0xf")
    for sw in ("v_permlane16_swap_b32", "v_permlane32_swap_b32"):
        a(f"v_mov_b32 {t}, {v}\ns_nop 1\n{sw} {v}, {t}\ns_nop 1\n{op} {v}, {v}, {t}")

def sum8(regs):
    assert len(regs) >= 3
    for mode in ("quad_perm:[1,0,3,2]", "quad_perm:[2,3,0,1]", "row_half_mirror"):
        for r in regs:
            a(f"v_add_f32_dpp v{r}, v{r}, v{r} {mode} row_mask:0xf bank_mask:0xf")

def diag_mfma(items, acc, first=True, waits=None, masks=None):
    def ands(k):
        s = ASET[k % 2]; act = items[k][0]
        if isinstance(act, tuple):
            m = masks
            a(f"v_and_b32 v{s}, v{act[0]}, v{m[0]}\nv_and_b32 v{s+1}, v{act[0]}, v{m[1]}\nv_and_b32 v{s+2}, v{act[1]}, v{m[0]}\nv_and_b32 v{s+3}, v{act[1]}, v{m[1]}")
        else:
            for t in range(4):
                a(f"v_and_b32 v{s+t}, v{act}, v{MK[t]}")
    ands(0)
    for k in range(len(items)):
        if k + 1 < len(items): ands(k + 1)
        else: a("s_nop 1")
        if waits and waits[k]: a(waits[k])
        s = ASET[k % 2]; wv = items[k][1]
        c = "0" if (first and k == 0) else vr(acc)
        a(f"v_mfma_f32_16x16x32_bf16 {vr(acc)}, {vr(s)}, {vr(wv)}, {c}")

def silu(v, t):
    a(f"""v_mul_f32 {t}, 0x{f2u(-LOG2E):08x}, {v}
    v_exp_f32 {t}, {t}
    s_nop 0
    v_add_f32 {t}, 1.0, {t}
    v_rcp_f32 {t}, {t}
    s_nop 0
    v_mul_f32 {v}, {v}, {t}""")

def silu_c4(src, dst, t):
    a(f"""v_lshlrev_b32 v{dst}, 16, v{src}
    v_and_b32 v{dst+1}, 0xffff0000, v{src}
    v_lshlrev_b32 v{dst+2}, 16, v{src+1}
    v_and_b32 v{dst+3}, 0xffff0000, v{src+1}""")
    for i in range(4): silu(f"v{dst+i}", t)
    for i in range(4): a(f"v_cvt_pk_bf16_f32 v{dst+i}, v{dst+i}, v{dst+i}")

def reduce_b128(addr, n, base, tmp, dst, stride=1024):
    for i in range(n):
        a(f"ds_read_b128 {vr(tmp+4*i)}, {addr} offset:{base+i*stride}")
    cur = [tmp + 4 * i for i in range(n)]
    a(f"s_waitcnt lgkmcnt({n-2})")
    d = dst if n == 2 else cur[0]
    a(f"v_pk_add_f32 {vr(d,2)}, {vr(cur[0],2)}, {vr(cur[1],2)}\nv_pk_add_f32 {vr(d+2,2)}, {vr(cur[0]+2,2)}, {vr(cur[1]+2,2)}")
    for i in range(2, n):
        a(f"s_waitcnt lgkmcnt({n-1-i})")
        d = dst if i == n - 1 else cur[0]
        a(f"v_pk_add_f32 {vr(d,2)}, {vr(cur[0],2)}, {vr(cur[i],2)}\nv_pk_add_f32 {vr(d+2,2)}, {vr(cur[0]+2,2)}, {vr(cur[i]+2,2)}")

def dlayout_off(dst, t, bstride, esz):
    sh = {2: 1, 4: 2}[esz]
    a(f"""v_lshrrev_b32 {dst}, 1, {vKg}
    v_mul_u32_u24 {dst}, {bstride}, {dst}
    v_lshl_add_u32 {dst}, {vN}, {3+sh}, {dst}
    v_and_b32 {t}, 1, {vKg}
    v_lshl_add_u32 {dst}, {t}, {2+sh}, {dst}""")

def fsw(k): return ((k & 3) << 2) | ((k >> 2) & 3)

a.label("L_code_start")
a(f"""
s_getpc_b64 s[6:7]
s_cmp_ge_u32 {sID}, 256
s_cbranch_scc1 L_end
s_load_dwordx16 s[16:31], s[0:1], 0
s_load_dwordx8 s[32:39], s[0:1], 64
s_load_dwordx4 s[40:43], s[0:1], 96
s_load_dwordx2 s[44:45], s[0:1], 112
""")
if STAMPS: a("s_memrealtime s[8:9]")
a(f"""
v_and_b32 {vLane}, 63, v0
v_lshrrev_b32 v24, 6, v0
v_and_b32 {vN}, 15, v0
v_readfirstlane_b32 {sW}, v24
v_bfe_u32 {vKg}, v0, 4, 2
s_cmp_lt_u32 {sW}, 7
s_cbranch_scc1 L_nopf
s_bfe_u32 s5, {sID}, 0x50003
s_lshl_b32 s5, s5, 10
v_lshlrev_b32 v25, 4, {vLane}
v_add_u32 v25, s5, v25
v_min_u32 v25, L_code_end-L_code_start-32, v25
global_load_dwordx4 v[244:247], v25, s[6:7]
""")
a.label("L_nopf")
if STAMPS: a(f"v_mov_b32 {vST}, 0")
a(f"""
v_mov_b32 v20, 0
v_mov_b32 v29, 0
v_and_b32 v24, 1, {vN}
v_lshlrev_b32 v24, 4, v24
v_mov_b32 v26, 0xffff
v_lshlrev_b32 v24, v24, v26
v_bfe_u32 v26, {vN}, 1, 2""")
for t in range(4):
    a(f"v_cmp_eq_u32 vcc, {t}, v26\ns_nop 1\nv_cndmask_b32 v{MK[t]}, 0, v24, vcc")
a("s_waitcnt lgkmcnt(0)")
if STAMPS: a(f"v_writelane_b32 {vST}, s8, 0")
a(f"s_load_dword s46, s[{pWS}:{pWS+1}], {EPOCH}")
mksrd(WS, pWS, WS_SIZE)
a(f"s_cmp_ge_u32 {sID}, 128\ns_cbranch_scc1 L_F")

LATEONLY = False
QB = 131072
NE = opt("early", 0)
mksrd(SD, pCKV, 16777216)
def dma_setup():
    a(f"""s_bfe_u32 s89, {sID}, 0x20003
    s_lshl_b32 s89, s89, {8 if opt("rot", 1) else 31}
    s_and_b32 s89, s89, 0x300
    s_lshl_b32 s80, {sID}, 7
    s_lshl_b32 s81, {sW}, 4
    s_add_u32 s80, s80, s81
    s_lshl_b32 s80, s80, 10
    s_lshl_b32 s81, {sW}, 12
    v_lshlrev_b32 v240, 2, {vKg}
    v_xor_b32 v240, v240, {vN}
    v_lshlrev_b32 v240, 4, v240
    v_lshl_add_u32 v240, {vKg}, 10, v240
    v_xor_b32 v241, 16, v240
    v_add_u32 v241, 3072, v241
    v_xor_b32 v242, 32, v240
    v_add_u32 v242, 6144, v242
    v_xor_b32 v243, 48, v240
    v_add_u32 v243, 9216, v243""")
ROT = opt("rot", 1)
def dma_q(kq):
    a(f"s_add_u32 s82, s81, {kq*32768}\ns_mov_b32 m0, s82\ns_xor_b32 s83, s89, {kq*256}\ns_add_u32 s83, s80, s83")
    for i in range(4):
        a(f"buffer_load_dwordx4 v{240+i}, {srd(SD)}, s83 offen offset:{i*1024} nt lds")
def early():
    dma_setup()
    for kq in range(NE): dma_q(kq)
W7Q = opt("w7q", 0)
def w7_q0():
    for g in range(8):
        a(f"s_mov_b32 m0, {g*4096}\ns_sub_u32 s83, s80, {(7-g)*16384}\ns_add_u32 s83, s83, s89")
        for i in range(4):
            a(f"buffer_load_dwordx4 v{240+i}, {srd(SD)}, s83 offen offset:{i*1024} nt lds")
a(f"s_cmp_ge_u32 {sID}, 80\ns_cbranch_scc1 L_A_hold")
RED1 = QB; XN = QB + 8192
a(f"""s_and_b32 s47, {sID}, 63
s_lshl_b32 s47, s47, 10
s_add_u32 s47, s47, {R3-7168}
v_lshlrev_b32 v36, 4, v0
v_mov_b32 v32, -1
v_mov_b32 v33, -1
v_mov_b32 v34, -1
v_mov_b32 v35, -1
s_mul_i32 s10, {sID}, 205
s_lshr_b32 s10, s10, 11            ; p
s_mul_i32 s11, s10, 10
s_sub_u32 s11, {sID}, s11          ; j
s_cmp_ge_u32 {sW}, 5
s_cbranch_scc1 L_S1_other
""")
mksrd(SA, pWM, 640 * 7680)
mksrd(SB, pC, 2560)
a(f"""
s_mul_i32 s12, s10, 80
s_lshl_b32 s13, {sW}, 4
s_add_u32 s12, s12, s13
v_lshl_add_u32 v24, {vKg}, 2, s12  ; row
v_lshrrev_b32 v25, 3, {vN}
v_mul_u32_u24 v26, 1280, v25
v_lshl_add_u32 v26, v24, 1, v26
buffer_load_dwordx2 {vr(28,2)}, v26, {srd(SB)}, 0 offen
v_mul_u32_u24 v27, 7680, v24
v_mul_u32_u24 v26, 1152, v25
v_lshl_add_u32 v26, {vN}, 4, v26
s_lshl_b32 s13, s11, 7
v_add3_u32 v27, v27, v26, s13
buffer_load_dwordx4 {vr(64)}, v27, {srd(SA)}, 0 offen nt
s_movk_i32 s13, 7680
buffer_load_dwordx4 {vr(68)}, v27, {srd(SA)}, s13 offen nt
s_movk_i32 s13, 15360
buffer_load_dwordx4 {vr(72)}, v27, {srd(SA)}, s13 offen nt
s_movk_i32 s13, 23040
buffer_load_dwordx4 {vr(76)}, v27, {srd(SA)}, s13 offen nt
v_add_u32 v36, {RED1}, v36
v_lshrrev_b32 v29+8, 1, {vKg}
""".replace("v29+8", "v37"))
a(f"""v_lshlrev_b32 v30, 8, v37
v_and_b32 v31, 7, {vN}
v_lshl_add_u32 v30, v31, 5, v30
v_and_b32 v24, 1, {vKg}
v_lshl_add_u32 v30, v24, 4, v30
v_add_u32 v30, {XN}, v30
v_mul_u32_u24 v37, 2560, v37
v_lshl_add_u32 v37, v31, 5, v37
v_lshl_add_u32 v37, v24, 4, v37
s_mul_i32 s12, s10, 5120
s_lshl_b32 s13, s11, 8
s_add_u32 s12, s12, s13
s_add_u32 s12, s12, {R1}
s_cmp_eq_u32 s10, 0
s_cselect_b32 s13, 1.0, 0
s_mov_b32 s8, 0x00ff00ff
s_mov_b32 s9, 0x00ff00ff
""")
early()
a(f"s_waitcnt vmcnt({4+4*NE})")
silu_c4(28, 16, "v24")
diag_mfma([(16 + u, 64 + 4 * u) for u in range(4)], 40, waits=[f"s_waitcnt vmcnt({3-u+4*NE})" for u in range(4)])
stamp(1)
a(f"s_nop 7\nds_write_b128 v36, {vr(40)}")
get_tag()
a(f"s_waitcnt vmcnt({4*NE})\ns_barrier\ns_cmp_lg_u32 {sW}, 0\ns_cbranch_scc1 L_S1_end")
a(f"ds_read_b128 {vr(44)}, v30\nv_mov_b32 v53, {sN}\nv_mov_b32 v55, {sN}")
reduce_b128("v36", 5, 0, 64, 40)
a("s_nop 1")
for i in range(4):
    a(f"v_mov_b32_dpp v{48+i}, v{40+i} row_ror:8 row_mask:0xf bank_mask:0xf")
for i in range(4):
    a(f"v_add_f32 v{48+i}, s13, v{48+i}")
for i in range(4):
    a(f"v_fmac_f32 v{40+i}, v{44+i}, v{48+i}")
a(f"""v_cvt_pk_bf16_f32 v52, v40, v41
v_cvt_pk_bf16_f32 v54, v42, v43
s_mov_b64 exec, s[8:9]
""")
for c in range(NC1):
    a(f"buffer_store_dwordx4 {vr(52)}, v37, {srd(WS)}, s12 offen sc1")
    if c < NC1 - 1: a("s_add_u32 s12, s12, 40960")
a("s_mov_b64 exec, -1")
stamp(2)
a("s_branch L_S1_end")
a.label("L_S1_other")
a(f"s_cmp_eq_u32 {sW}, 7\ns_cbranch_scc1 L_S1_w7")
mksrd(SC, pX, 2560)
a(f"""
s_sub_u32 s12, {sW}, 5
s_mul_i32 s13, s12, 1280
v_lshlrev_b32 v24, 2, {vLane}
buffer_load_dword v52, v24, {srd(SC)}, s13 offen
buffer_load_dword v53, v24, {srd(SC)}, s13 offen offset:256
buffer_load_dword v54, v24, {srd(SC)}, s13 offen offset:512
buffer_load_dword v55, v24, {srd(SC)}, s13 offen offset:768
buffer_load_dword v56, v24, {srd(SC)}, s13 offen offset:1024
s_lshl_b32 s14, s11, 7
s_add_u32 s13, s13, s14
v_lshlrev_b32 v25, 1, {vLane}
buffer_load_ushort v37, v25, {srd(SC)}, s13 offen
""")
early()
a(f"s_waitcnt vmcnt({4*NE})")
for i in range(5):
    a(f"v_lshlrev_b32 v{40+2*i}, 16, v{52+i}\nv_and_b32 v{41+2*i}, 0xffff0000, v{52+i}")
a("v_add_f32 v26, v40, v41")
for i in range(2, 10): a(f"v_add_f32 v26, v26, v{40+i}")
allreduce("v_add_f32", "v26", "v27")
a(f"v_mul_f32 v26, 0x{f2u(1.0/640):08x}, v26")
a("v_sub_f32 v40, v40, v26\nv_mul_f32 v28, v40, v40")
for i in range(1, 10):
    a(f"v_sub_f32 v{40+i}, v{40+i}, v26\nv_fmac_f32 v28, v{40+i}, v{40+i}")
allreduce("v_add_f32", "v28", "v27")
a(f"""
v_mov_b32 v27, 0x{f2u(1e-5):08x}
v_fmac_f32 v27, 0x{f2u(1.0/640):08x}, v28
v_rsq_f32 v27, v27
v_lshlrev_b32 v37, 16, v37
v_sub_f32 v37, v37, v26
v_mul_f32 v37, v37, v27
s_lshl_b32 s12, s12, 8
s_add_u32 s12, s12, {XN}
v_add_u32 v24, s12, v24
ds_write_b32 v24, v37
s_branch L_S1_bar
""")
a.label("L_S1_w7")
a(f"buffer_store_dwordx4 v[32:35], v36, {srd(WS)}, s47 offen sc1")
early()
if W7Q:
    a("s_waitcnt vmcnt(0) lgkmcnt(0)")
    if W7Q == 1:
        w7_q0()
        a("s_barrier")
    else:
        a("s_barrier")
        w7_q0()
    a("s_branch L_S1_end")
a.label("L_S1_bar")
a(f"s_waitcnt vmcnt({4*NE}) lgkmcnt(0)\ns_barrier")
a.label("L_S1_end")
a("s_barrier\ns_branch L_A_main")
a.label("L_A_hold")
early()
NH = opt("nh", 0)
if NH:
    get_tag()
    for kq in range(NH): dma_q(kq)
    a("s_mov_b32 s88, 1")
if W7Q:
    a(f"s_cmp_lg_u32 {sW}, 7\ns_cbranch_scc1 L_h7\ns_waitcnt vmcnt(0) lgkmcnt(0)")
    w7_q0()
    a.label("L_h7")
STG = opt("stage", 0)
if STG:
    mksrd(SA, pWG, 640 * 3456)
    mksrd(SB, pWU, 640 * 3456)
    a(f"""s_sub_u32 s12, {sID}, 80
    s_mul_i32 s12, s12, 46080
    v_lshlrev_b32 v26, 4, v0""")
    for k in range(6):
        a(f"buffer_load_dwordx4 {vr(64+8*k)}, v26, {srd(SA)}, s12 offen")
        if STG >= 2: a(f"buffer_load_dwordx4 {vr(68+8*k)}, v26, {srd(SB)}, s12 offen")
        a("s_add_u32 s12, s12, 8192")
if opt("hold", 2) and not STG:
    get_tag()
    a(f"""s_cmp_lg_u32 {sW}, 0
    s_cbranch_scc1 L_hold_x
    s_sub_u32 s12, {sID}, 80
    s_lshl_b32 s12, s12, 9
    s_add_u32 s12, s12, {R1+4}
    v_mov_b32 v26, s12
    s_mov_b64 exec, 1""")
    if opt("hold", 2) == 1:
        gather("L_hold", [f"buffer_load_dword v27, v26, {srd(WS)}, 0 offen sc1"], [27], "v27", mode="tag", sleep=2)
    else:
        for _ in range(opt("hold", 2) - 1):
            a(f"buffer_load_dword v27, v26, {srd(WS)}, 0 offen sc1\ns_waitcnt vmcnt(0)\nv_cmp_ne_u32 vcc, {sN}, v27\ns_cbranch_vccz L_hold_x")
        a.label("L_hold_x")
        a("s_mov_b64 exec, -1")
    a("s_barrier")

a.label("L_A_main")
FL1 = FL2 + 0x2000
if opt("hold2", 0):
    get_tag()
    a(f"""s_cmp_lg_u32 {sW}, 1
    s_cbranch_scc1 L_hold2_x
    s_lshl_b32 s12, {sID}, 6
    s_add_u32 s12, s12, {FL1}
    v_mov_b32 v26, s12
    s_mov_b64 exec, 1""")
    gather("L_hold2", [f"buffer_load_dword v27, v26, {srd(WS)}, 0 offen sc1"], [27], "v27", mode="tag", sleep=2)
    a("s_barrier")
mksrd(SB, pWUV, 512 * 8192)
a(f"""
s_lshr_b32 s10, {sID}, 6            ; b
s_and_b32 s11, {sID}, 63            ; chunk
v_and_b32 v24, 31, {vLane}
v_lshrrev_b32 v25, 5, {vLane}
v_lshlrev_b32 v26, 4, {vLane}
s_lshl_b32 s13, {sID}, 8
s_add_u32 s13, s13, {R4}
v_lshrrev_b32 v23, 3, {vLane}
v_mul_u32_u24 v23, {4*R4ST}, v23
v_and_b32 v27, 7, {vLane}
v_lshl_add_u32 v23, v27, 4, v23
""")
a(f"""s_and_b32 s12, {sW}, 3
s_lshr_b32 s14, s89, 8
s_xor_b32 s12, s12, s14
s_mul_i32 s12, s12, {R4ST}
s_add_u32 s68, s12, s13
s_add_u32 s69, s68, {32*R4ST}
s_add_u32 s70, s68, {64*R4ST}
s_add_u32 s71, s68, {96*R4ST}
v_and_b32 v22, 3, {vLane}
v_lshlrev_b32 v22, 10, v22
s_and_b32 s9, {sID}, 31
s_lshl_b32 s9, s9, 12
s_lshl_b32 s14, {sW}, 7
s_add_u32 s9, s9, s14
s_add_u32 s9, s9, {R2}
""")
if NH: a("s_cmp_ge_u32 s2, 80\ns_cbranch_scc1 L_skipq")
for kq in range(max(NE, 1 if W7Q else 0), 4):
    if NH and kq == NH: a.label("L_skipq")
    dma_q(kq)
    if kq == 2:
        a(f"buffer_load_dword v21, v22, {srd(WS)}, s9 offen offset:4 sc1")
stamp(3)
get_tag()
a(f"""v_and_b32 v27, 7, {vLane}
v_mul_u32_u24 v27, 37, v27
v_xor_b32 v27, {sN}, v27
s_mov_b32 s79, 0x00010001""")
for i in range(4):
    a(f"v_bfe_u32 v28, v27, {2*i}, 1\nv_bfe_u32 v29, v27, {2*i+1}, 1\nv_lshl_or_b32 v{248+i}, v29, 16, v28")
a(f"""s_and_b32 s72, {sID}, 7
s_lshl_b32 s72, s72, 2
s_bfe_u32 s73, {sID}, 0x20003
s_add_u32 s72, s72, s73             ; h
s_lshr_b32 s73, {sID}, 5            ; cq
s_lshl_b32 s74, s72, 2
s_add_u32 s74, s74, s73             ; ci
s_lshl_b32 s76, s10, 5
s_lshl_b32 s13, {sW}, 2
s_add_u32 s76, s76, s13
s_lshl_b32 s76, s76, 10
s_add_u32 s76, s76, {R3}
s_lshl_b32 s77, s13, 10
s_add_u32 s77, s77, {QB}
s_and_b32 s14, {sW}, 3
v_xor_b32 v16, s14, {vLane}
v_lshlrev_b32 v16, 4, v16
v_xor_b32 v16, s89, v16
v_xor_b32 v17, 64, v16
v_xor_b32 v18, 128, v16
v_xor_b32 v19, 192, v16
v_add_u32 v31, s77, v26
s_cmp_ge_u32 {sW}, 4
s_cbranch_scc1 L_A_pvprep
s_lshl_b32 s8, s73, 7
s_lshl_b32 s13, {sW}, 5
s_add_u32 s8, s8, s13
v_lshl_add_u32 v20, {vKg}, 2, s8
v_lshlrev_b32 v20, 13, v20
v_lshl_add_u32 v20, {vN}, 4, v20
s_lshl_b32 s75, s72, 8
v_and_b32 v27, 3, {vLane}
v_lshlrev_b32 v27, 2, v27
v_bfe_u32 v28, {vLane}, 2, 2
v_or_b32 v27, v27, v28
v_xor_b32 v27, v27, v25
v_lshlrev_b32 v27, 4, v27           ; x0
v_lshl_or_b32 v28, v24, 10, v27     ; Q: l31*1024 | x0
v_lshl_or_b32 v27, v24, 8, v27      ; C: l31*256 | x0
s_lshl_b32 s12, {sW}, 13
v_add_u32 v27, s12, v27
v_add_u32 v28, {QB}, v28
""")
for t8 in range(8):
    a(f"v_xor_b32 v{224+t8}, {t8<<5}, v27\nv_xor_b32 v{232+t8}, {t8<<5}, v28")
QF = "" if opt("qplain", 0) else "sc1"
def q_issue(tagl):
    a(f"v_cmp_ne_u32 vcc, {sN}, v21\ns_mov_b32 s78, 0\ns_cbranch_vccnz {tagl}\ns_mov_b32 m0, s77\ns_mov_b32 s78, 1")
    if not opt("qfirst", 1):
        a(f"s_mov_b32 s78, 0\ns_branch {tagl}")
    for u in range(4):
        a(f"buffer_load_dwordx4 v{16+u}, {srd(WS)}, s76 offen offset:{u*1024} {QF} lds")
    a.label(tagl)
QW = [13, 9, 4]
for kq in range(4):
    if kq < 3: a(f"s_waitcnt vmcnt({QW[kq]}) lgkmcnt(0)")
    if kq == 2: q_issue("L_qi0")
    if kq == 3:
        a("s_cmp_eq_u32 s78, 1\ns_cbranch_scc1 L_qw0\ns_waitcnt vmcnt(0)")
        a.label("L_qw0")
        a("s_waitcnt vmcnt(4) lgkmcnt(0)")
    a("s_barrier")
    if kq == 2:
        for t8 in range(8): a(f"v_add_u32 v{224+t8}, 0x10000, v{224+t8}")
    for t8 in range(8):
        a(f"ds_read_b128 {vr(32+4*(kq*8+t8))}, v{224+t8} offset:{(kq%2)*32768}")
a("s_branch L_A_q")
a.label("L_A_pvprep")
a(f"""v_lshrrev_b32 v27, 2, {vN}          ; r
v_lshrrev_b32 v28, 1, {vKg}         ; kg
v_and_b32 v29, 1, {vKg}
v_lshl_add_u32 v30, v28, 3, v27
v_lshlrev_b32 v30, 8, v30
v_bfe_u32 v20, {vN}, 1, 1
v_lshl_add_u32 v20, v29, 1, v20
v_lshlrev_b32 v27, 2, v27
v_lshl_or_b32 v27, v28, 1, v27
v_xor_b32 v20, v20, v27
v_lshlrev_b32 v20, 4, v20
v_and_b32 v27, 1, {vN}
v_lshlrev_b32 v27, 3, v27
v_add3_u32 v30, v30, v20, v27
s_and_b32 s12, {sW}, 3
s_lshl_b32 s13, s12, 15
v_add_u32 v30, s13, v30
s_lshl_b32 s14, {sID}, 6
s_add_u32 s14, s14, {FL2}
v_mov_b32 v28, {sN}
v_mov_b32 v29, s14
""")
for mt in range(4):
    for e in range(2):
        a(f"v_xor_b32 v{224+mt*2+e}, {(mt*64) ^ (e*16) ^ (e*1024)}, v30")
TRIGQ = opt("trigq", 2)
for kq in range(4):
    if kq < 3: a(f"s_waitcnt vmcnt({QW[kq]}) lgkmcnt(0)")
    if kq == 2: q_issue("L_qi1")
    if kq == 3:
        a("s_cmp_eq_u32 s78, 1\ns_cbranch_scc1 L_qw1\ns_waitcnt vmcnt(0)")
        a.label("L_qw1")
        a("s_waitcnt vmcnt(4) lgkmcnt(0)")
    a("s_barrier")
    if kq == TRIGQ:
        a(f"""s_cmp_lg_u32 {sW}, {4 if kq == 3 else 7}
        s_cbranch_scc1 L_notrig
        s_mov_b64 exec, 1
        buffer_store_dword v28, v29, {srd(WS)}, 0 offen sc1
        s_mov_b64 exec, -1""")
        a.label("L_notrig")
    a(f"s_cmp_lg_u32 s12, {kq}\ns_cbranch_scc1 L_trs{kq}")
    if kq == 0: a.label("L_trread")
    if kq == 0:
        for mt in range(4):
            for t in range(8):
                for e in range(2):
                    d = 32 + (mt * 8 + t) * 4 + e * 2
                    a(f"ds_read_b64_tr_b16 {vr(d,2)}, v{224+mt*2+e} offset:{t*4096}")
        for k2 in range(1, 4):
            a(f"s_cmp_eq_u32 s12, {k2}\ns_cbranch_scc1 L_trs{k2}")
    else:
        a("s_branch L_trread")
    a.label(f"L_trs{kq}")
a.label("L_A_q")
stamp(4)
a("s_cmp_eq_u32 s78, 1\ns_mov_b32 s5, 0\ns_cbranch_scc1 L_Qdma_w\ns_mov_b64 exec, 15")
gather("L_wit", [f"buffer_load_dword v21, v22, {srd(WS)}, s9 offen offset:4 sc1"], [21], "v21", mode="tag", sleep=2)
a(f"s_lshl_b32 s14, s11, 6\nv_mov_b32 v22, s14\ns_mov_b64 exec, 1")
pgather("L_Qgate", lambda b: [f"buffer_load_dword v{b}, v22, {srd(WS)}, s76 offen offset:60 sc1"], 1, [244, 245, 246], None, [0], "v21", gap=3)
a("s_mov_b32 s5, 0\ns_mov_b32 m0, s77\ns_nop 0")
for u in range(4):
    a(f"buffer_load_dwordx4 v{16+u}, {srd(WS)}, s76 offen offset:{u*1024} {QF} lds")
a("s_branch L_Qdma_w")
a.label("L_Qdma")
a(f"s_sleep {opt('qsleep', 2)}")
a.label("L_Qdma_l")
for u in range(4):
    a(f"buffer_load_dwordx4 v{16+u}, {srd(WS)}, s76 offen offset:{u*1024} sc1 lds")
a.label("L_Qdma_w")
a("s_waitcnt vmcnt(0)")
for u in range(4):
    a(f"ds_read_b128 {vr(176+4*u)}, v31 offset:{u*1024}")
a("s_waitcnt lgkmcnt(0)")
tree("v_max3_u32", "v_max_u32", "v21", list(range(176, 192)))
timeout("L_Qdma")
a("v_cmp_eq_u32 vcc, -1, v21\ns_mov_b64 exec, vcc\ns_cbranch_execnz L_Qdma")
a.label("L_Qdma_x")
a("s_mov_b64 exec, -1")
stamp(5)
MXL, PL, WTL = 0, 4096, 2048
a(f"""s_barrier
s_cmp_lg_u32 {sW}, 7
s_cbranch_scc1 L_nofl3
s_mov_b64 exec, 1
buffer_store_dword v28, v29, {srd(WS)}, 0 offen offset:32 sc1
s_mov_b64 exec, -1""")
a.label("L_nofl3")
stamp(11)
a(f"s_cmp_ge_u32 {sW}, 4\ns_cbranch_scc1 L_A_pv")
SACC, BF = 160, 176
def qk_read(t):
    a(f"ds_read_b128 {vr(BF+4*(t%4))}, v{232+t%8} offset:{(t//8)*256}")
for t in range(4): qk_read(t)
for t in range(32):
    a(f"s_waitcnt lgkmcnt({min(3, 31-t)})")
    c = "0" if t == 0 else vr(SACC, 16)
    a(f"v_mfma_f32_32x32x16_bf16 {vr(SACC,16)}, {vr(32+4*t)}, {vr(BF+4*(t%4))}, {c}")
    if t + 4 < 32: qk_read(t + 4)
a(f"""s_lshl_b32 s12, {sW}, 2
v_lshlrev_b32 v29, 4, v24           ; MX[head][4]
v_add_u32 v30, s12, v29
v_mul_u32_u24 v31, 272, v24
v_lshl_add_u32 v31, v25, 3, v31
s_lshl_b32 s12, {sW}, 6
v_add_u32 v31, s12, v31
s_lshl_b32 s12, {sID}, 3
s_add_u32 s12, s12, {R4S}
v_lshlrev_b32 v22, 10, v24
s_nop 1
""")
tree("v_max3_f32", "v_max_f32", "v27", list(range(SACC, SACC + 16)))
stamp(12)
a(f"""v_mov_b32 v28, v27
s_nop 1
v_permlane32_swap_b32 v27, v28
s_nop 1
v_max_f32 v27, v27, v28
ds_write_b32 v30, v27 offset:{MXL}
s_waitcnt lgkmcnt(0)
s_barrier
ds_read_b128 {vr(32)}, v29 offset:{MXL}
s_waitcnt lgkmcnt(0)
v_max3_f32 v27, v32, v33, v34
v_max_f32 v27, v27, v35
""")
for g in range(4):
    for i in range(4): a(f"v_sub_f32 v{SACC+4*g+i}, v{SACC+4*g+i}, v27")
    for i in range(4): a(f"v_exp_f32 v{SACC+4*g+i}, v{SACC+4*g+i}")
    a("s_nop 0")
    a(f"v_cvt_pk_bf16_f32 v{32+2*g}, v{SACC+4*g}, v{SACC+4*g+1}\nv_cvt_pk_bf16_f32 v{33+2*g}, v{SACC+4*g+2}, v{SACC+4*g+3}")
    a(f"ds_write_b64 v31, {vr(32+2*g,2)} offset:{PL+g*16}")
a("s_waitcnt lgkmcnt(0)\ns_barrier")
stamp(6)
a(f"v_add_f32 v28, v{SACC}, v{SACC+1}")
for i in range(2, 16): a(f"v_add_f32 v28, v28, v{SACC+i}")
a(f"""v_mov_b32 v40, v28
s_nop 1
v_permlane32_swap_b32 v28, v40
s_nop 1
v_add_f32 v28, v28, v40
ds_write_b32 v30, v28 offset:{MXL+512}
s_lshl_b32 s12, {sW}, 8
s_lshl_b32 s13, {sID}, 10
s_add_u32 s12, s12, s13
s_add_u32 s12, s12, {R4S}
v_lshlrev_b32 v22, 3, v24
s_waitcnt lgkmcnt(0)
s_barrier
ds_read_b128 {vr(36)}, v29 offset:{MXL+512}
v_mov_b32 v32, v27
s_waitcnt lgkmcnt(0)
v_add_f32 v36, v36, v37
v_add_f32 v38, v38, v39
v_add_f32 v33, v36, v38
s_mov_b32 exec_hi, 0
buffer_store_dwordx2 {vr(32,2)}, v22, {srd(WS)}, s12 offen sc1
s_mov_b64 exec, -1
""")
stamp(14)
RED5 = 65536; RED5b = 81920; FLG = 3584
def s5_setup():
    a(f"""s_mul_i32 s84, s74, {R4ST}
    s_lshl_b32 s14, {sW}, 12
    s_add_u32 s84, s84, s14
    s_add_u32 s84, s84, {R4}
    v_lshrrev_b32 v29, 3, {vN}
    v_mul_u32_u24 v29, 576, v29
    v_lshl_add_u32 v29, {vKg}, 4, v29
    s_lshl_b32 s14, {sW}, 6
    v_add_u32 v29, s14, v29
    v_lshlrev_b32 v30, 4, v0
    v_add_u32 v30, {RED5}, v30""")
def s5_check(name, loads, bases):
    a("s_mov_b32 s5, 0")
    a.label(name)
    a("s_waitcnt vmcnt(0)\ns_mov_b32 s7, 0")
    for u, b in enumerate(bases):
        a(f"""v_xor_b32 v{b+16}, v{b}, v248
        v_xor_b32 v{b+17}, v{b+1}, v249
        v_xor_b32 v{b+18}, v{b+2}, v250
        v_xor_b32 v{b+19}, v{b+3}, v251
        v_or3_b32 v28, v{b+16}, v{b+17}, v{b+18}
        v_or_b32 v28, v28, v{b+19}
        v_and_b32 v28, s79, v28
        v_cmp_ne_u32 vcc, 0, v28
        s_cbranch_vccz {name}_ok{u}
        {loads[u]}
        s_mov_b32 s7, 1""")
        a.label(f"{name}_ok{u}")
    a(f"""s_add_u32 s5, s5, 1
    s_cmp_gt_u32 s5, 200000
    s_cbranch_scc1 {name}_d
    s_cmp_eq_u32 s7, 1
    s_cbranch_scc1 {name}""")
    a.label(name + "_d")
def spin(name, off):
    a("v_mov_b32 v21, 0\ns_mov_b32 s5, 0")
    a.label(name)
    a(f"""ds_read_b32 v22, v21 offset:{off}
    s_add_u32 s5, s5, 1
    s_waitcnt lgkmcnt(0)
    s_cmp_gt_u32 s5, 2000000
    s_cbranch_scc1 {name}_x
    v_cmp_ne_u32 vcc, {sN}, v22
    s_cbranch_vccnz {name}""")
    a.label(name + "_x")
S5L = [f"buffer_load_dwordx4 {vr(96+4*u)}, v26, {srd(WS)}, s84 offen offset:{u*1024} sc1" for u in range(4)]
s5_setup()
a(f"""v_lshrrev_b32 v27, 3, {vN}
v_lshlrev_b32 v27, 12, v27
v_and_b32 v28, 3, {vN}
v_lshl_add_u32 v27, v28, 10, v27
v_bfe_u32 v28, {vN}, 2, 1
v_lshl_add_u32 v27, v28, 9, v27
v_and_b32 v28, 1, {vKg}
v_lshl_add_u32 v27, v28, 8, v27
v_lshrrev_b32 v28, 1, {vKg}
v_lshl_add_u32 v27, v28, 4, v27
s_add_u32 s14, s14, {RED5}
v_add_u32 v27, s14, v27
s_lshl_b32 s14, {sW}, 13
s_add_u32 s14, s14, 98304
v_add_u32 v20, s14, v26
s_cmp_ge_u32 {sW}, 2
s_cbranch_scc1 L_S5_w23
s_lshl_b32 s12, {sW}, 16
s_lshl_b32 s14, s73, 8
s_add_u32 s12, s12, s14
s_lshl_b32 s14, s72, 3
s_add_u32 s12, s12, s14
s_add_u32 s12, s12, {R4S}
v_lshlrev_b32 v37, 10, {vLane}
v_and_b32 v38, 3, {vLane}
v_lshlrev_b32 v38, 2, v38
v_bfe_u32 v28, {vLane}, 2, 2
v_and_b32 v36, 48, {vLane}
v_add3_u32 v38, v38, v28, v36
v_lshlrev_b32 v38, 2, v38
s_lshl_b32 s14, {sW}, 8
v_add_u32 v38, s14, v38
""")
spin("L_sp1", FLG)
gather("L_S5stat", [f"buffer_load_dwordx2 {vr(32,2)}, v37, {srd(WS)}, s12 offen sc1"], [32, 33], "v28", sleep=0)
stamp(10)
for l in S5L: a(l)
a("v_mov_b32 v34, v32")
allreduce("v_max_f32", "v34", "v35")
a("v_sub_f32 v32, v32, v34\nv_exp_f32 v32, v32\ns_nop 0\nv_mul_f32 v33, v33, v32")
allreduce("v_add_f32", "v33", "v35")
a(f"""v_rcp_f32 v33, v33
v_mul_f32 v32, 0x{f2u(1.0028):08x}, v32
v_mul_f32 v32, v32, v33
v_cvt_pk_bf16_f32 v33, v32, v32
v_and_b32 v34, 0xffff0000, v33
v_sub_f32 v34, v32, v34
v_cvt_pk_bf16_f32 v34, v34, v34
ds_write_b32 v38, v33 offset:{WTL}
ds_write_b32 v38, v34 offset:{WTL+512+64}
s_waitcnt lgkmcnt(0)
s_branch L_S5_chk
""")
a.label("L_S5_w23")
spin("L_sp2", FLG + 4)
a("s_branch L_S5_ld")
a.label("L_A_pv")
PF = 192; ACC = [160, 176, 32, 48]
a(f"""v_mul_u32_u24 v31, 272, v24
v_lshl_add_u32 v31, v25, 4, v31
v_mul_u32_u24 v27, 144, v24
v_lshl_add_u32 v27, v25, 3, v27
s_mul_i32 s13, {sW}, 4608
s_add_u32 s13, s13, 16384
v_add_u32 v27, s13, v27
v_lshrrev_b32 v28, 3, {vLane}
v_mul_u32_u24 v28, 144, v28
v_and_b32 v29, 7, {vLane}
v_lshl_add_u32 v28, v29, 4, v28
v_add_u32 v28, s13, v28
s_and_b32 s12, {sW}, 3
s_lshl_b32 s8, s73, 7
s_lshl_b32 s13, s12, 5
s_add_u32 s8, s8, s13
v_lshl_add_u32 v20, {vKg}, 2, s8
v_lshlrev_b32 v20, 13, v20
v_lshl_add_u32 v20, {vN}, 4, v20
s_lshl_b32 s75, s72, 8
s_lshl_b32 s12, s12, 13
s_add_u32 s12, s12, 98304
""")
for k in range(8):
    g, u = divmod(k, 4)
    a(f"s_add_u32 s13, s12, {k*1024}\ns_mov_b32 m0, s13\ns_add_u32 s13, s75, {(16*g+u)*8192}\nbuffer_load_dwordx4 v20, {srd(SB)}, s13 offen nt lds")
s5_setup()
a(f"""v_mov_b32 v21, 0
v_mov_b32 v22, {sN}
s_barrier
s_barrier
""")
for t in range(8):
    a(f"ds_read_b128 {vr(PF+4*t)}, v31 offset:{PL+t*32}")
def pv_mfma(mt, t):
    o = ACC[mt]; d = 32 + (mt * 8 + t) * 4
    c = "0" if t == 0 else vr(o, 16)
    a(f"v_mfma_f32_32x32x16_bf16 {vr(o,16)}, {vr(d)}, {vr(PF+4*t)}, {c}")
def epi_w(rho, k):
    mtl, g = divmod(k, 4); o = ACC[2 * rho + mtl]; r = 224 + (k % 4) * 2
    a(f"v_cvt_pk_bf16_f32 v{r}, v{o+4*g}, v{o+4*g+1}\nv_cvt_pk_bf16_f32 v{r+1}, v{o+4*g+2}, v{o+4*g+3}")
    a(f"ds_write_b64 v27, {vr(r,2)} offset:{mtl*64+g*16}")
for t in range(8):
    a(f"s_waitcnt lgkmcnt({7-t})")
    pv_mfma(0, t); pv_mfma(1, t)
    if t == opt("b3bpos", 2): a("s_barrier")
for t in range(8):
    pv_mfma(2, t); pv_mfma(3, t)
    if t in (1, 2, 3, 4):
        epi_w(0, 2 * (t - 1)); epi_w(0, 2 * (t - 1) + 1)
    if t == 5:
        a("s_waitcnt lgkmcnt(0)")
        for i in range(4): a(f"ds_read_b128 {vr(232+4*i)}, v28 offset:{i*1152}")
    if t == 7:
        for i in range(4):
            a(f"s_waitcnt lgkmcnt({3-i})")
            for c in range(4): a(f"v_bfi_b32 v{232+4*i+c}, s79, v{248+c}, v{232+4*i+c}")
            a(f"buffer_store_dwordx4 {vr(232+4*i)}, v23, {srd(WS)}, s{68+i} offen sc1")
a("s_nop 3")
for k in range(8): epi_w(1, k)
a("s_waitcnt lgkmcnt(0)")
for i in range(4): a(f"ds_read_b128 {vr(64+4*i)}, v28 offset:{i*1152}")
for i in range(4):
    a(f"s_waitcnt lgkmcnt({3-i})")
    for c in range(4): a(f"v_bfi_b32 v{64+4*i+c}, s79, v{248+c}, v{64+4*i+c}")
    a(f"buffer_store_dwordx4 {vr(64+4*i)}, v23, {srd(WS)}, s{68+i} offen offset:128 sc1")
a(f"s_cmp_lg_u32 {sW}, 7\ns_cbranch_scc1 L_nf1\nds_write_b32 v21, v22 offset:{FLG}")
a.label("L_nf1")
stamp(7)
a(f"s_waitcnt vmcnt({opt('ackn', 0)})\ns_cmp_lg_u32 {sW}, 7\ns_cbranch_scc1 L_S5_ld\nds_write_b32 v21, v22 offset:{FLG+4}")
a.label("L_S5_ld")
for l in S5L: a(l)
a.label("L_S5_chk")
s5_check("L_S5chk", S5L, [96 + 4 * u for u in range(4)])
stamp(8)
a(f"s_barrier\nds_read_b128 {vr(16)}, v29 offset:{WTL}\ns_cmp_ge_u32 {sW}, 4\ns_cbranch_scc1 L_S5_nw")
for k in range(8): a(f"ds_read_b128 {vr(192+4*k)}, v20 offset:{k*1024}")
a("s_waitcnt lgkmcnt(8)\ns_branch L_S5_mm")
a.label("L_S5_nw")
a("s_waitcnt lgkmcnt(0)")
a.label("L_S5_mm")
diag_mfma([(16 + u, 112 + 4 * u) for u in range(4)], 32)
a(f"""s_nop 7
ds_write_b128 v30, {vr(32)}
s_waitcnt lgkmcnt(0)
s_barrier
s_cmp_ge_u32 {sW}, 4
s_cbranch_scc1 L_S5_b6
ds_read_b128 {vr(40)}, v27
ds_read_b128 {vr(44)}, v27 offset:32
s_waitcnt lgkmcnt(0)
""")
sum8(list(range(40, 48)))
for i in range(8): a(f"v_cvt_pk_bf16_f32 v{40+i}, v{40+i}, v{40+i}")
diag_mfma([(40 + k, 192 + 4 * k) for k in range(8)], 32)
a(f"s_nop 7\nds_write_b128 v30, {vr(32)} offset:{RED5b-RED5}\ns_waitcnt lgkmcnt(0)")
a.label("L_S5_b6")
a(f"s_barrier\ns_cmp_lg_u32 {sW}, 0\ns_cbranch_scc1 L_S9")
dlayout_off("v27", "v28", 256, 2)
a(f"s_lshl_b32 s12, s74, 9\ns_add_u32 s12, s12, {R5}")
reduce_b128("v30", 4, RED5b - RED5, 64, 32)
a(f"""v_cvt_pk_bf16_f32 v32, v32, v33
v_cvt_pk_bf16_f32 v33, v34, v35
buffer_store_dwordx2 {vr(32,2)}, v27, {srd(WS)}, s12 offen sc1
""")
stamp(9)
a.label("L_S9")
if opt("nolate", 0): a("s_branch L_fin")
a(f"s_cmp_ge_u32 {sID}, 80\ns_cbranch_scc1 L_fin\ns_cmp_lg_u32 {sW}, 1\ns_cbranch_scc1 L_fin")
mksrd(SC, pOUT, 2560)
a(f"""
s_mov_b32 s12, {sID}                ; unit
s_lshl_b32 s13, s12, 6
s_add_u32 s13, s13, {R7}
s_add_u32 s14, s13, {16*5120}
s_add_u32 s15, s13, {32*5120}
v_lshrrev_b32 v27, 2, {vLane}       ; pg
v_and_b32 v28, 3, {vLane}
v_mul_u32_u24 v29, 5120, v27
v_lshl_add_u32 v29, v28, 4, v29
v_add_u32 v30, {48*5120}, v29
v_cmp_gt_u32 vcc, {NFFN-48}, v27
v_mov_b32 v31, 0x7fffff00
s_nop 0
v_cndmask_b32 v30, v31, v30, vcc
s_mov_b64 exec, 1
""")
gather("L_S9gate", [f"buffer_load_dword v32, v29, {srd(WS)}, s13 offen sc1"], [32], "v31", sleep=2)
gather("L_S9data", [f"buffer_load_dwordx4 {vr(32)}, v29, {srd(WS)}, s13 offen sc1", f"buffer_load_dwordx4 {vr(36)}, v29, {srd(WS)}, s14 offen sc1",
                    f"buffer_load_dwordx4 {vr(40)}, v29, {srd(WS)}, s15 offen sc1", f"buffer_load_dwordx4 {vr(44)}, v30, {srd(WS)}, s13 offen sc1"],
       list(range(32, 48)), "v31", sleep=0)
stamp(13)
a("""v_pk_add_f32 v[32:33], v[32:33], v[36:37]
v_pk_add_f32 v[34:35], v[34:35], v[38:39]
v_pk_add_f32 v[40:41], v[40:41], v[44:45]
v_pk_add_f32 v[42:43], v[42:43], v[46:47]
v_pk_add_f32 v[32:33], v[32:33], v[40:41]
v_pk_add_f32 v[34:35], v[34:35], v[42:43]""")
for r in (4, 8):
    a("s_nop 1")
    for i in range(4):
        a(f"v_add_f32_dpp v{32+i}, v{32+i}, v{32+i} row_ror:{r} row_mask:0xf bank_mask:0xf")
for sw in ("v_permlane16_swap_b32", "v_permlane32_swap_b32"):
    for i in range(4): a(f"v_mov_b32 v{36+i}, v{32+i}")
    a("s_nop 0")
    for i in range(4): a(f"{sw} v{32+i}, v{36+i}")
    a("s_nop 0")
    for i in range(4): a(f"v_add_f32 v{32+i}, v{32+i}, v{36+i}")
a(f"""v_cvt_pk_bf16_f32 v32, v32, v33
v_cvt_pk_bf16_f32 v33, v34, v35
; L = 4*(u%16)+q4 : rgp = (u%16)>>2, n' = 4*(u&3)+q4 ; byte = b*1280 + nb*256 + n'*16 + (rgp&1)*8
s_lshr_b32 s13, s12, 4
s_lshl_b32 s13, s13, 8
s_bfe_u32 s14, s12, 0x10003
s_mul_i32 s14, s14, 1280
s_add_u32 s13, s13, s14
s_bfe_u32 s14, s12, 0x10002
s_lshl_b32 s14, s14, 3
s_add_u32 s13, s13, s14
s_and_b32 s14, s12, 3
s_lshl_b32 s14, s14, 6
s_add_u32 s13, s13, s14
v_lshlrev_b32 v28, 4, v28
s_mov_b64 exec, 15
buffer_store_dwordx2 {vr(32,2)}, v28, {srd(SC)}, s13 offen
s_cmp_lg_u32 s12, 0
s_cbranch_scc1 L_noep
s_mov_b64 exec, 1
v_mov_b32 v34, {sN}
v_mov_b32 v35, {EPOCH}
buffer_store_dword v34, v35, {srd(WS)}, 0 offen
""")
a.label("L_noep")
a("s_mov_b64 exec, -1\ns_branch L_fin")

a.label("L_F")
ACT = 0; RED = 8192; MISC = 16384; UKL = 32768
FL1 = FL2 + 0x2000
a(f"s_sub_u32 s10, {sID}, 128")
a.label("L_F_s2")
if opt("fwait", 1) == 1: get_tag()
if opt("fwait", 1) == 2:
    a("s_bfe_u32 s12, s10, 0x20003\ns_cmp_eq_u32 s12, 1\ns_cbranch_scc1 L_nofw")
    get_tag()
    a.label("L_nofw")
mksrd(SA, pWQ, 640 * 8192)
mksrd(SB, pWUK, 512 * 8192)
a(f"""
s_and_b32 s11, s10, 7
s_lshl_b32 s11, s11, 2
s_bfe_u32 s12, s10, 0x20003
s_xor_b32 s12, s12, {opt("hx", 0)}
s_add_u32 s11, s11, s12             ; h
s_lshr_b32 s12, s10, 5              ; r
s_lshl_b32 s14, s11, 8
s_cmp_ge_u32 {sW}, 5
s_cbranch_scc1 L_F_b0
s_mul_i32 s13, s12, 160
s_lshl_b32 s15, {sW}, 5
s_add_u32 s13, s13, s15             ; rbase
v_lshl_add_u32 v24, {vKg}, 2, s13
v_lshlrev_b32 v25, 13, v24
v_lshl_add_u32 v25, {vN}, 4, v25
""")
for k in range(8):
    g, u = divmod(k, 4)
    a(f"s_add_u32 s15, s14, {(16*g+u)*8192}\nbuffer_load_dwordx4 {vr(64+4*k)}, v25, {srd(SA)}, s15 offen nt")
UKF = 1
S3X = opt("s3x", 2)
a("s_branch L_F_h1")
a.label("L_F_b0")
a(f"""s_sub_u32 s15, {sW}, 5
s_lshl_b32 s8, s15, 10
s_add_u32 s8, s8, {UKL}
s_lshl_b32 s9, s12, 20
s_lshl_b32 s13, s15, 15
s_add_u32 s9, s9, s13
s_xor_b32 s13, s14, {S3X*256}
s_add_u32 s9, s9, s13
v_xor_b32 v26, {vKg}, {vN}
v_lshlrev_b32 v26, 4, v26
v_lshl_add_u32 v26, {vKg}, 13, v26
""")
for k in range(11):
    if k == 10: a(f"s_cmp_eq_u32 {sW}, 7\ns_cbranch_scc1 L_F_ukd")
    a(f"""s_add_u32 s13, s15, {3*k}
    s_and_b32 s13, s13, 3
    s_lshl_b32 s13, s13, 6
    v_xor_b32 v{27+k%2}, s13, v26
    s_add_u32 s13, s8, {k*3072}
    s_mov_b32 m0, s13
    s_add_u32 s13, s9, {k*3*32768}
    buffer_load_dwordx4 v{27+k%2}, {srd(SB)}, s13 offen nt lds""")
a.label("L_F_ukd")
a(f"""s_mul_i32 s15, s10, 6144
s_add_u32 s15, s15, {R5}
s_min_u32 s15, s15, {SMALL1-6144}
v_subrev_u32 v26, 320, v0
v_lshlrev_b32 v26, 4, v26
v_mov_b32 v32, -1
v_mov_b32 v33, -1
v_mov_b32 v34, -1
v_mov_b32 v35, -1
buffer_store_dwordx4 v[32:35], v26, {srd(WS)}, s15 offen sc1
buffer_store_dwordx4 v[32:35], v26, {srd(WS)}, s15 offen offset:3072 sc1""")
get_tag()
a("s_barrier\ns_waitcnt vmcnt(0)\ns_branch L_F_s3")
a.label("L_F_h1")
get_tag()
if opt("h2l", 1):
    a(f"""s_cmp_lg_u32 {sW}, 0
    s_cbranch_scc1 L_nopw
    s_not_b32 s15, {sN}
    v_mov_b32 v32, s15
    v_mov_b32 v33, s15
    v_mov_b32 v34, s15
    v_mov_b32 v35, s15
    s_lshl_b32 s15, s11, 2
    s_add_u32 s15, s15, s12
    s_lshl_b32 s15, s15, 10
    s_add_u32 s15, s15, {R2L}
    v_lshlrev_b32 v26, 4, {vLane}
    buffer_store_dwordx4 v[32:35], v26, {srd(WS)}, s15 offen""")
    a.label("L_nopw")
H1S = 24576
a(f"""; lane -> p = kg (+4), b = vN>>3, piece = vN&7 ; addr = (p*2+b)*2560 + rbase*4 + piece*16
v_mul_u32_u24 v26, 5120, {vKg}
v_lshrrev_b32 v27, 3, {vN}
v_mul_u32_u24 v27, 2560, v27
v_and_b32 v28, 7, {vN}
v_lshlrev_b32 v28, 4, v28
v_add3_u32 v26, v26, v27, v28
s_lshl_b32 s15, s13, 2
s_add_u32 s15, s15, {R1}
s_and_b32 s9, s10, {NC1-1}
s_mul_i32 s9, s9, 40960
s_add_u32 s15, s15, s9
s_add_u32 s9, s15, 20480
v_lshlrev_b32 v30, 4, v0
s_lshl_b32 s8, {sW}, 9
s_add_u32 s8, s8, {H1S}
v_lshlrev_b32 v27, 4, {vN}
v_add_u32 v27, s8, v27
v_lshrrev_b32 v31, 3, {vN}
v_lshlrev_b32 v31, 7, v31
v_lshl_add_u32 v31, {vKg}, 4, v31
v_add_u32 v31, s8, v31
s_waitcnt vmcnt({opt("h1wait", 1)})
""")
gather("L_H1", [f"buffer_load_dwordx4 {vr(32)}, v26, {srd(WS)}, s15 offen sc1", f"buffer_load_dwordx4 {vr(36)}, v26, {srd(WS)}, s9 offen sc1"],
       [33, 35, 37, 39], "v28", mode="tag", vt2="v29", sleep=1)
stamp(11)
a("""s_mov_b32 s8, 0x3f80
s_mov_b32 s9, 0x3f800000
v_lshlrev_b32 v40, 16, v32
v_and_b32 v41, 0xffff0000, v32
v_lshlrev_b32 v42, 16, v34
v_and_b32 v43, 0xffff0000, v34
v_dot2c_f32_bf16 v40, s8, v36
v_dot2c_f32_bf16 v41, s9, v36
v_dot2c_f32_bf16 v42, s8, v38
v_dot2c_f32_bf16 v43, s9, v38
s_nop 1""")
for sw in ("v_permlane16_swap_b32", "v_permlane32_swap_b32"):
    for i in range(4): a(f"v_mov_b32 v{44+i}, v{40+i}")
    a("s_nop 0")
    for i in range(4): a(f"{sw} v{40+i}, v{44+i}")
    a("s_nop 0")
    for i in range(4): a(f"v_add_f32 v{40+i}, v{40+i}, v{44+i}")
for i in range(4): a(f"v_cvt_pk_bf16_f32 v{40+i}, v{40+i}, v{40+i}")
a(f"""ds_write_b128 v27, {vr(40)}
s_waitcnt lgkmcnt(0)
ds_read_b128 {vr(40)}, v31
ds_read_b128 {vr(44)}, v31 offset:64
s_waitcnt lgkmcnt(0)""")
diag_mfma([(40 + k, 64 + 4 * k) for k in range(8)], 32)
a(f"s_nop 7\nds_write_b128 v30, {vr(32)} offset:{RED}")
a(f"s_waitcnt lgkmcnt(0)\ns_barrier")
a(f"s_cmp_lg_u32 {sW}, 0\ns_cbranch_scc1 L_F_s3")
a(f"v_lshlrev_b32 v27, 4, {vLane}")
a(f"""s_lshl_b32 s15, s11, 2
s_add_u32 s15, s15, s12
s_lshl_b32 s15, s15, 10
s_add_u32 s15, s15, {R2}
v_mov_b32 v37, {sN}
v_mov_b32 v39, {sN}""")
reduce_b128("v30", 5, RED, 64, 32)
a(f"""v_cvt_pk_bf16_f32 v36, v32, v33
v_cvt_pk_bf16_f32 v38, v34, v35
""")
if opt("h2l", 1):
    a(f"s_add_u32 s13, s15, {R2L-R2}\nbuffer_store_dwordx4 {vr(36)}, v27, {srd(WS)}, s13 offen")
a(f"buffer_store_dwordx4 {vr(36)}, v27, {srd(WS)}, s15 offen sc1")
stamp(12)
a.label("L_F_s3")
a(f"s_xor_b32 s11, s11, {S3X}\ns_barrier\ns_cmp_lt_u32 {sW}, 4\ns_cbranch_scc1 L_S3_h2")
a(f"""v_lshrrev_b32 v24, 2, {vN}
v_lshlrev_b32 v24, 3, v24
v_and_b32 v25, 3, {vN}
v_add_u32 v24, v24, v25
v_and_b32 v25, 15, v24
v_xor_b32 v25, v25, {vKg}
v_lshlrev_b32 v25, 4, v25
v_lshl_add_u32 v25, v24, 8, v25
s_sub_u32 s8, {sW}, 4
s_lshl_b32 s8, s8, 13
s_add_u32 s8, s8, {UKL}
v_add_u32 v25, s8, v25
s_waitcnt vmcnt(0)
""")
for t in range(2):
    for s in range(4):
        k = t * 4 + s
        a(f"v_xor_b32 v26, {((4*s) ^ (4*t)) << 4}, v25\nds_read_b128 {vr(64+4*k)}, v26 offset:{t*1024}")
a(f"""v_and_b32 v26, 1, {vN}
v_mul_u32_u24 v27, 320, v26
v_lshl_add_u32 v27, {vKg}, 4, v27
v_lshlrev_b32 v28, 15, v26
v_lshl_add_u32 v28, {vKg}, 4, v28
s_lshl_b32 s14, s11, 10
s_lshl_b32 s15, s12, 8
s_add_u32 s14, s14, s15
s_sub_u32 s15, {sW}, 4
s_lshl_b32 s15, s15, 6
s_add_u32 s14, s14, s15
s_add_u32 s14, s14, {R3}
s_mov_b32 s15, 0x{f2u(128 ** -0.5 * LOG2E):08x}
s_mov_b32 s8, 0x00030003
s_mov_b32 s9, 0x00030003
s_waitcnt lgkmcnt(0)
s_barrier
""")
for s in range(4):
    a(f"ds_read_b128 {vr(40+4*s)}, v27 offset:{ACT+64*s}")
for s in range(4):
    a(f"s_waitcnt lgkmcnt({3-s})")
    for t in range(2):
        k = t * 4 + s
        c = "0" if s == 0 else vr(32 + 4 * t)
        a(f"v_mfma_f32_16x16x32_bf16 {vr(32+4*t)}, {vr(64+4*k)}, {vr(40+4*s)}, {c}")
a("s_nop 6")
for i in range(8): a(f"v_mul_f32 v{32+i}, s15, v{32+i}")
for i in range(4): a(f"v_cvt_pk_bf16_f32 v{32+i}, v{32+2*i}, v{33+2*i}")
a(f"""s_mov_b64 exec, s[8:9]
buffer_store_dwordx4 {vr(32)}, v28, {srd(WS)}, s14 offen sc1
s_mov_b64 exec, -1
""")
stamp(4)
a("s_branch L_F_late")
a.label("L_S3_h2")
a(f"""s_cmp_lg_u32 {sW}, 1
s_cbranch_scc1 L_S3_bar
v_lshlrev_b32 v26, 4, {vLane}
s_lshl_b32 s14, s11, 12
s_add_u32 s14, s14, {R2}
s_mov_b32 s8, 0x3f80
s_mov_b32 s9, 0x3f800000
""")
dlayout_off("v27", "v28", 320, 2)
if opt("h2l", 1):
    a(f"s_add_u32 s13, s14, {R2L-R2}")
    dual_gather("L_H2", [f"buffer_load_dwordx4 {vr(32+4*r)}, v26, {srd(WS)}, s13 offen offset:{r*1024} sc1" for r in range(4)],
        [f"buffer_load_dwordx4 {vr(32+4*r)}, v26, {srd(WS)}, s14 offen offset:{r*1024} sc1" for r in range(4)],
        [33 + 2 * i for i in range(8)], "v28", "v29", every=opt("every", 8))
else:
    gather("L_H2", [f"buffer_load_dwordx4 {vr(32+4*r)}, v26, {srd(WS)}, s14 offen offset:{r*1024} sc1" for r in range(4)],
       [33 + 2 * i for i in range(8)], "v28", mode="tag", vt2="v29", sleep=0)
stamp(3)
a("v_lshlrev_b32 v48, 16, v32\nv_and_b32 v49, 0xffff0000, v32\nv_lshlrev_b32 v50, 16, v34\nv_and_b32 v51, 0xffff0000, v34")
for r in range(1, 4):
    a(f"v_dot2c_f32_bf16 v48, s8, v{32+4*r}\nv_dot2c_f32_bf16 v49, s9, v{32+4*r}\nv_dot2c_f32_bf16 v50, s8, v{34+4*r}\nv_dot2c_f32_bf16 v51, s9, v{34+4*r}")
a(f"""s_nop 2
v_cvt_pk_bf16_f32 v48, v48, v49
v_cvt_pk_bf16_f32 v49, v50, v51
ds_write_b64 v27, {vr(48,2)} offset:{ACT}
s_waitcnt lgkmcnt(0)
""")
a.label("L_S3_bar")
a("s_barrier")
a.label("L_F_late")
if opt("nolate", 0): a("s_branch L_fin")
a(f"""s_sub_u32 s15, s10, 60
s_cmp_lt_u32 s15, 4
s_cbranch_scc1 L_fin
s_barrier""")
if opt("trig", 1):
    a(f"""s_cmp_ge_u32 s10, {opt("notrig", 64)}
    s_cbranch_scc1 L_late2
    s_cmp_lg_u32 {sW}, 0
    s_cbranch_scc1 L_trig_x
    s_lshl_b32 s15, s10, 6
    s_add_u32 s15, s15, {FL2}
    v_mov_b32 v26, s15
    s_mov_b64 exec, 1""")
    gather("L_trig", [f"buffer_load_dword v27, v26, {srd(WS)}, 0 offen sc1"], [27], "v27", mode="tag", sleep=4)
    a("s_barrier")
a.label("L_late2")
stamp(6)
a(f"s_cmp_ge_u32 s10, 118\ns_cbranch_scc1 L_S1bf\ns_cmp_ge_u32 s10, 64\ns_cbranch_scc1 L_FFN\ns_cmp_ge_u32 s10, 40\ns_cbranch_scc1 L_S1bh")
mksrd(SA, pWO, 4096 * 1280)
a(f"""
s_and_b32 s11, s10, 7               ; g
s_lshr_b32 s12, s10, 3              ; nb
s_lshl_b32 s13, s11, 9
s_lshl_b32 s14, {sW}, 6
s_add_u32 s13, s13, s14
v_lshl_add_u32 v24, {vKg}, 2, s13
v_mul_u32_u24 v24, 1280, v24
v_lshl_add_u32 v24, {vN}, 4, v24
s_lshl_b32 s14, s12, 8
""")
for g in range(4):
    for u in range(4):
        k = g * 4 + u
        a(f"buffer_load_dwordx4 {vr(128+4*k)}, v24, {srd(SA)}, s14 offen offset:{u*1280} nt")
    if g < 3: a("s_add_u32 s14, s14, 20480")
a(f"""v_lshrrev_b32 v26, 7, v0
v_lshlrev_b32 v27, 11, v26
v_and_b32 v28, 127, v0
v_lshl_add_u32 v27, v28, 2, v27
s_lshl_b32 s14, s11, 13
s_add_u32 s14, s14, {R5}
v_bfe_u32 v28, v0, 6, 1
v_mul_u32_u24 v28, 2112, v28
v_lshl_add_u32 v28, v26, 9, v28
v_lshl_add_u32 v28, {vLane}, 3, v28
v_lshrrev_b32 v26, 3, {vN}
v_mul_u32_u24 v26, 2112, v26
s_lshl_b32 s15, {sW}, 8
v_add_u32 v26, s15, v26
v_lshl_add_u32 v26, {vKg}, 4, v26
v_lshlrev_b32 v30, 4, v0
s_mov_b32 s8, 0x3f80
s_mov_b32 s9, 0x3f800000
s_waitcnt vmcnt(0)
""")
stamp(7)
if LATEONLY: a("s_branch L_fin")
a(f"""s_lshl_b32 s15, s10, 6
s_add_u32 s15, s15, {FL2+32}
v_mov_b32 v31, s15
s_mov_b64 exec, 1""")
gather("L_w3a", [f"buffer_load_dword v32, v31, {srd(WS)}, 0 offen sc1"], [32], "v32", mode="tag", sleep=4)
a("s_mov_b64 exec, 1")
gather("L_H5gate", [f"buffer_load_dword v32, v27, {srd(WS)}, s14 offen sc1"], [32], "v31", sleep=2)
gather("L_H5", [f"buffer_load_dword v{32+c}, v27, {srd(WS)}, s14 offen offset:{c*512} sc1" for c in range(4)], [32, 33, 34, 35], "v29", sleep=0)
stamp(8)
a("v_lshlrev_b32 v36, 16, v32\nv_and_b32 v37, 0xffff0000, v32")
for c in range(1, 4):
    a(f"v_dot2c_f32_bf16 v36, s8, v{32+c}\nv_dot2c_f32_bf16 v37, s9, v{32+c}")
a(f"""s_nop 2
v_cvt_pk_bf16_f32 v36, v36, v36
v_cvt_pk_bf16_f32 v37, v37, v37
ds_write_b64 v28, {vr(36,2)} offset:{ACT}
s_waitcnt lgkmcnt(0)
s_barrier
""")
for g in range(4): a(f"ds_read_b128 {vr(40+4*g)}, v26 offset:{ACT+64*g}")
a("s_waitcnt lgkmcnt(3)")
diag_mfma([(40 + k, 128 + 4 * k) for k in range(16)], 32,
          waits=[("s_waitcnt lgkmcnt(%d)" % (2 - k // 4)) if (k % 4 == 2 and k < 12) else None for k in range(16)])
a(f"""s_nop 7
ds_write_b128 v30, {vr(32)} offset:{RED}
s_waitcnt lgkmcnt(0)
s_barrier
s_cmp_lg_u32 {sW}, 0
s_cbranch_scc1 L_fin
""")
a(f"v_lshlrev_b32 v27, 3, {vLane}")
a(f"""s_mul_i32 s14, s11, 2560
s_lshl_b32 s15, s12, 9
s_add_u32 s14, s14, s15
s_add_u32 s14, s14, {R6}""")
reduce_b128("v30", 8, RED, 64, 32)
a(f"""v_cvt_pk_bf16_f32 v32, v32, v33
v_cvt_pk_bf16_f32 v33, v34, v35
""")
for c in range(NC6):
    a(f"buffer_store_dwordx2 {vr(32,2)}, v27, {srd(WS)}, s14 offen sc1")
    if c < NC6 - 1: a("s_add_u32 s14, s14, 20480")
stamp(9)
a("s_branch L_fin")
def s1b(ng, name):
    mksrd(SA, pWM, 640 * 7680)
    mksrd(SB, pC, 2560)
    a(f"""v_lshl_add_u32 v24, {vKg}, 2, s13
    v_lshrrev_b32 v25, 3, {vN}
    v_mul_u32_u24 v26, 1280, v25
    v_lshl_add_u32 v26, v24, 1, v26
    v_mul_u32_u24 v27, 7680, v24
    v_lshl_add_u32 v27, {vN}, 4, v27
    s_lshl_b32 s14, s11, 8
    s_add_u32 s14, s14, 2560
    """)
    for g in range(ng):
        a(f"buffer_load_dwordx2 {vr(40+2*g,2)}, v26, {srd(SB)}, 0 offen offset:{g*32}")
    for k in range(4 * ng):
        g, u = divmod(k, 4)
        a(f"s_add_u32 s15, s14, {(g*16+u)*7680}\nbuffer_load_dwordx4 {vr(128+4*k)}, v27, {srd(SA)}, s15 offen nt")
    a(f"s_waitcnt vmcnt({4*ng})")
    for g in range(ng): silu_c4(40 + 2 * g, 64 + 4 * g, "v24")
    a("v_lshlrev_b32 v30, 4, v0")
    diag_mfma([(64 + k, 128 + 4 * k) for k in range(4 * ng)], 32, waits=[f"s_waitcnt vmcnt({4*ng-1-k})" for k in range(4 * ng)])
    a(f"s_nop 7\nds_write_b128 v30, {vr(32)} offset:{RED}\ns_waitcnt lgkmcnt(0)")
a.label("L_S1bh")
a(f"""s_sub_u32 s11, s10, 40
s_and_b32 s12, s11, 1               ; kh
s_lshr_b32 s11, s11, 1
s_lshl_b32 s87, s11, 10
s_add_u32 s88, s87, {R8B}
s_add_u32 s87, s87, {R8+5120}
s_cmp_eq_u32 s12, 1
s_cselect_b32 s87, s88, s87
s_add_u32 s11, s11, 5               ; q
s_mul_i32 s13, s12, 320
s_lshl_b32 s15, {sW}, 6
s_add_u32 s13, s13, s15
v_lshlrev_b32 v30, 4, v0
s_cmp_ge_u32 {sW}, 5
s_cbranch_scc1 L_S1b_z
""")
s1b(4, "h")
a("s_branch L_S1b_fin")
a.label("L_S1b_z")
a(f"v_mov_b32 v32, 0\nv_mov_b32 v33, 0\nv_mov_b32 v34, 0\nv_mov_b32 v35, 0\nds_write_b128 v30, {vr(32)} offset:{RED}\ns_waitcnt lgkmcnt(0)\ns_branch L_S1b_fin")
a.label("L_S1bf")
a(f"""s_sub_u32 s11, s10, 118
s_add_u32 s12, s11, 10
s_cmp_lt_u32 s11, 5
s_cselect_b32 s11, s11, s12         ; q
s_lshl_b32 s87, s11, 10
s_add_u32 s87, s87, {R8}
s_mul_i32 s13, {sW}, 80
""")
s1b(5, "f")
a.label("L_S1b_fin")
a(f"""s_barrier
s_cmp_lg_u32 {sW}, 0
s_cbranch_scc1 L_fin
s_lshl_b32 s15, s10, 6
s_add_u32 s15, s15, {FL2+32}
v_mov_b32 v31, s15
s_mov_b64 exec, 1""")
gather("L_w3b", [f"buffer_load_dword v32, v31, {srd(WS)}, 0 offen sc1"], [32], "v32", mode="tag", sleep=4)
a(f"v_lshlrev_b32 v27, 4, {vLane}")
reduce_b128("v30", 8, RED, 64, 32)
a(f"buffer_store_dwordx4 {vr(32)}, v27, {srd(WS)}, s87 offen sc1")
stamp(9)
a("s_branch L_fin")
a.label("L_FFN")
mksrd(SA, pWG, 640 * 3456)
mksrd(SB, pWU, 640 * 3456)
mksrd(SC, pWD, 1728 * 1280)
mksrd(SD, pX, 2560)
GW = 64
DW = 104
M2 = [16, 17]
AST = 2624
STL = MISC + 5120; ACT2 = MISC + 6144
a(f"""
s_sub_u32 s11, s10, {F_FFN0}        ; fb
s_cmp_lg_u32 {sW}, 4
s_cbranch_scc1 L_FFN_np
s_setprio 2""")
a.label("L_FFN_np")
a(f"""s_mul_i32 s13, {sW}, 80
v_lshl_add_u32 v24, {vKg}, 2, s13
v_lshrrev_b32 v25, 3, {vN}
v_add_u32 v24, v24, v25             ; row (e=0,q=0)
v_mul_u32_u24 v24, 3456, v24
v_and_b32 v25, 3, {vN}
v_lshl_add_u32 v24, v25, 4, v24
s_lshl_b32 s14, s11, 6
s_mov_b32 s8, 0x0f0f0f0f
s_mov_b32 s9, 0x0f0f0f0f
s_mov_b64 exec, s[8:9]
""")
for half, sr in ((0, SA), (1, SB)):
    if half: a("s_not_b64 exec, exec")
    for k in range(10):
        q, e = divmod(k, 2)
        a(f"s_add_u32 s15, s14, {(16*q+2*e)*3456}\nbuffer_load_dwordx4 {vr(GW+4*k)}, v24, {srd(sr)}, s15 offen nt")
a(f"""s_mov_b64 exec, -1
v_and_b32 v24, 1, {vN}
v_lshlrev_b32 v24, 4, v24
v_mov_b32 v25, 0xffff
v_lshlrev_b32 v24, v24, v25
v_and_b32 v25, 2, {vN}
v_cmp_eq_u32 vcc, 0, v25
s_nop 1
v_cndmask_b32 v{M2[0]}, 0, v24, vcc
v_cndmask_b32 v{M2[1]}, v24, 0, vcc
v_lshlrev_b32 v20, 3, v0            ; R6 offset
v_add_u32 v27, 5120, v20
v_lshlrev_b32 v30, 4, v0
v_lshrrev_b32 v23, 2, {vN}
v_and_b32 v23, 1, v23
v_mul_u32_u24 v23, {AST}, v23
s_mul_i32 s15, {sW}, 320
v_lshl_add_u32 v24, {vKg}, 4, s15
v_add_u32 v23, v23, v24
v_lshrrev_b32 v29, 5, {vLane}       ; b (lane>>5)
v_lshlrev_b32 v28, 8, v29
v_bfe_u32 v24, {vLane}, 2, 1
v_lshl_add_u32 v28, v24, 7, v28
v_bfe_u32 v24, {vLane}, 3, 2
v_lshl_add_u32 v28, v24, 4, v28
v_and_b32 v24, 3, {vLane}
v_lshl_add_u32 v28, v24, 2, v28
v_add_u32 v28, {RED}, v28
v_mul_u32_u24 v22, 192, v29
v_and_b32 v25, 31, {vLane}
v_lshl_add_u32 v22, v25, 2, v22
s_cmp_ge_u32 {sW}, 5
s_cbranch_scc1 L_FFN_x1
s_lshl_b32 s13, s11, 5
v_lshl_add_u32 v24, {vKg}, 2, s13
v_mul_u32_u24 v24, 1280, v24
v_lshl_add_u32 v24, {vN}, 4, v24
s_lshl_b32 s14, {sW}, 8
s_add_u32 s15, s14, 20480
""")
for k in range(8):
    g, u = divmod(k, 4)
    a(f"buffer_load_dwordx4 {vr(DW+4*k)}, v24, {srd(SC)}, s{14+g} offen offset:{u*1280} nt")
dlayout_off("v18", "v19", 1280, 2)
dlayout_off("v21", "v19", AST, 4)
a(f"""buffer_load_dwordx2 {vr(48,2)}, v18, {srd(SD)}, s14 offen
s_lshl_b32 s14, {sW}, 9
v_add_u32 v21, s14, v21
s_setprio 0
""")
a.label("L_FFN_x1")
def exch():
    for k in range(10):
        d = GW + 4 * k
        a(f"""v_mov_b32 v24, v{d+2}
        v_mov_b32 v25, v{d+3}
        v_mov_b32_dpp v{d+2}, v{d} row_ror:8 row_mask:0xf bank_mask:0x3
        v_mov_b32_dpp v{d+3}, v{d+1} row_ror:8 row_mask:0xf bank_mask:0x3
        v_mov_b32_dpp v{d}, v24 row_ror:8 row_mask:0xf bank_mask:0xc
        v_mov_b32_dpp v{d+1}, v25 row_ror:8 row_mask:0xf bank_mask:0xc""")
a("s_waitcnt vmcnt(0)")
stamp(5)
exch()
a(f"""s_cmp_ge_u32 {sW}, 5
s_cbranch_scc1 L_FFN_b1
s_lshl_b32 s15, s10, 6
s_add_u32 s15, s15, {FL2+32}
v_mov_b32 v31, s15
s_mov_b32 s13, {R8}
s_mov_b32 s12, {R8+5120}
s_mov_b32 s14, {R8+10240}
s_mov_b32 s9, {R8+15360}
s_mov_b32 s8, {R8B}
s_mov_b32 s15, {R8B+5120}
s_mov_b64 exec, 1""")
gather("L_w3c", [f"buffer_load_dword v32, v31, {srd(WS)}, 0 offen sc1"], [32], "v32", mode="tag", sleep=4)
R8L = [f"buffer_load_dwordx4 {vr(208)}, v30, {srd(WS)}, s13 offen sc1",
    f"buffer_load_dwordx4 {vr(212)}, v30, {srd(WS)}, s12 offen sc1",
    f"buffer_load_dwordx4 {vr(216)}, v30, {srd(WS)}, s14 offen sc1",
    f"buffer_load_dwordx4 {vr(220)}, v30, {srd(WS)}, s9 offen sc1",
    f"buffer_load_dwordx4 {vr(224)}, v30, {srd(WS)}, s8 offen sc1",
    f"buffer_load_dwordx4 {vr(228)}, v30, {srd(WS)}, s15 offen sc1"]
gather("L_R8", R8L, list(range(208, 232)), "v31", sleep=6)
for i in range(8): a(f"v_add_f32 v{212+i}, v{212+i}, v{224+i}")
a(f"""v_lshlrev_b32 v52, 16, v48
v_and_b32 v53, 0xffff0000, v48
v_lshlrev_b32 v54, 16, v49
v_and_b32 v55, 0xffff0000, v49""")
for i in range(4): a(f"v_add_f32 v{216+i}, 1.0, v{216+i}")
stamp(7)
a(f"""s_mov_b32 s8, 0x3f80
s_mov_b32 s9, 0x3f800000
s_and_b32 s13, s11, {NC6-1}
s_mul_i32 s13, s13, 20480
s_add_u32 s13, s13, {R6}
s_add_u32 s12, s13, {4*2560}
v_lshrrev_b32 v19, 5, v0
v_lshlrev_b32 v19, 3, v19
v_lshlrev_b32 v18, 3, v29
s_mov_b64 exec, 1
""")
gather("L_H6gate", [f"buffer_load_dword v32, v20, {srd(WS)}, s13 offen sc1"], [32], "v33", sleep=2)
def H6L(b):
    r = []
    for g in range(8):
        if g % 4 < 2: r.append(f"buffer_load_dwordx2 {vr(b+2*g,2)}, v20, {srd(WS)}, s{13 if g < 4 else 12} offen offset:{(g%4)*2560} sc1")
        else: r.append(f"buffer_load_dwordx2 {vr(b+2*g,2)}, v27, {srd(WS)}, s{13 if g < 4 else 12} offen offset:{(g%4-2)*2560} sc1")
    return r
gather("L_H6", H6L(32), list(range(32, 48)), "v31", sleep=0)
stamp(8)
a("v_lshlrev_b32 v56, 16, v32\nv_and_b32 v57, 0xffff0000, v32\nv_lshlrev_b32 v58, 16, v33\nv_and_b32 v59, 0xffff0000, v33")
for g in range(1, 8):
    a(f"v_dot2c_f32_bf16 v56, s8, v{32+2*g}\nv_dot2c_f32_bf16 v57, s9, v{32+2*g}\nv_dot2c_f32_bf16 v58, s8, v{33+2*g}\nv_dot2c_f32_bf16 v59, s9, v{33+2*g}")
a("s_nop 2")
for i in range(4): a(f"v_fmac_f32 v{52+i}, v{208+i}, v{56+i}")
a("""v_add_f32 v40, v52, v53
v_mul_f32 v41, v52, v52
v_add_f32 v42, v54, v55
v_fmac_f32 v41, v53, v53
v_add_f32 v40, v40, v42
v_fmac_f32 v41, v54, v54
v_fmac_f32 v41, v55, v55
""")
for r in (8, 4, 2, 1):
    a(f"s_nop 0\nv_add_f32_dpp v40, v40, v40 row_ror:{r} row_mask:0xf bank_mask:0xf\nv_add_f32_dpp v41, v41, v41 row_ror:{r} row_mask:0xf bank_mask:0xf")
a(f"""v_mov_b32 v42, v40
v_mov_b32 v43, v41
s_nop 0
v_permlane16_swap_b32 v40, v42
v_permlane16_swap_b32 v41, v43
s_nop 0
v_add_f32 v40, v40, v42
v_add_f32 v41, v41, v43
ds_write_b64 v19, {vr(40,2)} offset:{STL}
s_waitcnt lgkmcnt(0)
s_barrier""")
for i in range(5): a(f"ds_read_b64 {vr(152+2*i,2)}, v18 offset:{STL+16*i}")
a(f"""s_waitcnt lgkmcnt(0)
v_pk_add_f32 v[152:153], v[152:153], v[154:155]
v_pk_add_f32 v[156:157], v[156:157], v[158:159]
v_pk_add_f32 v[152:153], v[152:153], v[160:161]
v_pk_add_f32 v[152:153], v[152:153], v[156:157]
v_mul_f32 v152, 0x{f2u(1.0/640):08x}, v152      ; mean
v_mul_f32 v153, 0x{f2u(1.0/640):08x}, v153
v_fma_f32 v153, -v152, v152, v153
v_max_f32 v153, 0, v153
v_add_f32 v153, 0x{f2u(1e-5):08x}, v153
v_rsq_f32 v153, v153""")
for i in range(4): a(f"v_sub_f32 v{56+i}, v{52+i}, v152")
for i in range(4): a(f"v_mul_f32 v{56+i}, v{56+i}, v153")
for i in range(4): a(f"v_fma_f32 v{56+i}, v{56+i}, v{216+i}, v{212+i}")
for i in range(4): a(f"v_cvt_pk_bf16_f32 v{56+i}, v{56+i}, v{56+i}")
a(f"ds_write_b128 v21, {vr(56)} offset:{ACT}\ns_waitcnt lgkmcnt(0)\ns_branch L_FFN_main")
a.label("L_FFN_b1")
a("s_barrier")
a.label("L_FFN_main")
a("s_barrier")
for q in range(5): a(f"ds_read_b128 {vr(224+4*q)}, v23 offset:{ACT+64*q}")
a("s_waitcnt lgkmcnt(4)")
diag_mfma([((224 + 2 * k, 225 + 2 * k), GW + 4 * k) for k in range(10)], 32, masks=M2,
          waits=[("s_waitcnt lgkmcnt(%d)" % (3 - k // 2)) if (k % 2 == 0 and k < 8) else None for k in range(10)])
a(f"""v_lshrrev_b32 v24, 3, {vN}
v_mul_u32_u24 v24, 192, v24
v_lshl_add_u32 v24, {vKg}, 4, v24
s_cmp_eq_u32 s11, 0
s_cselect_b32 s15, 1.0, 0
s_mul_i32 s14, s11, 5120
s_add_u32 s14, s14, {R7}
s_nop 0
ds_write_b128 v30, {vr(32)} offset:{RED}
v_mul_f32 v52, s15, v52
v_mul_f32 v53, s15, v53
v_mul_f32 v54, s15, v54
v_mul_f32 v55, s15, v55
s_waitcnt lgkmcnt(0)
s_barrier
s_cmp_lg_u32 {sW}, 7
s_cbranch_scc1 L_FFN_b3
""")
for w in range(8):
    a(f"ds_read_b32 v{136+2*w}, v28 offset:{w*1024}\nds_read_b32 v{137+2*w}, v28 offset:{w*1024+64}")
a(f"""s_waitcnt lgkmcnt(8)
v_pk_add_f32 v[136:137], v[136:137], v[138:139]
v_pk_add_f32 v[140:141], v[140:141], v[142:143]
v_pk_add_f32 v[136:137], v[136:137], v[140:141]
s_waitcnt lgkmcnt(0)
v_pk_add_f32 v[144:145], v[144:145], v[146:147]
v_pk_add_f32 v[148:149], v[148:149], v[150:151]
v_pk_add_f32 v[144:145], v[144:145], v[148:149]
v_pk_add_f32 v[32:33], v[136:137], v[144:145]""")
silu("v32", "v34")
a(f"""v_mul_f32 v32, v32, v33
v_cvt_pk_bf16_f32 v32, v32, v32
ds_write_b32 v22, v32 offset:{ACT2}
s_waitcnt lgkmcnt(0)
""")
a.label("L_FFN_b3")
a(f"""s_barrier
s_cmp_ge_u32 {sW}, 5
s_cbranch_scc1 L_fin
ds_read_b128 {vr(224)}, v24 offset:{ACT2}
ds_read_b128 {vr(228)}, v24 offset:{ACT2+64}
s_waitcnt lgkmcnt(1)
""")
diag_mfma([(224 + k, DW + 4 * k) for k in range(8)], 32, waits=[None, None, "s_waitcnt lgkmcnt(0)"] + [None] * 5)
a("s_nop 7")
for i in range(4): a(f"v_fmac_f32 v{52+i}, v{32+i}, v{220+i}")
a(f"buffer_store_dwordx4 {vr(52)}, v30, {srd(WS)}, s14 offen sc1")
stamp(9)

a.label("L_fin")
if STAMPS:
    stamp(15)
    a(f"""s_lshl_b32 s12, {sID}, 3
    s_add_u32 s12, s12, {sW}
    s_lshl_b32 s12, s12, 6
    s_add_u32 s12, s12, {STMP}
    v_lshlrev_b32 v24, 2, {vLane}
    s_mov_b64 exec, 0xffff
    buffer_store_dword {vST}, v24, {srd(WS)}, s12 offen""")
a.label("L_end")
a("s_endpgm")
a.label("L_code_end")

header = open("adaLN_cond__compressed_kv_cla__swiglu_ffn__decode.s.ref").read().split("; Override launch")[0]
open(OUT, "w").write(wrap(a.text(), 256, 512, 163840, header=header))
```
